```python
import torch

def _softmax(x, axis=-1):
    return torch.softmax(x, dim=axis)
def _gelu(x):
    return torch.nn.functional.gelu(x, approximate="tanh")
def _silu(x):
    return torch.nn.functional.silu(x)
def _sigmoid(x):
    return torch.sigmoid(x)
def _layernorm(x, axis=-1, eps=1e-5):
    m = x.mean(dim=axis, keepdim=True)
    v = x.var(dim=axis, keepdim=True, unbiased=False)
    return (x - m) / torch.sqrt(v + eps)
def _scatter_add(tgt, idx, src, axis=0):
    return tgt.clone().index_add_(axis, idx, src)
def _segment_sum(src, seg, n):
    out = torch.zeros((n,) + src.shape[1:], dtype=src.dtype)
    return out.index_add_(0, seg, src)
def _pad(x, pw):
    flat = tuple(v for pair in reversed(pw) for v in pair)
    return torch.nn.functional.pad(x, flat)

kernel_name = 'concat_heads__gqa_block_cached__gqa_block_cached__decode'

def setup_inputs():

    _w = (lambda a: (lambda t: t.to(torch.bfloat16) if t.is_floating_point() else t)(torch.as_tensor(a)))
    def _A_setup():
        B, Sq, D = 1, 1, 576
        Hq, Hkv, Sk, Dh = 32, 16, 8192, 128
        assert Hq % Hkv == 0, (Hq, Hkv)
        return {
            "x": _w((lambda *s: torch.randn(*s, dtype=torch.bfloat16) * 0.8)(B, Sq, D)),
            "k_cache": _w((lambda *s: torch.randn(*s, dtype=torch.bfloat16) * 0.8)(B, Hkv, Sk, Dh)),
            "v_cache": _w((lambda *s: torch.randn(*s, dtype=torch.bfloat16) * 0.05)(B, Hkv, Sk, Dh)),
            "wq": _w((lambda *s: torch.randn(*s, dtype=torch.bfloat16) * 0.8)(D, Hq * Dh) * (D ** -0.5)),
            "wo": _w((lambda *s: torch.randn(*s, dtype=torch.bfloat16) * 0.05)(Hq * Dh, D) * ((Hq * Dh) ** -0.5)),
        }
    _A_in = _A_setup()

    def _B_setup():
        B, Sq, D = 1, 1, 576
        Hq, Hkv, Sk, Dh = 32, 16, 8192, 128
        assert Hq % Hkv == 0, (Hq, Hkv)
        return {
            "x": _w((lambda *s: torch.randn(*s, dtype=torch.bfloat16) * 0.8)(B, Sq, D)),
            "k_cache": _w((lambda *s: torch.randn(*s, dtype=torch.bfloat16) * 0.8)(B, Hkv, Sk, Dh)),
            "v_cache": _w((lambda *s: torch.randn(*s, dtype=torch.bfloat16) * 0.05)(B, Hkv, Sk, Dh)),
            "wq": _w((lambda *s: torch.randn(*s, dtype=torch.bfloat16) * 0.8)(D, Hq * Dh) * (D ** -0.5)),
            "wo": _w((lambda *s: torch.randn(*s, dtype=torch.bfloat16) * 0.05)(Hq * Dh, D) * ((Hq * Dh) ** -0.5)),
        }
    _B_in = _B_setup()

    return {
        "A_x": _A_in["x"],
        "A_k_cache": _A_in["k_cache"],
        "A_v_cache": _A_in["v_cache"],
        "A_wq": _A_in["wq"],
        "A_wo": _A_in["wo"],
        "B_x": _B_in["x"],
        "B_k_cache": _B_in["k_cache"],
        "B_v_cache": _B_in["v_cache"],
        "B_wq": _B_in["wq"],
        "B_wo": _B_in["wo"],
    }

def reference(A_x, A_k_cache, A_v_cache, A_wq, A_wo, B_x, B_k_cache, B_v_cache, B_wq, B_wo):
    def _A_ref(x, k_cache, v_cache, wq, wo):
        B, Sq, D = x.shape
        Hq, Dh = 32, 128
        Hkv = k_cache.shape[1]
        rep = Hq // Hkv
        q = (lambda x, *d: x.permute(*d))((x @ wq).reshape(B, Sq, Hq, Dh), 0, 2, 1, 3)
        k = (lambda x, n, axis: torch.repeat_interleave(x, n, dim=axis))(k_cache, rep, axis=1)
        v = (lambda x, n, axis: torch.repeat_interleave(x, n, dim=axis))(v_cache, rep, axis=1)
        scores = torch.einsum("bhqd,bhkd->bhqk", q, k) * (Dh ** -0.5)
        p = _softmax(scores, axis=-1)
        o = torch.einsum("bhqk,bhkd->bhqd", p, v)
        return (lambda x, *d: x.permute(*d))(o, 0, 2, 1, 3).reshape(B, Sq, Hq * Dh) @ wo

    def _B_ref(x, k_cache, v_cache, wq, wo):
        B, Sq, D = x.shape
        Hq, Dh = 32, 128
        Hkv = k_cache.shape[1]
        rep = Hq // Hkv
        q = (lambda x, *d: x.permute(*d))((x @ wq).reshape(B, Sq, Hq, Dh), 0, 2, 1, 3)
        k = (lambda x, n, axis: torch.repeat_interleave(x, n, dim=axis))(k_cache, rep, axis=1)
        v = (lambda x, n, axis: torch.repeat_interleave(x, n, dim=axis))(v_cache, rep, axis=1)
        scores = torch.einsum("bhqd,bhkd->bhqk", q, k) * (Dh ** -0.5)
        p = _softmax(scores, axis=-1)
        o = torch.einsum("bhqk,bhkd->bhqd", p, v)
        return (lambda x, *d: x.permute(*d))(o, 0, 2, 1, 3).reshape(B, Sq, Hq * Dh) @ wo

    a = _A_ref(A_x, A_k_cache, A_v_cache, A_wq, A_wo)
    b = _B_ref(B_x, B_k_cache, B_v_cache, B_wq, B_wo)
    return torch.concatenate([a, b], axis=-1)
```

```python
import re

TRANS = ("v_exp_f32", "v_log_f32", "v_rcp_f32", "v_rsq_f32", "v_sqrt_f32")


def regs_of(tok):
    tok = tok.strip()
    if tok.startswith("-"):
        tok = tok[1:]
    if tok.startswith("abs(") and tok.endswith(")"):
        tok = tok[4:-1]
    m = re.fullmatch(r"([vsa])(\d+)", tok)
    if m:
        return {(m.group(1), int(m.group(2)))}
    m = re.fullmatch(r"([vsa])\[(\d+):(\d+)\]", tok)
    if m:
        return {(m.group(1), i) for i in range(int(m.group(2)), int(m.group(3)) + 1)}
    if tok == "vcc":
        return {("s", "vcc_lo"), ("s", "vcc_hi")}
    if tok in ("vcc_lo", "vcc_hi"):
        return {("s", tok)}
    if tok == "exec":
        return {("s", "exec_lo"), ("s", "exec_hi")}
    if tok in ("exec_lo", "exec_hi"):
        return {("s", tok)}
    return set()


class Ins:
    def __init__(self, text):
        self.text = text
        t = text.split(";")[0].strip()
        parts = t.split(None, 1)
        self.op = parts[0]
        rest = parts[1] if len(parts) > 1 else ""
        ops = []
        depth = 0
        cur = ""
        for ch in rest:
            if ch in "[(":
                depth += 1
            if ch in "])":
                depth -= 1
            if ch == "," and depth == 0:
                ops.append(cur.strip())
                cur = ""
            else:
                cur += ch
        if cur.strip():
            last = cur.strip().split(None, 1)
            ops.append(last[0])
            self.mods = last[1] if len(last) > 1 else ""
        else:
            self.mods = ""
        self.ops = ops
        op = self.op
        R = [regs_of(o) for o in ops]
        self.kind = "other"
        self.w = set()
        self.r = set()
        self.ab = set()
        self.c = set()
        self.dpp = False
        self.wide_store = set()
        self.passes = 0
        if op.startswith("v_mfma"):
            self.kind = "mfma"
            self.w = R[0]
            self.ab = R[1] | R[2]
            self.c = R[3]
            self.r = self.ab | self.c
            self.sgemm = op.endswith("x4_f32") and "16x16x4" in op
            self.passes = 8 if self.sgemm else 4
            assert op in ("v_mfma_f32_16x16x32_bf16", "v_mfma_f32_16x16x4_f32"), op
        elif op.startswith("v_permlane"):
            self.kind = "valu"
            self.perm = True
            self.w = R[0] | R[1]
            self.r = R[0] | R[1]
        elif op.startswith("v_readfirstlane") or op.startswith("v_readlane"):
            self.kind = "valu"
            self.rfl = True
            self.w = R[0]
            self.r = set().union(*R[1:])
        elif op.startswith("v_"):
            self.kind = "valu"
            self.w = R[0]
            self.r = set().union(*R[1:]) if len(R) > 1 else set()
            if op.endswith("_dpp") or "row_" in self.mods or "quad_perm" in self.mods:
                self.dpp = True
                self.r |= R[0]
            if op.startswith("v_fmac"):
                self.r |= R[0]
            if op.startswith("v_add_co") or op.startswith("v_sub_co"):
                self.w |= R[1]
                self.r = set().union(*R[2:])
        elif op.startswith("buffer_load") or op.startswith("global_load"):
            self.kind = "vmem"
            self.w = R[0]
            self.r = set().union(*R[1:])
        elif op.startswith("buffer_store"):
            self.kind = "vmem"
            self.r = set().union(*R)
            if len(R[0]) >= 3:
                self.wide_store = R[0]
        elif op.startswith("global_store"):
            self.kind = "vmem"
            self.r = set().union(*R)
            if len(R[1]) >= 3:
                self.wide_store = R[1]
        elif op.startswith("ds_read"):
            self.kind = "ds"
            self.w = R[0]
            self.r = set().union(*R[1:])
        elif op.startswith("ds_"):
            self.kind = "ds"
            self.r = set().union(*R)
        elif op.startswith("s_"):
            self.kind = "salu"
        self.trans = any(op.startswith(x) for x in TRANS)
        self.perm = getattr(self, "perm", False)
        self.rfl = getattr(self, "rfl", False)
        self.states = 1
        if op == "s_nop":
            self.states = int(ops[0]) + 1


def need(p, c):
    n = 0
    vw = {x for x in p.w if x[0] in "va"}
    sw = {x for x in p.w if x[0] == "s"}
    if p.kind == "valu":
        if c.kind == "mfma" and vw & c.r:
            n = max(n, 2)
        if c.kind == "valu" and c.dpp and vw & c.r:
            n = max(n, 2)
        if c.kind == "valu" and c.perm and vw & c.r:
            n = max(n, 2)
        if c.kind == "valu" and c.rfl and vw & c.r:
            n = max(n, 1)
        if p.trans and c.kind in ("valu", "vmem", "ds") and not c.trans and vw & c.r:
            n = max(n, 1)
        if sw and c.kind == "valu" and sw & c.r:
            n = max(n, 4 if c.rfl else 2)
        if sw and c.kind == "vmem" and sw & c.r:
            n = max(n, 5)
    if p.kind == "mfma":
        far = 10 if p.sgemm else 8
        if c.kind == "mfma":
            if vw & c.ab:
                n = max(n, far)
            if vw & c.c:
                if vw == c.c and c.passes == p.passes and c.sgemm == p.sgemm:
                    pass
                elif p.sgemm and not c.sgemm:
                    pass
                else:
                    n = max(n, 8 if p.sgemm else 6)
        elif c.kind in ("valu", "vmem", "ds"):
            if vw & (c.r | c.w):
                n = max(n, far)
        if c.kind == "valu" and not p.sgemm and p.c & c.w:
            n = max(n, 3)
    if p.wide_store:
        if c.kind == "valu" and p.wide_store & c.w:
            n = max(n, 2)
        elif p.wide_store & c.w:
            n = max(n, 1)
    return n


class Emitter:
    WINDOW = 12

    def __init__(self):
        self.lines = []
        self.hist = []
        self.snap = {}
        self.labels = {}
        self.prog = []
        self.dead = False
        self.nnop = 0

    def raw(self, text):
        self.lines.append(text)

    def comment(self, text):
        self.lines.append("; " + text)

    def _age(self, k):
        for h in self.hist:
            h[1] += k
        self.hist = [h for h in self.hist if h[1] < self.WINDOW]

    def need_now(self, hist, ins):
        req = 0
        for p, age in hist:
            req = max(req, need(p, ins) - age)
        return req

    def __call__(self, text):
        for t in text.split("\n"):
            t = t.strip()
            if not t or t.startswith(";"):
                continue
            if t.endswith(":"):
                self.label(t[:-1])
            else:
                self.ins(t)

    def ins(self, text):
        assert not self.dead, "unreachable: " + text
        ins = Ins(text)
        req = self.need_now(self.hist, ins)
        if req > 0:
            self.lines.append(f"  s_nop {req - 1}")
            self.prog.append(Ins(f"s_nop {req - 1}"))
            self.nnop += 1
            self._age(req)
        self.lines.append("  " + text)
        self.prog.append(ins)
        self._age(ins.states)
        self.hist.append([ins, 0])
        if ins.op.startswith("s_cbranch") or ins.op == "s_branch":
            tgt = ins.ops[0]
            if tgt in self.labels:
                self._check_back(tgt)
            else:
                self.snap.setdefault(tgt, []).append([[p, a] for p, a in self.hist])
            if ins.op == "s_branch":
                self.dead = True
                self.hist = []
        if ins.op == "s_endpgm":
            self.dead = True
            self.hist = []

    def _check_back(self, tgt):
        hist = [[p, a] for p, a in self.hist]
        for it in self.prog[self.labels[tgt]:]:
            if isinstance(it, str):
                continue
            req = self.need_now(hist, it)
            assert req <= 0, f"loop hazard at {tgt}: {it.text} needs {req}"
            for h in hist:
                h[1] += it.states
            hist = [h for h in hist if h[1] < self.WINDOW]
            if not hist:
                break

    def label(self, name):
        self.lines.append(name + ":")
        self.labels[name] = len(self.prog)
        self.prog.append(name)
        merged = [] if self.dead else list(self.hist)
        for s in self.snap.pop(name, []):
            merged += s
        self.hist = merged
        self.dead = False

    def text(self):
        assert not self.snap, self.snap
        return "\n".join(self.lines) + "\n"
```

```python
import sys
from emit import Emitter

KNAME = "concat_heads__gqa_block_cached__gqa_block_cached__decode_kernel"
HEADER = open("header.txt").read()

WS_QP, WS_H1, WS_I2, WS_PROF = 0x0, 0x40000, 0x100000, 0x200000
LDS_Q, LDS_ML, LDS_SIZE = 8192, 8704, 8832

vL, vLin, vK, vX = 0, 1, 2, 3
vM = 4
vQ = 8
vS = 24
vA = 40
vD = 48
vMx, vAl, vAD, vT0 = 52, 53, 54, 55
vLs = 56
vN0, vT1 = 58, 59
vN1, vLt = 60, 61
vT2 = 62
RING = 64
NSLOT = 10
vH = 224
sKa, sKvh, sS, sIdx, sLid, sW, sT0, sT1 = 3, 5, 6, 7, 8, 9, 10, 11
K_, V_, WQ_, WO_, WS_, OUT_, DBG_ = 12, 16, 20, 24, 28, 32, 36
sX = 40
sXd = 44
sC, sStep, sK, sV, sWq, sWo, sWo2, sSpin, sOne = 50, 51, 52, 53, 54, 55, 56, 57, 58
sA, sB = 59, 4
sP0 = 60
sProf = 68


def srd(b):
    return f"s[{b}:{b+3}]"


def vr(b, n):
    return f"v[{b}:{b+n-1}]"


class VM:
    def __init__(self, e):
        self.e = e
        self.ops = []
        self.done = 0

    def add(self, tag):
        self.ops.append(tag)

    def wait_n(self, n):
        n = max(n, 0)
        if len(self.ops) - self.done > n:
            assert n <= 63
            self.e(f"s_waitcnt vmcnt({n})")
            self.done = len(self.ops) - n

    def wait_tag(self, tag):
        last = max(i for i, t in enumerate(self.ops) if t == tag)
        self.wait_n(len(self.ops) - 1 - last)

    def copy(self):
        v = VM(self.e)
        v.ops = list(self.ops)
        v.done = self.done
        return v


def gen(npre=8, upre=4, umain=8, la=2, ratio=2, jctl=5, nt="nt", lead=1, wo_at="issue", prof=False,
        spin=1 << 16, fine=False, prio=False):
    e = Emitter()
    NT = (" " + nt) if nt else ""
    if lead == 1:
        seq = ["K0", "K1"] + [x for n in range(6) for x in (f"V{n}", f"K{n+2}")] + ["V6", "V7"]
    elif lead == 2:
        seq = ["K0", "K1", "K2"] + [x for n in range(5) for x in (f"V{n}", f"K{n+3}")] + ["V5", "V6", "V7"]
    assert len(seq) == 16 and len(set(seq)) == 16
    free = list(range(NSLOT))
    slot = {}
    nstamp = [0]

    def stamp(k):
        if prof:
            e(f"s_memrealtime s[{sProf+2*k}:{sProf+2*k+1}]")

    first = {"K": True, "V": True}

    def issue_load(t, i):
        r = RING + 16 * slot[t] + 4 * i
        if t[0] == "K":
            e(f"buffer_load_dwordx4 {vr(r,4)}, v{vK}, {srd(K_)}, s{sK} offen offset:{64*i}{NT}")
        else:
            e(f"buffer_load_dwordx4 {vr(r,4)}, v{vLin}, {srd(V_)}, s{sV} offen offset:{1024*i}{NT}")

    def issue(vm, t, u=None, alloc=True):
        if alloc:
            slot[t] = free.pop(0)
        if u is not None and not fine:
            vm.wait_n(u - 4)
        for i in range(4):
            if u is not None and fine:
                vm.wait_n(u - 1)
            issue_load(t, i)
            vm.add(t)
        if t[1] != "7":
            s = sK if t[0] == "K" else sV
            e(f"s_add_u32 s{s}, s{s}, s{sStep}")

    def allreduce(v, tmp, op):
        e(f"v_mov_b32 v{tmp}, v{v}")
        e(f"v_permlane16_swap_b32 v{v}, v{tmp}")
        e(f"{op} v{v}, v{v}, v{tmp}")
        e(f"v_mov_b32 v{tmp}, v{v}")
        e(f"v_permlane32_swap_b32 v{v}, v{tmp}")
        e(f"{op} v{v}, v{v}, v{tmp}")

    e.raw(HEADER.rstrip())
    e.raw(f"; @launch grid=(256,1,1) block=(512,1,1) lds={LDS_SIZE}")
    e.raw('.amdgcn_target "amdgcn-amd-amdhsa--gfx950"')
    e.raw(".text")
    e.raw(f".globl {KNAME}")
    e.raw(".p2align 8")
    e.raw(f".type {KNAME},@function")
    e.raw(f"{KNAME}:")
    stamp(0)
    e(f"""
    s_lshr_b32 s{sT0}, s2, 8
    s_cbranch_scc1 L_end
    s_bitcmp1_b32 s2, 2
    s_cselect_b32 s{sKa}, 40, 0
    s_load_dwordx2 s[{WQ_}:{WQ_+1}], s[0:1], s{sKa} offset:24
    s_load_dwordx2 s[{sX}:{sX+1}], s[0:1], s{sKa} offset:0
    s_load_dwordx2 s[{K_}:{K_+1}], s[0:1], s{sKa} offset:8
    s_load_dwordx2 s[{V_}:{V_+1}], s[0:1], s{sKa} offset:16
    s_load_dwordx2 s[{WS_}:{WS_+1}], s[0:1], 96
    s_load_dwordx2 s[{DBG_}:{DBG_+1}], s[0:1], 88
    s_load_dwordx2 s[{WO_}:{WO_+1}], s[0:1], s{sKa} offset:32
    s_load_dwordx2 s[{OUT_}:{OUT_+1}], s[0:1], 80
    v_lshrrev_b32 v{vLin}, 6, v0
    v_and_b32 v{vL}, 63, v0
    v_readfirstlane_b32 s{sW}, v{vLin}
    s_and_b32 s{sT0}, s2, 7
    s_lshl_b32 s{sT0}, s{sT0}, 5
    s_lshr_b32 s{sLid}, s2, 3
    s_or_b32 s{sLid}, s{sLid}, s{sT0}
    s_and_b32 s{sIdx}, s{sLid}, 0x7f
    s_and_b32 s{sS}, s{sLid}, 7
    s_lshr_b32 s{sKvh}, s{sIdx}, 3
    s_mov_b32 s{WQ_+2}, 0x480000
    s_mov_b32 s{WQ_+3}, 0x20000
    s_mov_b32 s{K_+2}, 0x2000000
    s_mov_b32 s{K_+3}, 0x20000
    s_mov_b32 s{V_+2}, 0x2000000
    s_mov_b32 s{V_+3}, 0x20000
    s_mov_b32 s{WS_+2}, 0x400000
    s_mov_b32 s{WS_+3}, 0x20000
    s_mov_b32 s{sStep}, 0x8000
    v_lshlrev_b32 v{vLin}, 4, v{vL}
    v_and_b32 v{vT0}, 3, v{vL}
    v_bfe_u32 v{vT1}, v{vL}, 2, 2
    v_and_b32 v{vK}, 48, v{vL}
    v_lshl_or_b32 v{vK}, v{vT0}, 10, v{vK}
    v_lshl_or_b32 v{vK}, v{vT1}, 8, v{vK}
    s_lshl_b32 s{sK}, s{sIdx}, 6
    s_add_u32 s{sK}, s{sK}, s{sW}
    s_lshl_b32 s{sK}, s{sK}, 12
    s_mov_b32 s{sV}, s{sK}
    s_cmp_gt_u32 s{sW}, 6
    s_cbranch_scc1 L_clear
    s_cmp_eq_u32 s{sW}, 6
    v_and_b32 v{vT0}, 0x1ff, v{vLin}
    v_lshrrev_b32 v{vT1}, 5, v{vL}
    v_lshl_or_b32 v{vX}, v{vT1}, 13, v{vT0}
    s_cbranch_scc1 L_wait0
    s_mul_i32 s{sT0}, s{sS}, 6
    s_add_u32 s{sT0}, s{sT0}, s{sW}
    s_mul_i32 s{sWq}, s{sT0}, 0x18000
    s_lshl_b32 s{sT1}, s{sKvh}, 9
    s_add_u32 s{sWq}, s{sWq}, s{sT1}
    s_mul_i32 s{sT0}, s{sT0}, 24
    s_waitcnt lgkmcnt(0)
    s_load_dwordx4 s[{sXd}:{sXd+3}], s[{sX}:{sX+1}], s{sT0}
    s_load_dwordx2 s[{sXd+4}:{sXd+5}], s[{sX}:{sX+1}], s{sT0} offset:16
    """)
    for i in range(6):
        e(f"buffer_load_dwordx4 {vr(vH+4*i,4)}, v{vX}, {srd(WQ_)}, s{sWq} offen{NT}")
        if i < 5:
            e(f"s_addk_i32 s{sWq}, 0x4000")
    e("s_branch L_t0")
    e("L_clear:")
    if prio:
        e("s_setprio 3")
    e(f"""
    v_mov_b32 v{vA}, -1
    v_mov_b32 v{vA+1}, -1
    v_mov_b32 v{vA+2}, -1
    v_mov_b32 v{vA+3}, -1
    s_lshl_b32 s{sA}, s{sLid}, 10
    s_lshl_b32 s{sT0}, s{sLid}, 11
    s_add_u32 s{sT0}, s{sT0}, {WS_H1}
    s_lshl_b32 s{sT1}, s{sLid}, 12
    s_add_u32 s{sT1}, s{sT1}, {WS_I2}
    s_cmp_ge_u32 s{sIdx}, 72
    s_waitcnt lgkmcnt(0)
    buffer_store_dwordx4 {vr(vA,4)}, v{vLin}, {srd(WS_)}, s{sA} offen sc1
    buffer_store_dwordx4 {vr(vA,4)}, v{vLin}, {srd(WS_)}, s{sT0} offen sc1
    buffer_store_dwordx4 {vr(vA,4)}, v{vLin}, {srd(WS_)}, s{sT0} offen offset:1024 sc1
    s_cbranch_scc1 L_t0
    buffer_store_dwordx4 {vr(vA,4)}, v{vLin}, {srd(WS_)}, s{sT1} offen sc1
    buffer_store_dwordx4 {vr(vA,4)}, v{vLin}, {srd(WS_)}, s{sT1} offen offset:1024 sc1
    buffer_store_dwordx4 {vr(vA,4)}, v{vLin}, {srd(WS_)}, s{sT1} offen offset:2048 sc1
    buffer_store_dwordx4 {vr(vA,4)}, v{vLin}, {srd(WS_)}, s{sT1} offen offset:3072 sc1
    L_wait0:
    s_waitcnt lgkmcnt(0)
    L_t0:
    """)
    vm = VM(e)
    vm.add("old")
    issue(vm, seq[0])
    stamp(1)
    e(f"""
    v_and_b32 v{vT0}, 1, v{vL}
    v_lshlrev_b32 v{vT0}, 4, v{vT0}
    v_mov_b32 v{vT1}, 0xffff
    v_lshlrev_b32 v{vT0}, v{vT0}, v{vT1}
    v_and_b32 v{vT1}, 6, v{vL}
    v_lshrrev_b32 v{vT1}, 1, v{vT1}
    v_lshlrev_b32 v{vT1}, v{vT1}, 1
    """.replace(f"v_lshlrev_b32 v{vT1}, v{vT1}, 1", f"v_lshlrev_b32_e64 v{vT1}, v{vT1}, 1"))
    for d in range(4):
        e(f"v_bfe_i32 v{vM+d}, v{vT1}, {d}, 1")
    for d in range(4):
        e(f"v_and_b32 v{vM+d}, v{vM+d}, v{vT0}")
    e(f"""
    s_mov_b32 s{sC}, 0x3e0293ee
    s_mov_b32 s{sSpin}, {spin}
    s_mov_b32 s{WO_+2}, 0x480000
    s_mov_b32 s{WO_+3}, 0x20000
    s_mov_b32 s{DBG_+2}, 0x100
    s_mov_b32 s{DBG_+3}, 0x20000
    s_mov_b32 s{OUT_+2}, 2304
    s_mov_b32 s{OUT_+3}, 0x20000
    v_lshrrev_b32 v{vT0}, 3, v{vL}
    v_lshrrev_b32 v{vT1}, 4, v{vL}
    v_xor_b32 v{vT0}, v{vT0}, v{vT1}
    v_bfe_i32 v{vT0}, v{vT0}, 0, 1
    v_bfe_i32 v{vT1}, v{vL}, 5, 1
    v_and_b32 v{vT1}, 0x02020202, v{vT1}
    v_add_u32 v{vT1}, 0x01000100, v{vT1}
    v_mov_b32 v{vT2}, 0x0c0c0c0c
    v_bfi_b32 v{vX}, v{vT0}, v{vT2}, v{vT1}
    s_cmp_ge_u32 s{sW}, 6
    """)
    vm.wait_tag("old")
    issue_q = vm
    e("s_cbranch_scc1 L_noq")
    vq = vm.copy()
    slot_save = dict(slot)
    free_save = list(free)
    issue(vq, seq[1])
    e("s_waitcnt lgkmcnt(0)")
    for i in range(6):
        a = vA + 4 * (i & 1)
        e(f"v_perm_b32 v{vT0}, s{sXd+i}, s{sXd+i}, v{vX}")
        for d in range(4):
            e(f"v_and_b32 v{a+d}, v{vT0}, v{vM+d}")
        c = "0" if i == 0 else vr(vD, 4)
        e(f"v_mfma_f32_16x16x32_bf16 {vr(vD,4)}, {vr(a,4)}, {vr(vH+4*i,4)}, {c}")
    e(f"""
    s_lshl_b32 s{sT0}, s{sW}, 10
    v_add_u32 v{vT1}, s{sT0}, v{vLin}
    ds_write_b128 v{vT1}, {vr(vD,4)}
    s_waitcnt lgkmcnt(0)
    s_branch L_b0
    L_noq:
    """)
    issue(vm, seq[1], alloc=False)
    e(f"""
    s_cmp_eq_u32 s{sW}, 6
    s_cbranch_scc1 L_b0
    """)
    vc = vm.copy()
    e(f"""
    s_mov_b64 exec, 1
    v_mov_b32 v{vT0}, 1
    v_mov_b32 v{vT1}, s{sLid}
    buffer_store_byte v{vT0}, v{vT1}, {srd(DBG_)}, 0 offen sc1
    s_mov_b64 exec, -1
    v_and_b32 v{vT0}, 31, v{vL}
    v_lshlrev_b32 v{vX}, 2, v{vT0}
    s_and_b32 s{sB}, s{sLid}, 0x80
    s_mov_b32 s{sOne}, 0x01010101
    s_and_b32 s{sT0}, s{sLid}, 0xf8
    s_lshl_b32 s{sT0}, s{sT0}, 10
    s_add_u32 s{sT1}, s{sT0}, 0x1000
    s_lshl_b32 s{sP0}, s{sKvh}, 1
    s_lshl_b64 s[{sP0+6}:{sP0+7}], 3, s{sP0}
    s_mov_b64 s[{sP0+2}:{sP0+3}], -1
    v_lshrrev_b32 v{vT0}, 5, v{vL}
    v_and_b32 v{vT1}, 15, v{vL}
    v_lshlrev_b32 v{vT1}, 4, v{vT1}
    v_lshl_or_b32 v{vT1}, v{vT0}, 8, v{vT1}
    v_bfe_u32 v{vT0}, v{vL}, 4, 1
    v_lshl_or_b32 v{vT1}, v{vT0}, 3, v{vT1}
    s_barrier
    """)
    stamp(2)
    for i in range(6):
        e(f"ds_read_b128 {vr(vH+4*i,4)}, v{vLin} offset:{1024*i}")
    e("s_waitcnt lgkmcnt(0)")

    def pk_sum(base, n):
        step = 1
        while step < n:
            for i in range(0, n - step, 2 * step):
                for h in (0, 2):
                    a, b = base + 4 * i + h, base + 4 * (i + step) + h
                    e(f"v_pk_add_f32 {vr(a,2)}, {vr(a,2)}, {vr(b,2)}")
            step *= 2

    pk_sum(vH, 6)
    e(f"buffer_store_dwordx4 {vr(vH,4)}, v{vLin}, {srd(WS_)}, s{sA} offen sc1")
    vc.add("x")
    ctl_new = []
    for t in seq[2:jctl]:
        issue(vc, t)
        ctl_new.append(t)
    e("L_gather:")
    e(f"buffer_load_dword v{vT2}, v{vX}, {srd(DBG_)}, s{sB} offen sc1")
    for i in range(8):
        e(f"buffer_load_dwordx4 {vr(vH+4*i,4)}, v{vLin}, {srd(WS_)}, s{sT0 if i < 4 else sT1} offen offset:{1024*(i&3)} sc1")
    e(f"""
    s_waitcnt vmcnt(8)
    v_cmp_ne_u32 s[{sP0}:{sP0+1}], s{sOne}, v{vT2}
    s_waitcnt vmcnt(0)
    """)
    pk_sum(vH, 8)
    e(f"""
    v_pk_add_f32 {vr(vT2,2)}, {vr(vH,2)}, {vr(vH+2,2)}
    v_cmp_u_f32 vcc, v{vT2}, v{vT2+1}
    s_or_b64 s[{sP0+4}:{sP0+5}], vcc, s[{sP0+2}:{sP0+3}]
    s_cbranch_scc0 L_gotq
    s_and_b64 s[{sP0+2}:{sP0+3}], s[{sP0}:{sP0+1}], s[{sP0+6}:{sP0+7}]
    s_addk_i32 s{sSpin}, -1
    s_cmpk_gt_i32 s{sSpin}, 0
    s_cbranch_scc1 L_gather
    L_gotq:
    v_cvt_pk_bf16_f32 v{vT2}, v{vH}, v{vH+1}
    v_cvt_pk_bf16_f32 v{vT2+1}, v{vH+2}, v{vH+3}
    ds_write_b64 v{vT1}, {vr(vT2,2)} offset:{LDS_Q}
    L_flags:
    s_cmp_eq_u64 s[{sP0}:{sP0+1}], 0
    s_cbranch_scc1 L_flags_ok
    buffer_load_dword v{vT0}, v{vX}, {srd(DBG_)}, s{sB} offen sc1
    s_waitcnt vmcnt(0)
    v_cmp_ne_u32 s[{sP0}:{sP0+1}], s{sOne}, v{vT0}
    s_addk_i32 s{sSpin}, -1
    s_cmpk_gt_i32 s{sSpin}, 0
    s_cbranch_scc1 L_flags
    L_flags_ok:
    """)
    if prio:
        e("s_setprio 0")
    stamp(3)
    e("s_waitcnt lgkmcnt(0)")
    e(f"s_branch L_pre{jctl}")
    ctl_slot = dict(slot)
    e("L_b0:")
    e("s_barrier")
    stamp(2)
    for k in range(2, npre):
        if k == jctl:
            e(f"L_pre{jctl}:")
        t = seq[k]
        issue(vm, t, upre, alloc=(t not in ctl_new))
    if jctl == npre:
        e(f"L_pre{jctl}:")
    e(f"""
    v_bfe_u32 v{vT0}, v{vL}, 3, 1
    v_and_b32 v{vT1}, 48, v{vL}
    v_lshl_or_b32 v{vT0}, v{vT0}, 8, v{vT1}
    s_mov_b32 vcc_lo, 0x00ff00ff
    s_mov_b32 vcc_hi, 0xff00ff00
    s_barrier
    """)
    for i in range(4):
        e(f"ds_read_b128 {vr(vQ+4*i,4)}, v{vT0} offset:{LDS_Q+64*i}")
    stamp(4)
    vRed, vMLw, vWo, vPa, vPb, vPc = vH, vH + 1, vH + 2, vH + 3, vH + 4, vH + 5
    e(f"""
    s_lshl_b32 s{sT0}, s{sW}, 10
    v_add_u32 v{vRed}, s{sT0}, v{vLin}
    s_lshl_b32 s{sT0}, s{sW}, 3
    v_lshrrev_b32 v{vMLw}, 2, v{vT0}
    v_and_b32 v{vMLw}, 64, v{vMLw}
    v_add_u32 v{vMLw}, s{sT0}, v{vMLw}
    s_movk_i32 s{sT1}, 0x2400
    v_lshrrev_b32 v{vT1}, 4, v{vL}
    v_and_b32 v{vWo}, 0xff, v{vLin}
    v_mad_u32_u24 v{vWo}, v{vT1}, s{sT1}, v{vWo}
    s_lshl_b32 s{sT0}, s{sW}, 4
    v_and_b32 v{vT1}, 15, v{vL}
    v_add_u32 v{vT1}, s{sT0}, v{vT1}
    v_subrev_u32 v{vT1}, 72, v{vT1}
    v_ashrrev_i32 v{vT1}, 31, v{vT1}
    v_not_b32 v{vT1}, v{vT1}
    v_and_b32 v{vT1}, 0x40000000, v{vT1}
    v_or_b32 v{vWo}, v{vWo}, v{vT1}
    s_mul_i32 s{sWo}, s{sIdx}, 0x9000
    s_lshl_b32 s{sT0}, s{sW}, 8
    s_add_u32 s{sWo}, s{sWo}, s{sT0}
    s_add_u32 s{sWo2}, s{sWo}, 4608
    s_waitcnt lgkmcnt(0)
    """)

    sreg = {}
    sfree = [0, 1, 2, 3]
    wo_slots = []

    def softmax(c):
        s0 = vS + 4 * sreg[2 * c]
        s1 = vS + 4 * sreg[2 * c + 1]
        nn, no = (vN0, vN1) if c % 2 == 0 else (vN1, vN0)
        if c == 0:
            e(f"v_max3_f32 v{vT0}, v{s0}, v{s0+1}, v{s0+2}")
            e(f"v_max3_f32 v{vT0}, v{vT0}, v{s0+3}, v{s1}")
            e(f"v_max3_f32 v{vT0}, v{vT0}, v{s1+1}, v{s1+2}")
            e(f"v_max_f32 v{vMx}, v{vT0}, v{s1+3}")
        else:
            e(f"v_max3_f32 v{vT0}, v{s0}, v{s0+1}, v{s0+2}")
            e(f"v_max3_f32 v{vMx}, v{vMx}, v{s0+3}, v{vT0}")
            e(f"v_max3_f32 v{vT0}, v{s1}, v{s1+1}, v{s1+2}")
            e(f"v_max3_f32 v{vMx}, v{vMx}, v{s1+3}, v{vT0}")
        allreduce(vMx, vT0, "v_max_f32")
        e(f"v_mul_f32 v{nn}, 0xbe0293ee, v{vMx}")
        for b in (s0, s1):
            for r in range(4):
                e(f"v_fma_f32 v{b+r}, v{b+r}, s{sC}, v{nn}")
        if c > 0:
            e(f"v_sub_f32 v{vAl}, v{nn}, v{no}")
            e(f"v_exp_f32 v{vAl}, v{vAl}")
        for b in (s0, s1):
            for r in range(4):
                e(f"v_exp_f32 v{b+r}, v{b+r}")
        if c > 0:
            e(f"v_cndmask_b32_dpp v{vAD}, v{vAl}, v{vAl}, vcc row_ror:8 row_mask:0xf bank_mask:0xf")
        e(f"v_pk_add_f32 {vr(vA,2)}, {vr(s0,2)}, {vr(s0+2,2)}")
        e(f"v_pk_add_f32 {vr(vT2,2)}, {vr(s1,2)}, {vr(s1+2,2)}")
        if c == 0:
            e(f"v_pk_add_f32 {vr(vLs,2)}, {vr(vA,2)}, {vr(vT2,2)}")
        else:
            e(f"v_pk_add_f32 {vr(vT2,2)}, {vr(vA,2)}, {vr(vT2,2)}")
            e(f"v_fma_f32 v{vLs}, v{vLs}, v{vAl}, v{vT2}")
            e(f"v_fma_f32 v{vLs+1}, v{vLs+1}, v{vAl}, v{vT2+1}")
        for b in (s0, s1):
            for r in range(4):
                e(f"v_cvt_pk_bf16_f32 v{b+r}, v{b+r}, v{b+r}")
        if c == 3:
            e(f"v_add_f32 v{vLt}, v{vLs}, v{vLs+1}")
            allreduce(vLt, vT0, "v_add_f32")
            e(f"ds_write_b64 v{vMLw}, {vr(vN1,2)} offset:{LDS_ML}")

    def diag_mfma(dst, pregs, bregs, zero_first):
        n = len(pregs)

        def ands(i):
            for d in range(4):
                e(f"v_and_b32 v{vA+4*(i&1)+d}, v{pregs[i]}, v{vM+d}")
        ands(0)
        for i in range(n):
            if i + 1 < n:
                ands(i + 1)
            c = "0" if (zero_first and i == 0) else vr(dst, 4)
            e(f"v_mfma_f32_16x16x32_bf16 {vr(dst,4)}, {vr(vA+4*(i&1),4)}, {vr(bregs[i],4)}, {c}")

    def process(t):
        n = int(t[1])
        base = RING + 16 * slot[t]
        if t[0] == "K":
            sreg[n] = sfree.pop(0)
            s = vS + 4 * sreg[n]
            vm.wait_tag(t)
            for i in range(4):
                c = "0" if i == 0 else vr(s, 4)
                e(f"v_mfma_f32_16x16x32_bf16 {vr(s,4)}, {vr(base+4*i,4)}, {vr(vQ+4*i,4)}, {c}")
            if n & 1:
                softmax(n >> 1)
        else:
            s = vS + 4 * sreg[n]
            if n > 0 and n % 2 == 0:
                for r in range(4):
                    e(f"v_mul_f32 v{vD+r}, v{vAD}, v{vD+r}")
            vm.wait_tag(t)
            diag_mfma(vD, [s + r for r in range(4)], [base + 4 * r for r in range(4)], n == 0)
            sfree.append(sreg[n])
        free.append(slot[t])

    def issue_wo():
        wo_slots.extend([free.pop(0), free.pop(0)])
        for r in range(8):
            reg = RING + 16 * wo_slots[r >> 2] + 4 * (r & 3)
            e(f"buffer_load_dwordx4 {vr(reg,4)}, v{vWo}, {srd(WO_)}, s{sWo if r < 4 else sWo2} offen offset:{1152*(r&3)}{NT}")
            vm.add("wo")

    ip, ii = 0, npre
    while ip < 16:
        k = ratio if (ii - ip) > la else 1
        if ii >= 16:
            k = 1
        for _ in range(k):
            if ip == 15:
                if wo_at == "last":
                    pass
                stamp(5)
            process(seq[ip])
            if ip == 14 and wo_at == "t14":
                issue_wo()
            ip += 1
            if ip == 16:
                break
        if ii < 16:
            issue(vm, seq[ii], umain)
            ii += 1
            if ii == 16 and wo_at == "issue":
                issue_wo()
    if wo_at == "last":
        issue_wo()
    e(f"""
    ds_write_b128 v{vRed}, {vr(vD,4)}
    s_cmp_eq_u32 s{sW}, 7
    s_cbranch_scc1 L_t2
    s_cmp_gt_u32 s{sW}, 4
    s_cbranch_scc1 L_t4
    """)
    X = vH + 8
    F0, F1 = vH + 16, vH + 17
    D0, D1, E = vS, vS + 4, vD
    PB = vQ
    e(f"""
    v_and_b32 v{vPa}, 15, v{vL}
    v_lshrrev_b32 v{vT0}, 4, v{vL}
    v_lshlrev_b32 v{vPb}, 3, v{vT0}
    v_lshlrev_b32 v{vPc}, 12, v{vPa}
    v_lshl_or_b32 v{vPc}, v{vT0}, 4, v{vPc}
    v_lshlrev_b32 v{vPa}, 3, v{vPa}
    v_lshl_or_b32 v{vPa}, v{vT0}, 7, v{vPa}
    s_lshl_b32 s{sA}, s{sLid}, 11
    s_add_u32 s{sA}, s{sA}, {WS_H1}
    s_and_b32 s{sB}, s{sLid}, 0x80
    s_lshl_b32 s{sB}, s{sB}, 12
    s_lshl_b32 s{sT0}, s{sW}, 16
    s_add_u32 s{sB}, s{sB}, s{sT0}
    s_lshl_b32 s{sT0}, s{sIdx}, 5
    s_add_u32 s{sB}, s{sB}, s{sT0}
    s_add_u32 s{sB}, s{sB}, {WS_I2}
    s_cmp_eq_u32 s{sW}, 4
    s_cselect_b32 s{sP0}, 0x00ff00ff, -1
    s_mov_b32 s{sP0+1}, 0
    s_waitcnt lgkmcnt(0)
    s_barrier
    """)
    stamp(6)
    e(f"""
    L_h1:
    buffer_load_dwordx2 {vr(X+4,2)}, v{vPb}, {srd(WS_)}, s{sA} offen offset:1024 sc1
    buffer_load_dwordx2 {vr(X+6,2)}, v{vPb}, {srd(WS_)}, s{sA} offen offset:1056 sc1
    buffer_load_dwordx2 {vr(X,2)}, v{vPa}, {srd(WS_)}, s{sA} offen sc1
    buffer_load_dwordx2 {vr(X+2,2)}, v{vPa}, {srd(WS_)}, s{sA} offen offset:512 sc1
    s_waitcnt vmcnt(2)
    v_min_f32 v{vMx}, v{X+4}, v{X+6}
    """)
    allreduce(vMx, vT0, "v_min_f32")
    e(f"""
    v_sub_f32 v{F0}, v{vMx}, v{X+4}
    v_sub_f32 v{F1}, v{vMx}, v{X+6}
    v_exp_f32 v{F0}, v{F0}
    v_exp_f32 v{F1}, v{F1}
    v_mul_f32 v{vMx}, v{F0}, v{X+5}
    v_fmac_f32 v{vMx}, v{F1}, v{X+7}
    """)
    allreduce(vMx, vT0, "v_add_f32")
    e(f"""
    v_rcp_f32 v{vMx}, v{vMx}
    v_mul_f32 v{F0}, v{F0}, v{vMx}
    v_mul_f32 v{F1}, v{F1}, v{vMx}
    s_waitcnt vmcnt(0)
    v_mfma_f32_16x16x4_f32 {vr(D0,4)}, v{X}, v{F0}, 0
    v_mfma_f32_16x16x4_f32 {vr(D1,4)}, v{X+1}, v{F0}, 0
    v_mfma_f32_16x16x4_f32 {vr(D0,4)}, v{X+2}, v{F1}, {vr(D0,4)}
    v_mfma_f32_16x16x4_f32 {vr(D1,4)}, v{X+3}, v{F1}, {vr(D1,4)}
    """)
    for r in range(4):
        e(f"v_cvt_pk_bf16_f32 v{PB+2*r}, v{D0+r}, v{D0+r}")
    for r in range(4):
        e(f"v_cvt_pk_bf16_f32 v{PB+2*r+1}, v{D1+r}, v{D1+r}")
    diag_mfma(E, [PB + r for r in range(8)], [RING + 16 * wo_slots[r >> 2] + 4 * (r & 3) for r in range(8)], True)
    e(f"""
    v_cmp_u_f32 vcc, v{E}, v{E}
    s_cbranch_vccz L_h1_ok
    s_addk_i32 s{sSpin}, -1
    s_cmpk_gt_i32 s{sSpin}, 0
    s_cbranch_scc1 L_h1
    L_h1_ok:
    s_mov_b64 exec, s[{sP0}:{sP0+1}]
    buffer_store_dwordx4 {vr(E,4)}, v{vPc}, {srd(WS_)}, s{sB} offen sc1
    s_branch L_fin
    """)
    fs = [s for s in range(NSLOT) if s not in wo_slots]
    Y = [RING + 16 * fs[w >> 2] + 4 * (w & 3) for w in range(8)]
    Z = RING + 16 * fs[2]
    e(f"""
    L_t2:
    v_lshrrev_b32 v{vT0}, 5, v{vL}
    v_lshlrev_b32 v{vPb}, 6, v{vT0}
    v_bfe_u32 v{vT1}, v{vL}, 2, 2
    v_lshl_or_b32 v{vT1}, v{vT0}, 2, v{vT1}
    v_lshlrev_b32 v{vPc}, 11, v{vT1}
    v_and_b32 v{vT1}, 3, v{vL}
    v_lshl_or_b32 v{vPa}, v{vT1}, 5, v{vPc}
    v_and_b32 v{vT1}, 16, v{vL}
    v_or_b32 v{vPa}, v{vPa}, v{vT1}
    s_and_b32 s{sA}, s{sLid}, 0xf8
    s_lshl_b32 s{sA}, s{sA}, 11
    s_add_u32 s{sA}, s{sA}, {WS_H1}
    s_lshl_b32 s{sT0}, s{sS}, 3
    s_add_u32 s{sB}, s{sA}, s{sT0}
    s_lshl_b32 s{sT0}, s{sS}, 7
    s_add_u32 s{sA}, s{sA}, s{sT0}
    s_waitcnt lgkmcnt(0)
    s_barrier
    """)
    stamp(6)
    for i in range(4):
        e(f"ds_read_b128 {vr(Z+4*i,4)}, v{vPb} offset:{LDS_ML+16*i}")
    for w in range(8):
        e(f"ds_read_b128 {vr(Y[w],4)}, v{vLin} offset:{1024*w}")
    N, Lr = vN1, vLt
    e(f"""
    s_waitcnt lgkmcnt(8)
    v_min3_f32 v{N}, v{Z}, v{Z+2}, v{Z+4}
    v_min3_f32 v{vT0}, v{Z+6}, v{Z+8}, v{Z+10}
    v_min3_f32 v{N}, v{N}, v{Z+12}, v{Z+14}
    v_min_f32 v{N}, v{N}, v{vT0}
    """)
    for w in range(8):
        e(f"v_sub_f32 v{Z+2*w}, v{N}, v{Z+2*w}")
    for w in range(8):
        e(f"v_exp_f32 v{Z+2*w}, v{Z+2*w}")
    e(f"v_mul_f32 v{Lr}, v{Z}, v{Z+1}")
    for w in range(1, 8):
        e(f"v_fmac_f32 v{Lr}, v{Z+2*w}, v{Z+2*w+1}")
    e("s_waitcnt lgkmcnt(0)")
    for h in (0, 2):
        e(f"v_pk_mul_f32 {vr(vD+h,2)}, {vr(Y[0]+h,2)}, {vr(Z,2)} op_sel_hi:[1,0]")
    for w in range(1, 8):
        for h in (0, 2):
            e(f"v_pk_fma_f32 {vr(vD+h,2)}, {vr(Y[w]+h,2)}, {vr(Z+2*w,2)}, {vr(vD+h,2)} op_sel_hi:[1,0,1]")
    e(f"""
    buffer_store_dwordx4 {vr(vD,4)}, v{vPa}, {srd(WS_)}, s{sA} offen sc1
    s_mov_b32 exec_lo, 0x1111
    s_mov_b32 exec_hi, 0x1111
    buffer_store_dwordx2 {vr(N,2)}, v{vPc}, {srd(WS_)}, s{sB} offen offset:1024 sc1
    s_branch L_fin
    """)
    R = RING + 16 * fs[0]
    e(f"""
    L_t4:
    s_lshl_b32 s{sA}, s{sLid}, 12
    s_add_u32 s{sA}, s{sA}, {WS_I2}
    s_lshr_b32 s{sB}, s{sLid}, 7
    s_mul_i32 s{sB}, s{sB}, 1152
    s_lshl_b32 s{sT0}, s{sIdx}, 4
    s_add_u32 s{sB}, s{sB}, s{sT0}
    v_and_b32 v{vT0}, 1, v{vL}
    v_lshrrev_b32 v{vT1}, 4, v{vL}
    v_lshlrev_b32 v{vT1}, 1, v{vT1}
    v_lshl_or_b32 v{vPa}, v{vT0}, 3, v{vT1}
    s_waitcnt lgkmcnt(0)
    s_barrier
    """)
    stamp(6)
    e(f"""
    s_cmp_lg_u32 s{sW}, 5
    s_cbranch_scc1 L_fin
    s_cmp_ge_u32 s{sIdx}, 72
    s_cbranch_scc1 L_fin
    L_h2:
    """)
    for i in range(4):
        e(f"buffer_load_dwordx4 {vr(R+4*i,4)}, v{vLin}, {srd(WS_)}, s{sA} offen offset:{1024*i} sc1")
    e("s_waitcnt vmcnt(0)")
    pk_sum(R, 4)
    e(f"""
    v_permlane32_swap_b32 v{R}, v{R+2}
    v_permlane32_swap_b32 v{R+1}, v{R+3}
    v_add_f32 v{R}, v{R}, v{R+2}
    v_add_f32 v{R+1}, v{R+1}, v{R+3}
    v_permlane16_swap_b32 v{R}, v{R+1}
    v_add_f32 v{R}, v{R}, v{R+1}
    v_add_f32_dpp v{R}, v{R}, v{R} row_ror:2 row_mask:0xf bank_mask:0xf
    v_add_f32_dpp v{R}, v{R}, v{R} row_ror:4 row_mask:0xf bank_mask:0xf
    v_add_f32_dpp v{R}, v{R}, v{R} row_ror:8 row_mask:0xf bank_mask:0xf
    v_cmp_u_f32 vcc, v{R}, v{R}
    s_cbranch_vccz L_h2_ok
    s_addk_i32 s{sSpin}, -1
    s_cmpk_gt_i32 s{sSpin}, 0
    s_cbranch_scc1 L_h2
    L_h2_ok:
    v_cvt_pk_bf16_f32 v{R}, v{R}, v{R}
    s_mov_b32 exec_lo, 0x30003
    s_mov_b32 exec_hi, 0x30003
    buffer_store_short v{R}, v{vPa}, {srd(OUT_)}, s{sB} offen
    L_fin:
    """)
    if prof:
        e("s_waitcnt vmcnt(0)")
        stamp(7)
        e(f"""
        s_waitcnt lgkmcnt(0)
        s_mov_b64 exec, 1
        s_lshl_b32 s{sT0}, s{sLid}, 3
        s_add_u32 s{sT0}, s{sT0}, s{sW}
        s_lshl_b32 s{sT0}, s{sT0}, 6
        s_add_u32 s{sT0}, s{sT0}, {WS_PROF}
        v_mov_b32 v0, 0
        """)
        for k in range(8):
            e(f"v_mov_b32 v{8+k}, s{sProf+2*k}")
        e(f"s_getreg_b32 s{sT1}, hwreg(HW_REG_XCC_ID)")
        e(f"v_mov_b32 v16, s{sT1}")
        e(f"v_mov_b32 v17, s{sSpin}")
        e(f"buffer_store_dwordx4 v[8:11], v0, {srd(WS_)}, s{sT0} offen")
        e(f"buffer_store_dwordx4 v[12:15], v0, {srd(WS_)}, s{sT0} offen offset:16")
        e(f"buffer_store_dwordx2 v[16:17], v0, {srd(WS_)}, s{sT0} offen offset:32")
    e("L_end:")
    e("s_endpgm")
    nsg = sProf + 16 if prof else sProf
    e.raw(f""".section .rodata,"a"
.p2align 6
.amdhsa_kernel {KNAME}
  .amdhsa_next_free_vgpr 256
  .amdhsa_next_free_sgpr {nsg}
  .amdhsa_accum_offset 256
  .amdhsa_group_segment_fixed_size 0
  .amdhsa_kernarg_size 104
  .amdhsa_user_sgpr_count 2
  .amdhsa_user_sgpr_kernarg_segment_ptr 1
  .amdhsa_system_sgpr_workgroup_id_x 1
.end_amdhsa_kernel""")
    return e.text()


if __name__ == "__main__":
    kw = {}
    for a in sys.argv[2:]:
        k, v = a.split("=")
        try:
            v = int(v, 0)
        except ValueError:
            pass
        kw[k] = v
    open(sys.argv[1], "w").write(gen(**kw))
```

```python
import sys
from emit import Emitter

KNAME = "concat_heads__gqa_block_cached__gqa_block_cached__decode_kernel"
HEADER = open("header.txt").read()

WS_QP, WS_H1, WS_I2, WS_PROF = 0x0, 0x40000, 0x100000, 0x200000
LDS_Q, LDS_ML, LDS_SIZE = 8192, 8704, 8832

vL, vLin, vK, vX = 0, 1, 2, 3
vM = 4
vQ = 8
vS = 24
vA = 40
vD = 48
vMx, vAl, vAD, vT0 = 52, 53, 54, 55
vLs = 56
vN0, vT1 = 58, 59
vN1, vLt = 60, 61
vT2 = 62
RING = 64
NSLOT = 10
vH = 224
sKa, sKvh, sS, sIdx, sLid, sW, sT0, sT1 = 3, 5, 6, 7, 8, 9, 10, 11
K_, V_, WQ_, WO_, WS_, OUT_, DBG_ = 12, 16, 20, 24, 28, 32, 36
sX = 40
sXd = 44
sC, sStep, sK, sV, sWq, sWo, sWo2, sSpin, sOne = 50, 51, 52, 53, 54, 55, 56, 57, 58
sA, sB = 59, 4
sP0 = 60
sProf = 68


def srd(b):
    return f"s[{b}:{b+3}]"


def vr(b, n):
    return f"v[{b}:{b+n-1}]"


class VM:
    def __init__(self, e):
        self.e = e
        self.ops = []
        self.done = 0

    def add(self, tag):
        self.ops.append(tag)

    def wait_n(self, n):
        n = max(n, 0)
        if len(self.ops) - self.done > n:
            assert n <= 63
            self.e(f"s_waitcnt vmcnt({n})")
            self.done = len(self.ops) - n

    def wait_tag(self, tag):
        last = max(i for i, t in enumerate(self.ops) if t == tag)
        self.wait_n(len(self.ops) - 1 - last)

    def copy(self):
        v = VM(self.e)
        v.ops = list(self.ops)
        v.done = self.done
        return v


def gen(npre=8, upre=4, umain=8, la=2, ratio=2, jctl=5, nt="nt", lead=1, wo_at="issue", prof=False,
        spin=1 << 16, fine=False, prio=False, pad=0):
    e = Emitter()
    NT = (" " + nt) if nt else ""
    if lead == 1:
        seq = ["K0", "K1"] + [x for n in range(6) for x in (f"V{n}", f"K{n+2}")] + ["V6", "V7"]
    elif lead == 2:
        seq = ["K0", "K1", "K2"] + [x for n in range(5) for x in (f"V{n}", f"K{n+3}")] + ["V5", "V6", "V7"]
    assert len(seq) == 16 and len(set(seq)) == 16
    free = list(range(NSLOT))
    slot = {}
    nstamp = [0]

    def stamp(k):
        if prof:
            e(f"s_memrealtime s[{sProf+2*k}:{sProf+2*k+1}]")

    first = {"K": True, "V": True}

    def issue_load(t, i):
        r = RING + 16 * slot[t] + 4 * i
        if t[0] == "K":
            e(f"buffer_load_dwordx4 {vr(r,4)}, v{vK}, {srd(K_)}, s{sK} offen offset:{64*i}{NT}")
        else:
            e(f"buffer_load_dwordx4 {vr(r,4)}, v{vLin}, {srd(V_)}, s{sV} offen offset:{1024*i}{NT}")

    def issue(vm, t, u=None, alloc=True):
        if alloc:
            slot[t] = free.pop(0)
        if u is not None and not fine:
            vm.wait_n(u - 4)
        for i in range(4):
            if u is not None and fine:
                vm.wait_n(u - 1)
            issue_load(t, i)
            vm.add(t)
        if t[1] != "7":
            s = sK if t[0] == "K" else sV
            e(f"s_add_u32 s{s}, s{s}, s{sStep}")

    def allreduce(v, tmp, op):
        e(f"v_mov_b32 v{tmp}, v{v}")
        e(f"v_permlane16_swap_b32 v{v}, v{tmp}")
        e(f"{op} v{v}, v{v}, v{tmp}")
        e(f"v_mov_b32 v{tmp}, v{v}")
        e(f"v_permlane32_swap_b32 v{v}, v{tmp}")
        e(f"{op} v{v}, v{v}, v{tmp}")

    e.raw(HEADER.rstrip())
    e.raw(f"; @launch grid=(256,1,1) block=(512,1,1) lds={LDS_SIZE}")
    e.raw('.amdgcn_target "amdgcn-amd-amdhsa--gfx950"')
    e.raw(".text")
    e.raw(f".globl {KNAME}")
    e.raw(".p2align 8")
    e.raw(f".type {KNAME},@function")
    e.raw(f"{KNAME}:")
    stamp(0)
    if pad:
        e(f"s_memrealtime s[{sProf}:{sProf+1}]")
    e(f"""
    s_lshr_b32 s{sT0}, s2, 8
    s_cbranch_scc1 L_end
    s_bitcmp1_b32 s2, 2
    s_cselect_b32 s{sKa}, 40, 0
    s_load_dwordx2 s[{WQ_}:{WQ_+1}], s[0:1], s{sKa} offset:24
    s_load_dwordx2 s[{sX}:{sX+1}], s[0:1], s{sKa} offset:0
    s_load_dwordx2 s[{K_}:{K_+1}], s[0:1], s{sKa} offset:8
    s_load_dwordx2 s[{V_}:{V_+1}], s[0:1], s{sKa} offset:16
    s_load_dwordx2 s[{WS_}:{WS_+1}], s[0:1], 96
    s_load_dwordx2 s[{DBG_}:{DBG_+1}], s[0:1], 88
    s_load_dwordx2 s[{WO_}:{WO_+1}], s[0:1], s{sKa} offset:32
    s_load_dwordx2 s[{OUT_}:{OUT_+1}], s[0:1], 80
    v_lshrrev_b32 v{vLin}, 6, v0
    v_and_b32 v{vL}, 63, v0
    v_readfirstlane_b32 s{sW}, v{vLin}
    s_and_b32 s{sT0}, s2, 7
    s_lshl_b32 s{sT0}, s{sT0}, 5
    s_lshr_b32 s{sLid}, s2, 3
    s_or_b32 s{sLid}, s{sLid}, s{sT0}
    s_and_b32 s{sIdx}, s{sLid}, 0x7f
    s_and_b32 s{sS}, s{sLid}, 7
    s_lshr_b32 s{sKvh}, s{sIdx}, 3
    s_mov_b32 s{WQ_+2}, 0x480000
    s_mov_b32 s{WQ_+3}, 0x20000
    s_mov_b32 s{K_+2}, 0x2000000
    s_mov_b32 s{K_+3}, 0x20000
    s_mov_b32 s{V_+2}, 0x2000000
    s_mov_b32 s{V_+3}, 0x20000
    s_mov_b32 s{WS_+2}, 0x400000
    s_mov_b32 s{WS_+3}, 0x20000
    s_mov_b32 s{sStep}, 0x8000
    v_lshlrev_b32 v{vLin}, 4, v{vL}
    v_and_b32 v{vT0}, 3, v{vL}
    v_bfe_u32 v{vT1}, v{vL}, 2, 2
    v_and_b32 v{vK}, 48, v{vL}
    v_lshl_or_b32 v{vK}, v{vT0}, 10, v{vK}
    v_lshl_or_b32 v{vK}, v{vT1}, 8, v{vK}
    s_lshl_b32 s{sK}, s{sIdx}, 6
    s_add_u32 s{sK}, s{sK}, s{sW}
    s_lshl_b32 s{sK}, s{sK}, 12
    s_mov_b32 s{sV}, s{sK}
    s_cmp_gt_u32 s{sW}, 6
    s_cbranch_scc1 L_clear
    s_cmp_eq_u32 s{sW}, 6
    v_and_b32 v{vT0}, 0x1ff, v{vLin}
    v_lshrrev_b32 v{vT1}, 5, v{vL}
    v_lshl_or_b32 v{vX}, v{vT1}, 13, v{vT0}
    s_cbranch_scc1 L_wait0
    s_mul_i32 s{sT0}, s{sS}, 6
    s_add_u32 s{sT0}, s{sT0}, s{sW}
    s_mul_i32 s{sWq}, s{sT0}, 0x18000
    s_lshl_b32 s{sT1}, s{sKvh}, 9
    s_add_u32 s{sWq}, s{sWq}, s{sT1}
    s_mul_i32 s{sT0}, s{sT0}, 24
    s_waitcnt lgkmcnt(0)
    s_load_dwordx4 s[{sXd}:{sXd+3}], s[{sX}:{sX+1}], s{sT0}
    s_load_dwordx2 s[{sXd+4}:{sXd+5}], s[{sX}:{sX+1}], s{sT0} offset:16
    """)
    for i in range(6):
        e(f"buffer_load_dwordx4 {vr(vH+4*i,4)}, v{vX}, {srd(WQ_)}, s{sWq} offen{NT}")
        if i < 5:
            e(f"s_addk_i32 s{sWq}, 0x4000")
    e("s_branch L_t0")
    e("L_clear:")
    if prio:
        e("s_setprio 3")
    e(f"""
    v_mov_b32 v{vA}, -1
    v_mov_b32 v{vA+1}, -1
    v_mov_b32 v{vA+2}, -1
    v_mov_b32 v{vA+3}, -1
    s_lshl_b32 s{sA}, s{sLid}, 10
    s_lshl_b32 s{sT0}, s{sLid}, 11
    s_add_u32 s{sT0}, s{sT0}, {WS_H1}
    s_lshl_b32 s{sT1}, s{sLid}, 12
    s_add_u32 s{sT1}, s{sT1}, {WS_I2}
    s_cmp_ge_u32 s{sIdx}, 72
    s_waitcnt lgkmcnt(0)
    buffer_store_dwordx4 {vr(vA,4)}, v{vLin}, {srd(WS_)}, s{sA} offen sc1
    buffer_store_dwordx4 {vr(vA,4)}, v{vLin}, {srd(WS_)}, s{sT0} offen sc1
    buffer_store_dwordx4 {vr(vA,4)}, v{vLin}, {srd(WS_)}, s{sT0} offen offset:1024 sc1
    s_cbranch_scc1 L_t0
    buffer_store_dwordx4 {vr(vA,4)}, v{vLin}, {srd(WS_)}, s{sT1} offen sc1
    buffer_store_dwordx4 {vr(vA,4)}, v{vLin}, {srd(WS_)}, s{sT1} offen offset:1024 sc1
    buffer_store_dwordx4 {vr(vA,4)}, v{vLin}, {srd(WS_)}, s{sT1} offen offset:2048 sc1
    buffer_store_dwordx4 {vr(vA,4)}, v{vLin}, {srd(WS_)}, s{sT1} offen offset:3072 sc1
    L_wait0:
    s_waitcnt lgkmcnt(0)
    L_t0:
    """)
    vm = VM(e)
    vm.add("old")
    issue(vm, seq[0])
    stamp(1)
    e(f"""
    v_and_b32 v{vT0}, 1, v{vL}
    v_lshlrev_b32 v{vT0}, 4, v{vT0}
    v_mov_b32 v{vT1}, 0xffff
    v_lshlrev_b32 v{vT0}, v{vT0}, v{vT1}
    v_and_b32 v{vT1}, 6, v{vL}
    v_lshrrev_b32 v{vT1}, 1, v{vT1}
    v_lshlrev_b32 v{vT1}, v{vT1}, 1
    """.replace(f"v_lshlrev_b32 v{vT1}, v{vT1}, 1", f"v_lshlrev_b32_e64 v{vT1}, v{vT1}, 1"))
    for d in range(4):
        e(f"v_bfe_i32 v{vM+d}, v{vT1}, {d}, 1")
    for d in range(4):
        e(f"v_and_b32 v{vM+d}, v{vM+d}, v{vT0}")
    e(f"""
    s_mov_b32 s{sC}, 0x3e0293ee
    s_mov_b32 s{sSpin}, {spin}
    s_mov_b32 s{WO_+2}, 0x480000
    s_mov_b32 s{WO_+3}, 0x20000
    s_mov_b32 s{DBG_+2}, 0x100
    s_mov_b32 s{DBG_+3}, 0x20000
    s_mov_b32 s{OUT_+2}, 2304
    s_mov_b32 s{OUT_+3}, 0x20000
    v_lshrrev_b32 v{vT0}, 3, v{vL}
    v_lshrrev_b32 v{vT1}, 4, v{vL}
    v_xor_b32 v{vT0}, v{vT0}, v{vT1}
    v_bfe_i32 v{vT0}, v{vT0}, 0, 1
    v_bfe_i32 v{vT1}, v{vL}, 5, 1
    v_and_b32 v{vT1}, 0x02020202, v{vT1}
    v_add_u32 v{vT1}, 0x01000100, v{vT1}
    v_mov_b32 v{vT2}, 0x0c0c0c0c
    v_bfi_b32 v{vX}, v{vT0}, v{vT2}, v{vT1}
    s_cmp_ge_u32 s{sW}, 6
    """)
    vm.wait_tag("old")
    issue_q = vm
    e("s_cbranch_scc1 L_noq")
    vq = vm.copy()
    slot_save = dict(slot)
    free_save = list(free)
    issue(vq, seq[1])
    e("s_waitcnt lgkmcnt(0)")
    for i in range(6):
        a = vA + 4 * (i & 1)
        e(f"v_perm_b32 v{vT0}, s{sXd+i}, s{sXd+i}, v{vX}")
        for d in range(4):
            e(f"v_and_b32 v{a+d}, v{vT0}, v{vM+d}")
        c = "0" if i == 0 else vr(vD, 4)
        e(f"v_mfma_f32_16x16x32_bf16 {vr(vD,4)}, {vr(a,4)}, {vr(vH+4*i,4)}, {c}")
    e(f"""
    s_lshl_b32 s{sT0}, s{sW}, 10
    v_add_u32 v{vT1}, s{sT0}, v{vLin}
    ds_write_b128 v{vT1}, {vr(vD,4)}
    s_waitcnt lgkmcnt(0)
    s_branch L_b0
    L_noq:
    """)
    issue(vm, seq[1], alloc=False)
    e(f"""
    s_cmp_eq_u32 s{sW}, 6
    s_cbranch_scc1 L_b0
    """)
    vc = vm.copy()
    e(f"""
    s_mov_b64 exec, 1
    v_mov_b32 v{vT0}, 1
    v_mov_b32 v{vT1}, s{sLid}
    buffer_store_byte v{vT0}, v{vT1}, {srd(DBG_)}, 0 offen sc1
    s_mov_b64 exec, -1
    v_and_b32 v{vT0}, 31, v{vL}
    v_lshlrev_b32 v{vX}, 2, v{vT0}
    s_and_b32 s{sB}, s{sLid}, 0x80
    s_mov_b32 s{sOne}, 0x01010101
    s_and_b32 s{sT0}, s{sLid}, 0xf8
    s_lshl_b32 s{sT0}, s{sT0}, 10
    s_add_u32 s{sT1}, s{sT0}, 0x1000
    s_lshl_b32 s{sP0}, s{sKvh}, 1
    s_lshl_b64 s[{sP0+6}:{sP0+7}], 3, s{sP0}
    s_mov_b64 s[{sP0+2}:{sP0+3}], -1
    v_lshrrev_b32 v{vT0}, 5, v{vL}
    v_and_b32 v{vT1}, 15, v{vL}
    v_lshlrev_b32 v{vT1}, 4, v{vT1}
    v_lshl_or_b32 v{vT1}, v{vT0}, 8, v{vT1}
    v_bfe_u32 v{vT0}, v{vL}, 4, 1
    v_lshl_or_b32 v{vT1}, v{vT0}, 3, v{vT1}
    s_barrier
    """)
    stamp(2)
    for i in range(6):
        e(f"ds_read_b128 {vr(vH+4*i,4)}, v{vLin} offset:{1024*i}")
    e("s_waitcnt lgkmcnt(0)")

    def pk_sum(base, n):
        step = 1
        while step < n:
            for i in range(0, n - step, 2 * step):
                for h in (0, 2):
                    a, b = base + 4 * i + h, base + 4 * (i + step) + h
                    e(f"v_pk_add_f32 {vr(a,2)}, {vr(a,2)}, {vr(b,2)}")
            step *= 2

    pk_sum(vH, 6)
    e(f"buffer_store_dwordx4 {vr(vH,4)}, v{vLin}, {srd(WS_)}, s{sA} offen sc1")
    vc.add("x")
    ctl_new = []
    for t in seq[2:jctl]:
        issue(vc, t)
        ctl_new.append(t)
    e("L_gather:")
    e(f"buffer_load_dword v{vT2}, v{vX}, {srd(DBG_)}, s{sB} offen sc1")
    for i in range(8):
        e(f"buffer_load_dwordx4 {vr(vH+4*i,4)}, v{vLin}, {srd(WS_)}, s{sT0 if i < 4 else sT1} offen offset:{1024*(i&3)} sc1")
    e(f"""
    s_waitcnt vmcnt(8)
    v_cmp_ne_u32 s[{sP0}:{sP0+1}], s{sOne}, v{vT2}
    s_waitcnt vmcnt(0)
    """)
    pk_sum(vH, 8)
    e(f"""
    v_pk_add_f32 {vr(vT2,2)}, {vr(vH,2)}, {vr(vH+2,2)}
    v_cmp_u_f32 vcc, v{vT2}, v{vT2+1}
    s_or_b64 s[{sP0+4}:{sP0+5}], vcc, s[{sP0+2}:{sP0+3}]
    s_cbranch_scc0 L_gotq
    s_and_b64 s[{sP0+2}:{sP0+3}], s[{sP0}:{sP0+1}], s[{sP0+6}:{sP0+7}]
    s_addk_i32 s{sSpin}, -1
    s_cmpk_gt_i32 s{sSpin}, 0
    s_cbranch_scc1 L_gather
    L_gotq:
    v_cvt_pk_bf16_f32 v{vT2}, v{vH}, v{vH+1}
    v_cvt_pk_bf16_f32 v{vT2+1}, v{vH+2}, v{vH+3}
    ds_write_b64 v{vT1}, {vr(vT2,2)} offset:{LDS_Q}
    L_flags:
    s_cmp_eq_u64 s[{sP0}:{sP0+1}], 0
    s_cbranch_scc1 L_flags_ok
    buffer_load_dword v{vT0}, v{vX}, {srd(DBG_)}, s{sB} offen sc1
    s_waitcnt vmcnt(0)
    v_cmp_ne_u32 s[{sP0}:{sP0+1}], s{sOne}, v{vT0}
    s_addk_i32 s{sSpin}, -1
    s_cmpk_gt_i32 s{sSpin}, 0
    s_cbranch_scc1 L_flags
    L_flags_ok:
    """)
    if prio:
        e("s_setprio 0")
    stamp(3)
    e("s_waitcnt lgkmcnt(0)")
    e(f"s_branch L_pre{jctl}")
    ctl_slot = dict(slot)
    e("L_b0:")
    e("s_barrier")
    stamp(2)
    for k in range(2, npre):
        if k == jctl:
            e(f"L_pre{jctl}:")
        t = seq[k]
        issue(vm, t, upre, alloc=(t not in ctl_new))
    if jctl == npre:
        e(f"L_pre{jctl}:")
    e(f"""
    v_bfe_u32 v{vT0}, v{vL}, 3, 1
    v_and_b32 v{vT1}, 48, v{vL}
    v_lshl_or_b32 v{vT0}, v{vT0}, 8, v{vT1}
    s_mov_b32 vcc_lo, 0x00ff00ff
    s_mov_b32 vcc_hi, 0xff00ff00
    s_barrier
    """)
    for i in range(4):
        e(f"ds_read_b128 {vr(vQ+4*i,4)}, v{vT0} offset:{LDS_Q+64*i}")
    stamp(4)
    vRed, vMLw, vWo, vPa, vPb, vPc = vH, vH + 1, vH + 2, vH + 3, vH + 4, vH + 5
    e(f"""
    s_lshl_b32 s{sT0}, s{sW}, 10
    v_add_u32 v{vRed}, s{sT0}, v{vLin}
    s_lshl_b32 s{sT0}, s{sW}, 3
    v_lshrrev_b32 v{vMLw}, 2, v{vT0}
    v_and_b32 v{vMLw}, 64, v{vMLw}
    v_add_u32 v{vMLw}, s{sT0}, v{vMLw}
    s_movk_i32 s{sT1}, 0x2400
    v_lshrrev_b32 v{vT1}, 4, v{vL}
    v_and_b32 v{vWo}, 0xff, v{vLin}
    v_mad_u32_u24 v{vWo}, v{vT1}, s{sT1}, v{vWo}
    s_lshl_b32 s{sT0}, s{sW}, 4
    v_and_b32 v{vT1}, 15, v{vL}
    v_add_u32 v{vT1}, s{sT0}, v{vT1}
    v_subrev_u32 v{vT1}, 72, v{vT1}
    v_ashrrev_i32 v{vT1}, 31, v{vT1}
    v_not_b32 v{vT1}, v{vT1}
    v_and_b32 v{vT1}, 0x40000000, v{vT1}
    v_or_b32 v{vWo}, v{vWo}, v{vT1}
    s_mul_i32 s{sWo}, s{sIdx}, 0x9000
    s_lshl_b32 s{sT0}, s{sW}, 8
    s_add_u32 s{sWo}, s{sWo}, s{sT0}
    s_add_u32 s{sWo2}, s{sWo}, 4608
    s_waitcnt lgkmcnt(0)
    """)

    sreg = {}
    sfree = [0, 1, 2, 3]
    wo_slots = []

    def softmax(c):
        s0 = vS + 4 * sreg[2 * c]
        s1 = vS + 4 * sreg[2 * c + 1]
        nn, no = (vN0, vN1) if c % 2 == 0 else (vN1, vN0)
        if c == 0:
            e(f"v_max3_f32 v{vT0}, v{s0}, v{s0+1}, v{s0+2}")
            e(f"v_max3_f32 v{vT0}, v{vT0}, v{s0+3}, v{s1}")
            e(f"v_max3_f32 v{vT0}, v{vT0}, v{s1+1}, v{s1+2}")
            e(f"v_max_f32 v{vMx}, v{vT0}, v{s1+3}")
        else:
            e(f"v_max3_f32 v{vT0}, v{s0}, v{s0+1}, v{s0+2}")
            e(f"v_max3_f32 v{vMx}, v{vMx}, v{s0+3}, v{vT0}")
            e(f"v_max3_f32 v{vT0}, v{s1}, v{s1+1}, v{s1+2}")
            e(f"v_max3_f32 v{vMx}, v{vMx}, v{s1+3}, v{vT0}")
        allreduce(vMx, vT0, "v_max_f32")
        e(f"v_mul_f32 v{nn}, 0xbe0293ee, v{vMx}")
        for b in (s0, s1):
            for r in range(4):
                e(f"v_fma_f32 v{b+r}, v{b+r}, s{sC}, v{nn}")
        if c > 0:
            e(f"v_sub_f32 v{vAl}, v{nn}, v{no}")
            e(f"v_exp_f32 v{vAl}, v{vAl}")
        for b in (s0, s1):
            for r in range(4):
                e(f"v_exp_f32 v{b+r}, v{b+r}")
        if c > 0:
            e(f"v_cndmask_b32_dpp v{vAD}, v{vAl}, v{vAl}, vcc row_ror:8 row_mask:0xf bank_mask:0xf")
        e(f"v_pk_add_f32 {vr(vA,2)}, {vr(s0,2)}, {vr(s0+2,2)}")
        e(f"v_pk_add_f32 {vr(vT2,2)}, {vr(s1,2)}, {vr(s1+2,2)}")
        if c == 0:
            e(f"v_pk_add_f32 {vr(vLs,2)}, {vr(vA,2)}, {vr(vT2,2)}")
        else:
            e(f"v_pk_add_f32 {vr(vT2,2)}, {vr(vA,2)}, {vr(vT2,2)}")
            e(f"v_fma_f32 v{vLs}, v{vLs}, v{vAl}, v{vT2}")
            e(f"v_fma_f32 v{vLs+1}, v{vLs+1}, v{vAl}, v{vT2+1}")
        for b in (s0, s1):
            for r in range(4):
                e(f"v_cvt_pk_bf16_f32 v{b+r}, v{b+r}, v{b+r}")
        if c == 3:
            e(f"v_add_f32 v{vLt}, v{vLs}, v{vLs+1}")
            allreduce(vLt, vT0, "v_add_f32")
            e(f"ds_write_b64 v{vMLw}, {vr(vN1,2)} offset:{LDS_ML}")

    def diag_mfma(dst, pregs, bregs, zero_first):
        n = len(pregs)

        def ands(i):
            for d in range(4):
                e(f"v_and_b32 v{vA+4*(i&1)+d}, v{pregs[i]}, v{vM+d}")
        ands(0)
        for i in range(n):
            if i + 1 < n:
                ands(i + 1)
            c = "0" if (zero_first and i == 0) else vr(dst, 4)
            e(f"v_mfma_f32_16x16x32_bf16 {vr(dst,4)}, {vr(vA+4*(i&1),4)}, {vr(bregs[i],4)}, {c}")

    def process(t):
        n = int(t[1])
        base = RING + 16 * slot[t]
        if t[0] == "K":
            sreg[n] = sfree.pop(0)
            s = vS + 4 * sreg[n]
            vm.wait_tag(t)
            for i in range(4):
                c = "0" if i == 0 else vr(s, 4)
                e(f"v_mfma_f32_16x16x32_bf16 {vr(s,4)}, {vr(base+4*i,4)}, {vr(vQ+4*i,4)}, {c}")
            if n & 1:
                softmax(n >> 1)
        else:
            s = vS + 4 * sreg[n]
            if n > 0 and n % 2 == 0:
                for r in range(4):
                    e(f"v_mul_f32 v{vD+r}, v{vAD}, v{vD+r}")
            vm.wait_tag(t)
            diag_mfma(vD, [s + r for r in range(4)], [base + 4 * r for r in range(4)], n == 0)
            sfree.append(sreg[n])
        free.append(slot[t])

    def issue_wo():
        wo_slots.extend([free.pop(0), free.pop(0)])
        for r in range(8):
            reg = RING + 16 * wo_slots[r >> 2] + 4 * (r & 3)
            e(f"buffer_load_dwordx4 {vr(reg,4)}, v{vWo}, {srd(WO_)}, s{sWo if r < 4 else sWo2} offen offset:{1152*(r&3)}{NT}")
            vm.add("wo")

    ip, ii = 0, npre
    while ip < 16:
        k = ratio if (ii - ip) > la else 1
        if ii >= 16:
            k = 1
        for _ in range(k):
            if ip == 15:
                if wo_at == "last":
                    pass
                stamp(5)
            process(seq[ip])
            if ip == 14 and wo_at == "t14":
                issue_wo()
            ip += 1
            if ip == 16:
                break
        if ii < 16:
            issue(vm, seq[ii], umain)
            ii += 1
            if ii == 16 and wo_at == "issue":
                issue_wo()
    if wo_at == "last":
        issue_wo()
    e(f"""
    ds_write_b128 v{vRed}, {vr(vD,4)}
    s_cmp_eq_u32 s{sW}, 7
    s_cbranch_scc1 L_t2
    s_cmp_gt_u32 s{sW}, 4
    s_cbranch_scc1 L_t4
    """)
    X = vH + 8
    F0, F1 = vH + 16, vH + 17
    D0, D1, E = vS, vS + 4, vD
    PB = vQ
    e(f"""
    v_and_b32 v{vPa}, 15, v{vL}
    v_lshrrev_b32 v{vT0}, 4, v{vL}
    v_lshlrev_b32 v{vPb}, 3, v{vT0}
    v_lshlrev_b32 v{vPc}, 12, v{vPa}
    v_lshl_or_b32 v{vPc}, v{vT0}, 4, v{vPc}
    v_lshlrev_b32 v{vPa}, 3, v{vPa}
    v_lshl_or_b32 v{vPa}, v{vT0}, 7, v{vPa}
    s_lshl_b32 s{sA}, s{sLid}, 11
    s_add_u32 s{sA}, s{sA}, {WS_H1}
    s_and_b32 s{sB}, s{sLid}, 0x80
    s_lshl_b32 s{sB}, s{sB}, 12
    s_lshl_b32 s{sT0}, s{sW}, 16
    s_add_u32 s{sB}, s{sB}, s{sT0}
    s_lshl_b32 s{sT0}, s{sIdx}, 5
    s_add_u32 s{sB}, s{sB}, s{sT0}
    s_add_u32 s{sB}, s{sB}, {WS_I2}
    s_cmp_eq_u32 s{sW}, 4
    s_cselect_b32 s{sP0}, 0x00ff00ff, -1
    s_mov_b32 s{sP0+1}, 0
    s_waitcnt lgkmcnt(0)
    s_barrier
    """)
    stamp(6)
    e(f"""
    L_h1:
    buffer_load_dwordx2 {vr(X+4,2)}, v{vPb}, {srd(WS_)}, s{sA} offen offset:1024 sc1
    buffer_load_dwordx2 {vr(X+6,2)}, v{vPb}, {srd(WS_)}, s{sA} offen offset:1056 sc1
    buffer_load_dwordx2 {vr(X,2)}, v{vPa}, {srd(WS_)}, s{sA} offen sc1
    buffer_load_dwordx2 {vr(X+2,2)}, v{vPa}, {srd(WS_)}, s{sA} offen offset:512 sc1
    s_waitcnt vmcnt(2)
    v_min_f32 v{vMx}, v{X+4}, v{X+6}
    """)
    allreduce(vMx, vT0, "v_min_f32")
    e(f"""
    v_sub_f32 v{F0}, v{vMx}, v{X+4}
    v_sub_f32 v{F1}, v{vMx}, v{X+6}
    v_exp_f32 v{F0}, v{F0}
    v_exp_f32 v{F1}, v{F1}
    v_mul_f32 v{vMx}, v{F0}, v{X+5}
    v_fmac_f32 v{vMx}, v{F1}, v{X+7}
    """)
    allreduce(vMx, vT0, "v_add_f32")
    e(f"""
    v_rcp_f32 v{vMx}, v{vMx}
    v_mul_f32 v{F0}, v{F0}, v{vMx}
    v_mul_f32 v{F1}, v{F1}, v{vMx}
    s_waitcnt vmcnt(0)
    v_mfma_f32_16x16x4_f32 {vr(D0,4)}, v{X}, v{F0}, 0
    v_mfma_f32_16x16x4_f32 {vr(D1,4)}, v{X+1}, v{F0}, 0
    v_mfma_f32_16x16x4_f32 {vr(D0,4)}, v{X+2}, v{F1}, {vr(D0,4)}
    v_mfma_f32_16x16x4_f32 {vr(D1,4)}, v{X+3}, v{F1}, {vr(D1,4)}
    """)
    for r in range(4):
        e(f"v_cvt_pk_bf16_f32 v{PB+2*r}, v{D0+r}, v{D0+r}")
    for r in range(4):
        e(f"v_cvt_pk_bf16_f32 v{PB+2*r+1}, v{D1+r}, v{D1+r}")
    diag_mfma(E, [PB + r for r in range(8)], [RING + 16 * wo_slots[r >> 2] + 4 * (r & 3) for r in range(8)], True)
    e(f"""
    v_cmp_u_f32 vcc, v{E}, v{E}
    s_cbranch_vccz L_h1_ok
    s_addk_i32 s{sSpin}, -1
    s_cmpk_gt_i32 s{sSpin}, 0
    s_cbranch_scc1 L_h1
    L_h1_ok:
    s_mov_b64 exec, s[{sP0}:{sP0+1}]
    buffer_store_dwordx4 {vr(E,4)}, v{vPc}, {srd(WS_)}, s{sB} offen sc1
    s_branch L_fin
    """)
    fs = [s for s in range(NSLOT) if s not in wo_slots]
    Y = [RING + 16 * fs[w >> 2] + 4 * (w & 3) for w in range(8)]
    Z = RING + 16 * fs[2]
    e(f"""
    L_t2:
    v_lshrrev_b32 v{vT0}, 5, v{vL}
    v_lshlrev_b32 v{vPb}, 6, v{vT0}
    v_bfe_u32 v{vT1}, v{vL}, 2, 2
    v_lshl_or_b32 v{vT1}, v{vT0}, 2, v{vT1}
    v_lshlrev_b32 v{vPc}, 11, v{vT1}
    v_and_b32 v{vT1}, 3, v{vL}
    v_lshl_or_b32 v{vPa}, v{vT1}, 5, v{vPc}
    v_and_b32 v{vT1}, 16, v{vL}
    v_or_b32 v{vPa}, v{vPa}, v{vT1}
    s_and_b32 s{sA}, s{sLid}, 0xf8
    s_lshl_b32 s{sA}, s{sA}, 11
    s_add_u32 s{sA}, s{sA}, {WS_H1}
    s_lshl_b32 s{sT0}, s{sS}, 3
    s_add_u32 s{sB}, s{sA}, s{sT0}
    s_lshl_b32 s{sT0}, s{sS}, 7
    s_add_u32 s{sA}, s{sA}, s{sT0}
    s_waitcnt lgkmcnt(0)
    s_barrier
    """)
    stamp(6)
    for i in range(4):
        e(f"ds_read_b128 {vr(Z+4*i,4)}, v{vPb} offset:{LDS_ML+16*i}")
    for w in range(8):
        e(f"ds_read_b128 {vr(Y[w],4)}, v{vLin} offset:{1024*w}")
    N, Lr = vN1, vLt
    e(f"""
    s_waitcnt lgkmcnt(8)
    v_min3_f32 v{N}, v{Z}, v{Z+2}, v{Z+4}
    v_min3_f32 v{vT0}, v{Z+6}, v{Z+8}, v{Z+10}
    v_min3_f32 v{N}, v{N}, v{Z+12}, v{Z+14}
    v_min_f32 v{N}, v{N}, v{vT0}
    """)
    for w in range(8):
        e(f"v_sub_f32 v{Z+2*w}, v{N}, v{Z+2*w}")
    for w in range(8):
        e(f"v_exp_f32 v{Z+2*w}, v{Z+2*w}")
    e(f"v_mul_f32 v{Lr}, v{Z}, v{Z+1}")
    for w in range(1, 8):
        e(f"v_fmac_f32 v{Lr}, v{Z+2*w}, v{Z+2*w+1}")
    e("s_waitcnt lgkmcnt(0)")
    for h in (0, 2):
        e(f"v_pk_mul_f32 {vr(vD+h,2)}, {vr(Y[0]+h,2)}, {vr(Z,2)} op_sel_hi:[1,0]")
    for w in range(1, 8):
        for h in (0, 2):
            e(f"v_pk_fma_f32 {vr(vD+h,2)}, {vr(Y[w]+h,2)}, {vr(Z+2*w,2)}, {vr(vD+h,2)} op_sel_hi:[1,0,1]")
    e(f"""
    buffer_store_dwordx4 {vr(vD,4)}, v{vPa}, {srd(WS_)}, s{sA} offen sc1
    s_mov_b32 exec_lo, 0x1111
    s_mov_b32 exec_hi, 0x1111
    buffer_store_dwordx2 {vr(N,2)}, v{vPc}, {srd(WS_)}, s{sB} offen offset:1024 sc1
    s_branch L_fin
    """)
    R = RING + 16 * fs[0]
    e(f"""
    L_t4:
    s_lshl_b32 s{sA}, s{sLid}, 12
    s_add_u32 s{sA}, s{sA}, {WS_I2}
    s_lshr_b32 s{sB}, s{sLid}, 7
    s_mul_i32 s{sB}, s{sB}, 1152
    s_lshl_b32 s{sT0}, s{sIdx}, 4
    s_add_u32 s{sB}, s{sB}, s{sT0}
    v_and_b32 v{vT0}, 1, v{vL}
    v_lshrrev_b32 v{vT1}, 4, v{vL}
    v_lshlrev_b32 v{vT1}, 1, v{vT1}
    v_lshl_or_b32 v{vPa}, v{vT0}, 3, v{vT1}
    s_waitcnt lgkmcnt(0)
    s_barrier
    """)
    stamp(6)
    e(f"""
    s_cmp_lg_u32 s{sW}, 5
    s_cbranch_scc1 L_fin
    s_cmp_ge_u32 s{sIdx}, 72
    s_cbranch_scc1 L_fin
    L_h2:
    """)
    for i in range(4):
        e(f"buffer_load_dwordx4 {vr(R+4*i,4)}, v{vLin}, {srd(WS_)}, s{sA} offen offset:{1024*i} sc1")
    e("s_waitcnt vmcnt(0)")
    pk_sum(R, 4)
    e(f"""
    v_permlane32_swap_b32 v{R}, v{R+2}
    v_permlane32_swap_b32 v{R+1}, v{R+3}
    v_add_f32 v{R}, v{R}, v{R+2}
    v_add_f32 v{R+1}, v{R+1}, v{R+3}
    v_permlane16_swap_b32 v{R}, v{R+1}
    v_add_f32 v{R}, v{R}, v{R+1}
    v_add_f32_dpp v{R}, v{R}, v{R} row_ror:2 row_mask:0xf bank_mask:0xf
    v_add_f32_dpp v{R}, v{R}, v{R} row_ror:4 row_mask:0xf bank_mask:0xf
    v_add_f32_dpp v{R}, v{R}, v{R} row_ror:8 row_mask:0xf bank_mask:0xf
    v_cmp_u_f32 vcc, v{R}, v{R}
    s_cbranch_vccz L_h2_ok
    s_addk_i32 s{sSpin}, -1
    s_cmpk_gt_i32 s{sSpin}, 0
    s_cbranch_scc1 L_h2
    L_h2_ok:
    v_cvt_pk_bf16_f32 v{R}, v{R}, v{R}
    s_mov_b32 exec_lo, 0x30003
    s_mov_b32 exec_hi, 0x30003
    buffer_store_short v{R}, v{vPa}, {srd(OUT_)}, s{sB} offen
    L_fin:
    """)
    if prof:
        e("s_waitcnt vmcnt(0)")
        stamp(7)
        e(f"""
        s_waitcnt lgkmcnt(0)
        s_mov_b64 exec, 1
        s_lshl_b32 s{sT0}, s{sLid}, 3
        s_add_u32 s{sT0}, s{sT0}, s{sW}
        s_lshl_b32 s{sT0}, s{sT0}, 6
        s_add_u32 s{sT0}, s{sT0}, {WS_PROF}
        v_mov_b32 v0, 0
        """)
        for k in range(8):
            e(f"v_mov_b32 v{8+k}, s{sProf+2*k}")
        e(f"s_getreg_b32 s{sT1}, hwreg(HW_REG_XCC_ID)")
        e(f"v_mov_b32 v16, s{sT1}")
        e(f"v_mov_b32 v17, s{sSpin}")
        e(f"buffer_store_dwordx4 v[8:11], v0, {srd(WS_)}, s{sT0} offen")
        e(f"buffer_store_dwordx4 v[12:15], v0, {srd(WS_)}, s{sT0} offen offset:16")
        e(f"buffer_store_dwordx2 v[16:17], v0, {srd(WS_)}, s{sT0} offen offset:32")
    if pad:
        e(f"""
        s_waitcnt vmcnt(0) lgkmcnt(0)
        L_pad:
        s_memrealtime s[{sProf+2}:{sProf+3}]
        s_waitcnt lgkmcnt(0)
        s_sub_u32 s{sT0}, s{sProf+2}, s{sProf}
        s_cmp_lt_u32 s{sT0}, {pad}
        s_cbranch_scc1 L_pad
        """)
    e("L_end:")
    e("s_endpgm")
    nsg = sProf + 16 if (prof or pad) else sProf
    e.raw(f""".section .rodata,"a"
.p2align 6
.amdhsa_kernel {KNAME}
  .amdhsa_next_free_vgpr 256
  .amdhsa_next_free_sgpr {nsg}
  .amdhsa_accum_offset 256
  .amdhsa_group_segment_fixed_size 0
  .amdhsa_kernarg_size 104
  .amdhsa_user_sgpr_count 2
  .amdhsa_user_sgpr_kernarg_segment_ptr 1
  .amdhsa_system_sgpr_workgroup_id_x 1
.end_amdhsa_kernel""")
    return e.text()


if __name__ == "__main__":
    kw = {}
    for a in sys.argv[2:]:
        k, v = a.split("=")
        try:
            v = int(v, 0)
        except ValueError:
            pass
        kw[k] = v
    open(sys.argv[1], "w").write(gen(**kw))
```

```python
import re

TRANS = ("v_exp_f32", "v_log_f32", "v_rcp_f32", "v_rsq_f32", "v_sqrt_f32")


def regs_of(tok):
    tok = tok.strip()
    if tok.startswith("-"):
        tok = tok[1:]
    if tok.startswith("abs(") and tok.endswith(")"):
        tok = tok[4:-1]
    m = re.fullmatch(r"([vsa])(\d+)", tok)
    if m:
        return {(m.group(1), int(m.group(2)))}
    m = re.fullmatch(r"([vsa])\[(\d+):(\d+)\]", tok)
    if m:
        return {(m.group(1), i) for i in range(int(m.group(2)), int(m.group(3)) + 1)}
    if tok == "vcc":
        return {("s", "vcc_lo"), ("s", "vcc_hi")}
    if tok in ("vcc_lo", "vcc_hi"):
        return {("s", tok)}
    if tok == "exec":
        return {("s", "exec_lo"), ("s", "exec_hi")}
    if tok in ("exec_lo", "exec_hi"):
        return {("s", tok)}
    return set()


class Ins:
    def __init__(self, text):
        self.text = text
        t = text.split(";")[0].strip()
        parts = t.split(None, 1)
        self.op = parts[0]
        rest = parts[1] if len(parts) > 1 else ""
        ops = []
        depth = 0
        cur = ""
        for ch in rest:
            if ch in "[(":
                depth += 1
            if ch in "])":
                depth -= 1
            if ch == "," and depth == 0:
                ops.append(cur.strip())
                cur = ""
            else:
                cur += ch
        if cur.strip():
            last = cur.strip().split(None, 1)
            ops.append(last[0])
            self.mods = last[1] if len(last) > 1 else ""
        else:
            self.mods = ""
        self.ops = ops
        op = self.op
        R = [regs_of(o) for o in ops]
        self.kind = "other"
        self.w = set()
        self.r = set()
        self.ab = set()
        self.c = set()
        self.dpp = False
        self.wide_store = set()
        self.passes = 0
        if op.startswith("v_mfma"):
            self.kind = "mfma"
            self.w = R[0]
            self.ab = R[1] | R[2]
            self.c = R[3]
            self.r = self.ab | self.c
            self.sgemm = op.endswith("x4_f32") and "16x16x4" in op
            self.passes = 8 if self.sgemm else 4
            assert op in ("v_mfma_f32_16x16x32_bf16", "v_mfma_f32_16x16x4_f32"), op
        elif op.startswith("v_permlane"):
            self.kind = "valu"
            self.perm = True
            self.w = R[0] | R[1]
            self.r = R[0] | R[1]
        elif op.startswith("v_readfirstlane") or op.startswith("v_readlane"):
            self.kind = "valu"
            self.rfl = True
            self.w = R[0]
            self.r = set().union(*R[1:])
        elif op.startswith("v_writelane"):
            self.kind = "valu"
            self.rfl = True
            self.w = R[0]
            self.r = R[0] | R[1] | R[2]
        elif op.startswith("v_"):
            self.kind = "valu"
            self.w = R[0]
            self.r = set().union(*R[1:]) if len(R) > 1 else set()
            if op.endswith("_dpp") or "row_" in self.mods or "quad_perm" in self.mods:
                self.dpp = True
                self.r |= R[0]
            if op.startswith("v_fmac") or op.startswith("v_dot2c"):
                self.r |= R[0]
            if op.startswith("v_dot2"):
                self.dot = True
                self.ab = R[1] | R[2]
            if op.startswith("v_add_co") or op.startswith("v_sub_co"):
                self.w |= R[1]
                self.r = set().union(*R[2:])
        elif op.startswith("buffer_load") or op.startswith("global_load"):
            self.kind = "vmem"
            self.w = R[0]
            self.r = set().union(*R[1:])
        elif op.startswith("buffer_store"):
            self.kind = "vmem"
            self.r = set().union(*R)
            if len(R[0]) >= 3:
                self.wide_store = R[0]
        elif op.startswith("global_store"):
            self.kind = "vmem"
            self.r = set().union(*R)
            if len(R[1]) >= 3:
                self.wide_store = R[1]
        elif op.startswith("ds_read"):
            self.kind = "ds"
            self.w = R[0]
            self.r = set().union(*R[1:])
        elif op.startswith("ds_") and "_rtn" in op:
            self.kind = "ds"
            self.w = R[0]
            self.r = set().union(*R[1:])
        elif op.startswith("ds_"):
            self.kind = "ds"
            self.r = set().union(*R)
        elif op.startswith("s_"):
            self.kind = "salu"
        self.trans = any(op.startswith(x) for x in TRANS)
        self.perm = getattr(self, "perm", False)
        self.dot = getattr(self, "dot", False)
        self.rfl = getattr(self, "rfl", False)
        self.states = 1
        if op == "s_nop":
            self.states = int(ops[0]) + 1


def need(p, c):
    n = 0
    vw = {x for x in p.w if x[0] in "va"}
    sw = {x for x in p.w if x[0] == "s"}
    if p.kind == "valu":
        if c.kind == "mfma" and vw & c.r:
            n = max(n, 2)
        if c.kind == "valu" and c.dpp and vw & c.r:
            n = max(n, 2)
        if c.kind == "valu" and c.perm and vw & c.r:
            n = max(n, 2)
        if c.kind == "valu" and c.rfl and vw & c.r:
            n = max(n, 1)
        if p.trans and c.kind in ("valu", "vmem", "ds") and not c.trans and vw & c.r:
            n = max(n, 1)
        if sw and c.kind == "valu" and sw & c.r:
            n = max(n, 4 if c.rfl else 2)
        if sw and c.kind == "vmem" and sw & c.r:
            n = max(n, 5)
        if p.dot and vw & (c.r | c.w):
            if not (c.op == p.op and not (vw & c.ab)):
                n = max(n, 3)
    if p.kind == "mfma":
        far = 10 if p.sgemm else 8
        if c.kind == "mfma":
            if vw & c.ab:
                n = max(n, far)
            if vw & c.c:
                if vw == c.c and c.passes == p.passes and c.sgemm == p.sgemm:
                    pass
                elif p.sgemm and not c.sgemm:
                    pass
                else:
                    n = max(n, 8 if p.sgemm else 6)
        elif c.kind in ("valu", "vmem", "ds"):
            if vw & (c.r | c.w):
                n = max(n, far)
        if c.kind == "valu" and not p.sgemm and p.c & c.w:
            n = max(n, 3)
    if p.wide_store:
        if c.kind == "valu" and p.wide_store & c.w:
            n = max(n, 2)
        elif p.wide_store & c.w:
            n = max(n, 1)
    return n


class Emitter:
    WINDOW = 12

    def __init__(self):
        self.lines = []
        self.hist = []
        self.snap = {}
        self.labels = {}
        self.prog = []
        self.dead = False
        self.nnop = 0

    def raw(self, text):
        self.lines.append(text)

    def comment(self, text):
        self.lines.append("; " + text)

    def _age(self, k):
        for h in self.hist:
            h[1] += k
        self.hist = [h for h in self.hist if h[1] < self.WINDOW]

    def need_now(self, hist, ins):
        req = 0
        for p, age in hist:
            req = max(req, need(p, ins) - age)
        return req

    def __call__(self, text):
        for t in text.split("\n"):
            t = t.strip()
            if not t or t.startswith(";"):
                continue
            if t.endswith(":"):
                self.label(t[:-1])
            else:
                self.ins(t)

    def ins(self, text):
        assert not self.dead, "unreachable: " + text
        ins = Ins(text)
        req = self.need_now(self.hist, ins)
        if req > 0:
            self.lines.append(f"  s_nop {req - 1}")
            self.prog.append(Ins(f"s_nop {req - 1}"))
            self.nnop += 1
            self._age(req)
        self.lines.append("  " + text)
        self.prog.append(ins)
        self._age(ins.states)
        self.hist.append([ins, 0])
        if ins.op.startswith("s_cbranch") or ins.op == "s_branch":
            tgt = ins.ops[0]
            if tgt in self.labels:
                self._check_back(tgt)
            else:
                self.snap.setdefault(tgt, []).append([[p, a] for p, a in self.hist])
            if ins.op == "s_branch":
                self.dead = True
                self.hist = []
        if ins.op == "s_endpgm":
            self.dead = True
            self.hist = []

    def _check_back(self, tgt):
        hist = [[p, a] for p, a in self.hist]
        for it in self.prog[self.labels[tgt]:]:
            if isinstance(it, str):
                continue
            req = self.need_now(hist, it)
            assert req <= 0, f"loop hazard at {tgt}: {it.text} needs {req}"
            for h in hist:
                h[1] += it.states
            hist = [h for h in hist if h[1] < self.WINDOW]
            if not hist:
                break

    def label(self, name):
        self.lines.append(name + ":")
        self.labels[name] = len(self.prog)
        self.prog.append(name)
        merged = [] if self.dead else list(self.hist)
        for s in self.snap.pop(name, []):
            merged += s
        self.hist = merged
        self.dead = False

    def text(self):
        assert not self.snap, self.snap
        return "\n".join(self.lines) + "\n"
```

```python
import sys
from emit import Emitter

KNAME = "concat_heads__gqa_block_cached__gqa_block_cached__decode_kernel"
HEADER = open("header.txt").read()

WS_QP, WS_EP, WS_FL, WS_H1, WS_I2, WS_PROF = 0x0, 0x10000, 0x20000, 0x40000, 0x100000, 0x200000
EPC = 0x9e3779b9
LDS_Q, LDS_PART, LDS_ML, LDS_CNT, LDS_RED, LDS_SIZE = 0, 512, 1280, 1408, 2048, 10240

vL, vLin, vK, vX = 0, 1, 2, 3
vZ = 54
vM = 4
vQ = 8
vS = 24
vA = 40
vD = 48
vMx, vAl, vAD, vT0 = 52, 53, 54, 55
vLs = 56
vN0, vT1 = 58, 59
vN1, vLt = 60, 61
vT2 = 62
RING = 64
NSLOT = 10
vH = 224
sKa, sKvh, sS, sIdx, sLid, sW, sT0, sT1 = 3, 5, 6, 7, 8, 9, 10, 11
K_, V_, WQ_, WO_, WS_ = 12, 16, 20, 24, 28
OUT_, DBG_, sX = 32, 34, 36
sF = 60
sTag, sEp, sFo = 38, 58, 59
sC, sStep, sK, sV, sWq, sWo, sWo2, sSpin = 40, 41, 42, 43, 44, 45, 46, 47
sA, sB, sWm = 48, 4, 49
sP0 = 50
sProf = 70


def srd(b):
    return f"s[{b}:{b+3}]"


def sp(b):
    return f"s[{b}:{b+1}]"


def vr(b, n):
    return f"v[{b}:{b+n-1}]"


class VM:
    def __init__(self, e):
        self.e = e
        self.ops = []
        self.done = 0

    def add(self, tag):
        self.ops.append(tag)

    def wait_n(self, n):
        n = max(n, 0)
        if len(self.ops) - self.done > n:
            assert n <= 63
            self.e(f"s_waitcnt vmcnt({n})")
            self.done = len(self.ops) - n

    def wait_tag(self, tag):
        last = max(i for i, t in enumerate(self.ops) if t == tag)
        self.wait_n(len(self.ops) - 1 - last)

    def copy(self):
        v = VM(self.e)
        v.ops = list(self.ops)
        v.done = self.done
        return v


def gen(npre=8, upre=12, umain=12, uctl=12, la=3, ratio=2, jctl=1, jpoll=1, pr="", uq=0, pf1=9, pf2=11, nt="nt", ntq="nt", lead=1, prof=False,
        spin=1 << 16, prio=True, pad=0, dry=False, pmode=1, asplit=True, qprio=0, cprio2=-1, rot=0, noflag=0, sx=0, wqp=-1, sel=1, cx=0, wqoff=0, wqsrc=24, wqstr=13, seg=64):
    e = Emitter()
    NT = (" " + nt) if nt else ""
    NTQ = (" " + ntq) if ntq else ""
    if lead == 1:
        seq = ["K0", "K1"] + [x for n in range(6) for x in (f"V{n}", f"K{n+2}")] + ["V6", "V7"]
    elif lead == 2:
        seq = ["K0", "K1", "K2"] + [x for n in range(5) for x in (f"V{n}", f"K{n+3}")] + ["V5", "V6", "V7"]
    assert len(seq) == 16 and len(set(seq)) == 16
    free = list(range(NSLOT))
    slot = {}
    steps = [int(x) for x in str(pr).split(",") if x != ""]
    p0 = len(steps)
    assert p0 <= 3

    P5 = {0: 0, 1: 1, 3: 2, 5: 3, 7: 4, 10: 5}

    def stamp(k, kind=1):
        if prof and pmode == 5:
            if kind == 1 and k in P5:
                e(f"s_memrealtime {sp(sProf+16+2*P5[k])}")
            if kind == 5:
                if k > 0:
                    e("s_waitcnt lgkmcnt(0)")
                    e(f"s_mov_b32 s{sProf+k-1}, s{sProf+28+2*((k-1)&1)}")
                if k < 16:
                    e(f"s_memrealtime {sp(sProf+28+2*(k&1))}")
        elif prof and ((k == 0 and kind == 1) or (kind == pmode and kind != 5)):
            e(f"s_memrealtime {sp(sProf+2*k)}")

    FIN = "s_branch L_fin" if (prof or pad) else "s_endpgm"

    def issue_load(t, i):
        r = RING + 16 * slot[t] + 4 * i
        if t[0] == "K":
            e(f"buffer_load_dwordx4 {vr(r,4)}, v{vK}, {srd(K_)}, s{sK} offen offset:{64*i}{NT}")
        else:
            e(f"buffer_load_dwordx4 {vr(r,4)}, v{vLin}, {srd(V_)}, s{sV} offen offset:{1024*i}{NT}")

    def issue_end(t):
        if t[1] != "7":
            s = sK if t[0] == "K" else sV
            e(f"s_add_u32 s{s}, s{s}, s{sStep}")
        if seq.index(t) >= 3:
            stamp(seq.index(t) - 2, 2)
        if seq.index(t) <= 12:
            stamp(seq.index(t) + 1, 3)
        stamp(seq.index(t), 5)

    def issue(vm, t, u=None, ctl=False):
        if t not in slot:
            slot[t] = free.pop(0)
        if seq.index(t) in steps and not ctl:
            e(f"s_setprio {p0 - 1 - steps.index(seq.index(t))}")
        for i in range(4):
            if u is not None:
                vm.wait_n(u - 1)
            issue_load(t, i)
            vm.add(t)
        issue_end(t)

    def SPIN(lbl):
        return f"s_addk_i32 s{sSpin}, -1\ns_cmpk_gt_i32 s{sSpin}, 0\ns_cbranch_scc1 {lbl}"

    def pk_sum(base, n):
        step = 1
        while step < n:
            for i in range(0, n - step, 2 * step):
                for h in (0, 2):
                    a, b = base + 4 * i + h, base + 4 * (i + step) + h
                    e(f"v_pk_add_f32 {vr(a,2)}, {vr(a,2)}, {vr(b,2)}")
            step *= 2

    def allreduce(v, tmp, op):
        e(f"v_mov_b32 v{tmp}, v{v}")
        e(f"v_permlane16_swap_b32 v{v}, v{tmp}")
        e(f"{op} v{v}, v{v}, v{tmp}")
        e(f"v_mov_b32 v{tmp}, v{v}")
        e(f"v_permlane32_swap_b32 v{v}, v{tmp}")
        e(f"{op} v{v}, v{v}, v{tmp}")

    vRed, vMLw, vWo, vPa, vPb, vPc, vPd = vH, vH + 1, vH + 2, vH + 3, vH + 4, vH + 5, vH + 6
    vXr = vH + 24
    vPoll = vH + 24
    vXs = vS
    vAcc = vA

    e.raw(HEADER.rstrip())
    e.raw(f"; @launch grid=(256,1,1) block=(512,1,1) lds={LDS_SIZE}")
    e.raw('.amdgcn_target "amdgcn-amd-amdhsa--gfx950"')
    e.raw(".text")
    e.raw(f".globl {KNAME}")
    e.raw(".p2align 8")
    e.raw(f".type {KNAME},@function")
    e.raw(f"{KNAME}:")
    stamp(0)
    if prof and pmode != 5:
        for k in range(1, 14):
            e(f"s_mov_b32 s{sProf+2*k}, 0")
    if pad:
        e(f"s_memrealtime {sp(sProf)}")
    e(f"""
    s_lshr_b32 s{sT0}, s2, 8
    s_cbranch_scc1 L_end
    s_bitcmp1_b32 s2, 2
    s_cselect_b32 s{sKa}, 40, 0
    s_load_dwordx2 {sp(WQ_)}, s[0:1], s{sKa} offset:{wqsrc}
    s_load_dwordx2 {sp(sX)}, s[0:1], s{sKa} offset:0
    s_load_dwordx2 {sp(WS_)}, s[0:1], 96
    s_load_dwordx2 {sp(K_)}, s[0:1], s{sKa} offset:8
    s_load_dwordx2 {sp(V_)}, s[0:1], s{sKa} offset:16
    s_load_dwordx2 {sp(WO_)}, s[0:1], s{sKa} offset:32
    s_load_dwordx2 {sp(OUT_)}, s[0:1], 80
    v_lshrrev_b32 v{vLin}, 6, v0
    v_and_b32 v{vL}, 63, v0
    v_readfirstlane_b32 s{sW}, v{vLin}
    s_and_b32 s{sT0}, s2, 7
    s_lshl_b32 s{sT0}, s{sT0}, 5
    s_lshr_b32 s{sLid}, s2, 3
    s_or_b32 s{sLid}, s{sLid}, s{sT0}
    s_xor_b32 s{sLid}, s{sLid}, {sx}
    s_and_b32 s{sIdx}, s{sLid}, 0x7f
    s_mov_b32 s{WQ_+2}, 0x480000
    s_mov_b32 s{WQ_+3}, 0x20000
    s_mov_b32 s{WS_+2}, 0x400000
    s_mov_b32 s{WS_+3}, 0x20000
    v_lshlrev_b32 v{vLin}, 4, v{vL}
    v_and_b32 v{vT0}, 3, v{vL}
    v_lshrrev_b32 v{vT1}, 2, v{vL}
    v_mov_b32 v{vX}, 0
    s_sub_u32 s{sWm}, s{sW}, 1
    s_cbranch_scc1 L_clear
    s_cmp_eq_u32 s{sW}, 7
    s_cbranch_scc1 L_wait0
    s_mul_i32 s{sT0}, s{sWm}, 0xc0
    v_mul_u32_u24 v{vX}, 0xc000, v{vT1}
    v_mul_u32_u24 v{vT2}, 12, v{vT1}
    v_lshl_or_b32 v{vX}, v{vT0}, 4, v{vX}
    v_add_u32 v{vT2}, s{sT0}, v{vT2}
    s_lshl_b32 s{sWq}, s{sT0}, 12
    s_xor_b32 s{sT1}, s{sIdx}, {cx}
    s_lshl_b32 s{sT1}, s{sT1}, 6
    s_add_u32 s{sWq}, s{sWq}, s{sT1}
    s_setprio {max(qprio, p0)}
    """)
    wstep = 0x2000
    if seg == 32:
        e(f"""
        v_mul_u32_u24 v{vX}, 0xc000, v{vT1}
        v_and_b32 v{vA}, 1, v{vL}
        v_lshl_or_b32 v{vX}, v{vA}, 4, v{vX}
        v_and_b32 v{vA}, 2, v{vL}
        v_lshl_or_b32 v{vX}, v{vA}, 7, v{vX}
        s_lshl_b32 s{sWq}, s{sT0}, 12
        s_and_b32 s{sT1}, s{sIdx}, 0x78
        s_lshl_b32 s{sT1}, s{sT1}, 6
        s_add_u32 s{sWq}, s{sWq}, s{sT1}
        s_and_b32 s{sT1}, s{sIdx}, 7
        s_lshl_b32 s{sT1}, s{sT1}, 5
        s_add_u32 s{sWq}, s{sWq}, s{sT1}
        """)
    if seg == 16:
        e(f"""
        v_mul_u32_u24 v{vX}, 0xc000, v{vT1}
        v_lshl_or_b32 v{vX}, v{vT0}, 7, v{vX}
        s_lshl_b32 s{sWq}, s{sT0}, 12
        s_and_b32 s{sT1}, s{sIdx}, 0x78
        s_lshl_b32 s{sT1}, s{sT1}, 6
        s_add_u32 s{sWq}, s{sWq}, s{sT1}
        s_and_b32 s{sT1}, s{sIdx}, 7
        s_lshl_b32 s{sT1}, s{sT1}, 4
        s_add_u32 s{sWq}, s{sWq}, s{sT1}
        """)
    if wqoff:
        e(f"s_add_u32 s{sWq}, s{sWq}, {wqoff}")
    if wqstr != 13:
        wstep = wqstr
        e(f"""
        v_mul_u32_u24 v{vX}, {6*wqstr}, v{vT1}
        v_lshl_or_b32 v{vX}, v{vT0}, 4, v{vX}
        s_mul_i32 s{sWq}, s{sWm}, {96*wqstr}
        s_lshl_b32 s{sT1}, s{sIdx}, 6
        s_add_u32 s{sWq}, s{sWq}, s{sT1}
        """)
    if wqp >= 0:
        S = 64 << wqp
        rpl = 1024 // S
        wstep = rpl * 8192
        e(f"""
        v_lshrrev_b32 v{vX}, {2+wqp}, v{vL}
        v_lshlrev_b32 v{vX}, 13, v{vX}
        v_and_b32 v{vA}, {(4<<wqp)-1}, v{vL}
        v_lshl_or_b32 v{vX}, v{vA}, 4, v{vX}
        s_and_b32 s{sT0}, s{sIdx}, {(1<<wqp)-1}
        s_mul_i32 s{sT0}, s{sT0}, 6
        s_add_u32 s{sT0}, s{sT0}, s{sWm}
        s_mul_i32 s{sWq}, s{sT0}, {6*wstep}
        s_lshr_b32 s{sT0}, s{sIdx}, {wqp}
        s_mul_i32 s{sT0}, s{sT0}, {S}
        s_add_u32 s{sWq}, s{sWq}, s{sT0}
        """)
    stamp(1, 4)
    e("s_waitcnt lgkmcnt(0)")
    stamp(2, 4)
    e(f"global_load_dwordx3 {vr(vXr,3)}, v{vT2}, {sp(sX)}")
    for i in range(6):
        e(f"buffer_load_dwordx4 {vr(vH+4*i,4)}, v{vX}, {srd(WQ_)}, s{sWq} offen{NTQ}")
        if i < 5:
            e(f"s_add_u32 s{sWq}, s{sWq}, {wstep}" if wstep != 0x2000 else f"s_addk_i32 s{sWq}, 0x2000")
    stamp(3, 4)
    e("s_branch L_t0")
    e("L_clear:")
    if prio:
        e("s_setprio 3")
    e(f"""
    v_mov_b32 v{vA}, -1
    v_mov_b32 v{vA+1}, -1
    v_mov_b32 v{vA+2}, -1
    v_mov_b32 v{vA+3}, -1
    v_mov_b32 v{vA+4}, 0
    v_mov_b32 v{vA+5}, 0
    ds_write_b64 v{vA+4}, {vr(vA+4,2)} offset:{LDS_CNT}
    s_and_b32 s{sEp}, s{sLid}, 0x80
    s_add_u32 s{sEp}, s{sEp}, {WS_EP}
    s_lshl_b32 s{sT0}, s{sLid}, 11
    s_add_u32 s{sT0}, s{sT0}, {WS_H1}
    s_lshl_b32 s{sT1}, s{sLid}, 12
    s_add_u32 s{sT1}, s{sT1}, {WS_I2}
    s_mov_b64 exec, 15
    s_waitcnt lgkmcnt(0)
    s_load_dword s{sTag}, {sp(WS_)}, s{sEp}
    buffer_store_dwordx4 {vr(vA,4)}, v{vLin}, {srd(WS_)}, s{sT0} offen offset:1024 sc1
    s_mov_b64 exec, -1
    s_cmp_ge_u32 s{sIdx}, 72
    buffer_store_dwordx4 {vr(vA,4)}, v{vLin}, {srd(WS_)}, s{sT0} offen sc1
    s_cbranch_scc1 L_t0
    buffer_store_dwordx4 {vr(vA,4)}, v{vLin}, {srd(WS_)}, s{sT1} offen sc1
    buffer_store_dwordx4 {vr(vA,4)}, v{vLin}, {srd(WS_)}, s{sT1} offen offset:1024 sc1
    buffer_store_dwordx4 {vr(vA,4)}, v{vLin}, {srd(WS_)}, s{sT1} offen offset:2048 sc1
    buffer_store_dwordx4 {vr(vA,4)}, v{vLin}, {srd(WS_)}, s{sT1} offen offset:3072 sc1
    L_wait0:
    s_waitcnt lgkmcnt(0)
    L_t0:
    s_barrier
    """)
    stamp(1)
    stamp(4, 4)
    e(f"""
    s_and_b32 s{sS}, s{sLid}, 7
    s_lshr_b32 s{sKvh}, s{sIdx}, 3
    s_mov_b32 s{K_+2}, 0x2000000
    s_mov_b32 s{K_+3}, 0x20000
    s_mov_b32 s{V_+2}, 0x2000000
    s_mov_b32 s{V_+3}, 0x20000
    s_mov_b32 s{sStep}, 0x8000
    v_and_b32 v{vT1}, 3, v{vT1}
    v_and_b32 v{vK}, 48, v{vL}
    v_lshl_or_b32 v{vK}, v{vT0}, 10, v{vK}
    v_lshl_or_b32 v{vK}, v{vT1}, 8, v{vK}
    """)
    if rot == 0:
        e(f"s_mov_b32 s{sT0}, s{sW}")
    elif rot == 1:
        e(f"s_add_u32 s{sT0}, s{sW}, s{sIdx}")
        e(f"s_and_b32 s{sT0}, s{sT0}, 7")
    elif rot == 2:
        e(f"s_lshr_b32 s{sT0}, s{sIdx}, 3")
        e(f"s_add_u32 s{sT0}, s{sT0}, s{sW}")
        e(f"s_and_b32 s{sT0}, s{sT0}, 7")
    elif rot == 3:
        e(f"s_lshl_b32 s{sT0}, s{sIdx}, 2")
        e(f"s_xor_b32 s{sT0}, s{sT0}, s{sW}")
        e(f"s_and_b32 s{sT0}, s{sT0}, 7")
    e(f"""
    s_lshl_b32 s{sK}, s{sIdx}, 6
    s_add_u32 s{sK}, s{sK}, s{sT0}
    s_lshl_b32 s{sK}, s{sK}, 12
    s_mov_b32 s{sV}, s{sK}
    v_and_b32 v{vT0}, 1, v{vL}
    v_lshlrev_b32 v{vT0}, 4, v{vT0}
    v_mov_b32 v{vT1}, 0xffff
    v_lshlrev_b32 v{vT0}, v{vT0}, v{vT1}
    v_bfe_u32 v{vT1}, v{vL}, 1, 2
    v_lshlrev_b32_e64 v{vT1}, v{vT1}, 1
    """)
    for d in range(4):
        e(f"v_bfe_i32 v{vM+d}, v{vT1}, {d}, 1")
    for d in range(4):
        e(f"v_and_b32 v{vM+d}, v{vM+d}, v{vT0}")
    e(f"""
    s_mov_b32 s{sC}, 0x3e0293ee
    s_mov_b32 s{sSpin}, {spin}
    s_mov_b32 s{WO_+2}, 0x480000
    s_mov_b32 s{WO_+3}, 0x20000
    v_mov_b32 v{vZ}, 0
    s_cmp_ge_u32 s{sWm}, 6
    s_cbranch_scc1 L_noq
    """)
    slot["K0"] = free.pop(0)
    vq = VM(e)
    vq.add("x")
    for i in range(6):
        vq.add(f"w{i}")
    e(f"""
    v_and_b32 v{vT0}, 3, v{vL}
    v_lshrrev_b32 v{vT1}, 4, v{vL}
    v_lshlrev_b32 v{vT1}, 3, v{vT1}
    v_lshl_or_b32 v{vT0}, v{vT0}, 5, v{vT1}
    s_lshl_b32 s{sT0}, s{sWm}, 7
    v_add_u32 v{vX}, s{sT0}, v{vT0}
    """)
    stamp(5, 4)
    vq.wait_tag("x")
    stamp(6, 4)
    for t in range(3):
        e(f"v_and_b32 v{vXs+4*t}, 0xffff, v{vXr+t}")
        e(f"v_lshlrev_b32 v{vXs+4*t+1}, 16, v{vXr+t}")
        e(f"v_lshrrev_b32 v{vXs+4*t+2}, 16, v{vXr+t}")
        e(f"v_and_b32 v{vXs+4*t+3}, 0xffff0000, v{vXr+t}")
    k0 = 0
    for i in range(6):
        vq.wait_tag(f"w{i}")
        if i == 5:
            stamp(2)
            stamp(7, 4)
        for c in range(8):
            w = vH + 4 * i + (c >> 1)
            x = vXs + 2 * i + (c & 1)
            acc = "0" if i == 0 else f"v{vAcc+c}"
            e(f"v_dot2_f32_bf16 v{vAcc+c}, v{w}, v{x}, {acc}")
        while k0 < 4 and (5 - i) + k0 < uq:
            issue_load("K0", k0)
            vq.add("K0")
            k0 += 1
    for c in range(4):
        e(f"v_permlane32_swap_b32 v{vAcc+c}, v{vAcc+c+4}")
    for c in range(4):
        e(f"v_add_f32 v{vAcc+c}, v{vAcc+c}, v{vAcc+c+4}")
    for c in range(2):
        e(f"v_permlane16_swap_b32 v{vAcc+c}, v{vAcc+c+2}")
    for c in range(2):
        e(f"v_add_f32 v{vAcc+c}, v{vAcc+c}, v{vAcc+c+2}")
    for rot in (8, 4):
        for c in range(2):
            e(f"v_add_f32_dpp v{vAcc+c}, v{vAcc+c}, v{vAcc+c} row_ror:{rot} row_mask:0xf bank_mask:0xf")
    e(f"""
    s_mov_b32 exec_lo, 0x000f000f
    s_mov_b32 exec_hi, 0x000f000f
    ds_write_b64 v{vX}, {vr(vAcc,2)} offset:{LDS_PART}
    v_mov_b32 v{vT0}, 1
    """)
    stamp(8, 4)
    e(f"""
    s_mov_b64 exec, 1
    ds_add_u32 v{vZ}, v{vT0} offset:{LDS_CNT}
    s_mov_b64 exec, -1
    """)
    if max(qprio, p0) != p0:
        e(f"s_setprio {p0}")
    for i in range(k0, 4):
        issue_load("K0", i)
        vq.add("K0")
    e(f"""
    s_branch L_pre1
    L_noq:
    s_cmp_eq_u32 s{sW}, 0
    s_cbranch_scc1 L_ctl
    """)
    assert not dry
    if dry:
        for r in range(vH + 3, vH + 7):
            e(f"v_mov_b32 v{r}, 0")
        e("""
        s_mov_b64 exec, 0
        s_branch L_t2b
        """)
    else:
        e(f"s_setprio {p0}")
        e("s_branch L_dry_ret")
    e(f"""
    L_ctl:
    v_lshlrev_b32 v{vX}, 3, v{vL}
    s_xor_b32 s{sB}, s{sLid}, {cx}
    s_lshl_b32 s{sB}, s{sB}, 7
    s_and_b32 s{sA}, s{sB}, 0x7c00
    s_lshr_b32 s{sFo}, s{sA}, 3
    s_add_u32 s{sFo}, s{sFo}, {WS_FL}
    s_waitcnt vmcnt(0)
    """)
    stamp(2)
    stamp(7, 4)
    vc = VM(e)
    vc.add("x")
    for t in seq[:jctl]:
        issue(vc, t, None, True)
    e(f"""
    L_cnt:
    ds_read_b32 v{vT0}, v{vZ} offset:{LDS_CNT}
    s_waitcnt lgkmcnt(0)
    v_cmp_ne_u32 vcc, 6, v{vT0}
    s_cbranch_vccz L_cnt_ok
    {SPIN("L_cnt")}
    L_cnt_ok:
    s_mov_b64 exec, 0xffff
    """)
    stamp(8, 4)
    for i in range(6):
        e(f"ds_read_b64 {vr(vS+2*i,2)}, v{vX} offset:{LDS_PART+128*i}")
    e(f"""
    s_add_u32 s{sTag}, s{sTag}, {EPC}
    s_waitcnt lgkmcnt(0)
    v_pk_add_f32 {vr(vS,2)}, {vr(vS,2)}, {vr(vS+2,2)}
    v_pk_add_f32 {vr(vS+4,2)}, {vr(vS+4,2)}, {vr(vS+6,2)}
    v_pk_add_f32 {vr(vS+8,2)}, {vr(vS+8,2)}, {vr(vS+10,2)}
    v_pk_add_f32 {vr(vS,2)}, {vr(vS,2)}, {vr(vS+4,2)}
    v_pk_add_f32 {vr(vS,2)}, {vr(vS,2)}, {vr(vS+8,2)}
    v_cvt_pk_bf16_f32 v{vS}, v{vS}, v{vS+1}
    v_mov_b32 v{vS+1}, s{sTag}
    s_mov_b32 s{sTag+1}, s{sTag}
    buffer_store_dwordx2 {vr(vS,2)}, v{vX}, {srd(WS_)}, s{sB} offen sc1
    s_mov_b64 exec, -1
    """)
    stamp(12)
    stamp(9, 4)
    if seg == 64:
        e(f"v_mov_b32 v{vS+2}, v{vX}")
    elif seg == 32:
        e(f"""
        v_lshrrev_b32 v{vS+2}, 3, v{vL}
        v_lshlrev_b32 v{vS+2}, 5, v{vS+2}
        v_and_b32 v{vS+3}, 4, v{vL}
        v_lshl_or_b32 v{vS+2}, v{vS+3}, 6, v{vS+2}
        v_and_b32 v{vS+3}, 3, v{vL}
        v_lshl_or_b32 v{vS+2}, v{vS+3}, 3, v{vS+2}
        """)
    else:
        e(f"""
        v_lshrrev_b32 v{vS+2}, 3, v{vL}
        v_lshlrev_b32 v{vS+2}, 4, v{vS+2}
        v_and_b32 v{vS+3}, 6, v{vL}
        v_lshl_or_b32 v{vS+2}, v{vS+3}, 6, v{vS+2}
        v_and_b32 v{vS+3}, 1, v{vL}
        v_lshl_or_b32 v{vS+2}, v{vS+3}, 3, v{vS+2}
        """)
    for t in seq[jctl:jpoll]:
        issue(vc, t, uctl, True)
    e(f"""
    L_gather1:
    buffer_load_dwordx4 {vr(vPoll,4)}, v{vLin}, {srd(WS_)}, s{sA} offen sc1
    s_waitcnt vmcnt(0)
    v_cmp_ne_u32 vcc, s{sTag}, v{vPoll+1}
    v_cmp_ne_u32 {sp(sP0)}, s{sTag}, v{vPoll+3}
    s_or_b64 vcc, vcc, {sp(sP0)}
    s_cbranch_vccz L_gotq
    {SPIN("L_gather1")}
    L_gotq:
    v_mov_b32 v{vT0}, 1
    v_mov_b32 v{vT1}, s{sTag}
    ds_write2_b32 v{vS+2}, v{vPoll}, v{vPoll+2} offset0:0 offset1:1
    s_and_b32 s{sT0}, s{sLid}, 0x7f
    s_and_b32 s{sT1}, s{sLid}, 7
    s_cselect_b32 s{sT0}, 0x7f, s{sT0}
    s_cmp_ge_u32 s{sT0}, 72
    s_waitcnt lgkmcnt(0)
    ds_write_b32 v{vZ}, v{vT0} offset:{LDS_CNT+4}
    s_cbranch_scc1 L_noep
    s_and_b32 s{sT1}, s{sLid}, 0x80
    s_lshl_b32 s{sT1}, s{sT1}, 4
    s_lshr_b32 s{sT0}, s{sT0}, 1
    s_add_u32 s{sT0}, s{sT0}, s{sT1}
    s_add_u32 s{sT0}, s{sT0}, {WS_FL}
    v_lshlrev_b32 v{vT2}, 7, v{vL}
    s_mov_b64 exec, 0xffff
    buffer_store_dword v{vT1}, v{vT2}, {srd(WS_)}, s{sT0} offen sc1
    s_mov_b64 exec, -1
    L_noep:
    """)
    cp2 = p0 - sum(1 for x in steps if x < jpoll) if cprio2 < 0 else cprio2
    if prio and cp2 != 3:
        e(f"s_setprio {cp2}")
    vc.done = len(vc.ops)
    stamp(3)
    vc.add("fl")
    for t in seq[jpoll:npre]:
        issue(vc, t, uctl)
    e("s_branch L_readq")
    e("L_dry_ret:")
    e("s_mov_b64 exec, -1")
    for i in range(4):
        issue_load("K0", i)
    e("L_pre1:")
    vm = VM(e)
    vm.ops = ["K0"] * 4
    issue_end("K0")
    for k in range(1, npre):
        issue(vm, seq[k], upre)
    stamp(3)
    e(f"""
    L_qspin:
    ds_read_b32 v{vT0}, v{vZ} offset:{LDS_CNT+4}
    s_waitcnt lgkmcnt(0)
    v_cmp_eq_u32 vcc, 0, v{vT0}
    s_cbranch_vccz L_readq
    {SPIN("L_qspin")}
    L_readq:
    v_bfe_u32 v{vT0}, v{vL}, 3, 1
    v_and_b32 v{vT1}, 48, v{vL}
    v_lshl_or_b32 v{vT0}, v{vT0}, 8, v{vT1}
    """)
    for i in range(4):
        e(f"ds_read_b128 {vr(vQ+4*i,4)}, v{vT0} offset:{LDS_Q+64*i}")
    vm.done = len(vm.ops) - max(len(vm.ops) - vm.done, min(len(vm.ops), len(vc.ops) - vc.done))
    stamp(4)
    e(f"""
    s_lshl_b32 s{sT0}, s{sW}, 10
    v_add_u32 v{vRed}, s{sT0}, v{vLin}
    s_lshl_b32 s{sT0}, s{sW}, 3
    v_lshrrev_b32 v{vMLw}, 2, v{vT0}
    v_and_b32 v{vMLw}, 64, v{vMLw}
    v_add_u32 v{vMLw}, s{sT0}, v{vMLw}
    s_mov_b32 vcc_lo, 0x00ff00ff
    s_mov_b32 vcc_hi, 0xff00ff00
    s_waitcnt lgkmcnt(0)
    """)

    st = {"sreg": {}, "sfree": [0, 1, 2, 3]}

    def softmax(c):
        sreg = st["sreg"]
        s0 = vS + 4 * sreg[2 * c]
        s1 = vS + 4 * sreg[2 * c + 1]
        nn, no = (vN0, vN1) if c % 2 == 0 else (vN1, vN0)
        if c == 0:
            e(f"v_max3_f32 v{vT0}, v{s0}, v{s0+1}, v{s0+2}")
            e(f"v_max3_f32 v{vT0}, v{vT0}, v{s0+3}, v{s1}")
            e(f"v_max3_f32 v{vT0}, v{vT0}, v{s1+1}, v{s1+2}")
            e(f"v_max_f32 v{vMx}, v{vT0}, v{s1+3}")
        else:
            e(f"v_max3_f32 v{vT0}, v{s0}, v{s0+1}, v{s0+2}")
            e(f"v_max3_f32 v{vMx}, v{vMx}, v{s0+3}, v{vT0}")
            e(f"v_max3_f32 v{vT0}, v{s1}, v{s1+1}, v{s1+2}")
            e(f"v_max3_f32 v{vMx}, v{vMx}, v{s1+3}, v{vT0}")
        allreduce(vMx, vT0, "v_max_f32")
        e(f"v_mul_f32 v{nn}, 0xbe0293ee, v{vMx}")
        for b in (s0, s1):
            for r in range(4):
                e(f"v_fma_f32 v{b+r}, v{b+r}, s{sC}, v{nn}")
        if c > 0:
            e(f"v_sub_f32 v{vAl}, v{nn}, v{no}")
            e(f"v_exp_f32 v{vAl}, v{vAl}")
        for b in (s0, s1):
            for r in range(4):
                e(f"v_exp_f32 v{b+r}, v{b+r}")
        if c > 0:
            e(f"v_cndmask_b32_dpp v{vAD}, v{vAl}, v{vAl}, vcc row_ror:8 row_mask:0xf bank_mask:0xf")
        e(f"v_pk_add_f32 {vr(vA,2)}, {vr(s0,2)}, {vr(s0+2,2)}")
        e(f"v_pk_add_f32 {vr(vT2,2)}, {vr(s1,2)}, {vr(s1+2,2)}")
        if c == 0:
            e(f"v_pk_add_f32 {vr(vLs,2)}, {vr(vA,2)}, {vr(vT2,2)}")
        else:
            e(f"v_pk_add_f32 {vr(vT2,2)}, {vr(vA,2)}, {vr(vT2,2)}")
            e(f"v_fma_f32 v{vLs}, v{vLs}, v{vAl}, v{vT2}")
            e(f"v_fma_f32 v{vLs+1}, v{vLs+1}, v{vAl}, v{vT2+1}")
        for b in (s0, s1):
            for r in range(4):
                e(f"v_cvt_pk_bf16_f32 v{b+r}, v{b+r}, v{b+r}")
        if c == 3:
            e(f"v_add_f32 v{vLt}, v{vLs}, v{vLs+1}")
            allreduce(vLt, vT0, "v_add_f32")
            e(f"ds_write_b64 v{vMLw}, {vr(vN1,2)} offset:{LDS_ML}")

    def diag_mfma(dst, pregs, bregs, zero_first):
        n = len(pregs)

        def ands(i):
            for d in range(4):
                e(f"v_and_b32 v{vA+4*(i&1)+d}, v{pregs[i]}, v{vM+d}")
        ands(0)
        for i in range(n):
            if i + 1 < n:
                ands(i + 1)
            c = "0" if (zero_first and i == 0) else vr(dst, 4)
            e(f"v_mfma_f32_16x16x32_bf16 {vr(dst,4)}, {vr(vA+4*(i&1),4)}, {vr(bregs[i],4)}, {c}")

    def process(vm, t):
        sreg, sfree = st["sreg"], st["sfree"]
        n = int(t[1])
        base = RING + 16 * slot[t]
        if t[0] == "K":
            sreg[n] = sfree.pop(0)
            s = vS + 4 * sreg[n]
            vm.wait_tag(t)
            for i in range(4):
                c = "0" if i == 0 else vr(s, 4)
                e(f"v_mfma_f32_16x16x32_bf16 {vr(s,4)}, {vr(base+4*i,4)}, {vr(vQ+4*i,4)}, {c}")
            if n & 1:
                softmax(n >> 1)
        else:
            s = vS + 4 * sreg[n]
            if n > 0 and n % 2 == 0:
                for r in range(4):
                    e(f"v_mul_f32 v{vD+r}, v{vAD}, v{vD+r}")
            vm.wait_tag(t)
            if n == 7:
                stamp(6)
            diag_mfma(vD, [s + r for r in range(4)], [base + 4 * r for r in range(4)], n == 0)
            sfree.append(sreg[n])
        free.append(slot[t])

    def flags(ip):
        if noflag:
            return
        if ip == pf1:
            e(f"""
            s_cmp_lg_u32 s{sW}, 0
            s_cbranch_scc1 L_pf1
            s_load_dwordx8 s[{sF}:{sF+7}], {sp(WS_)}, s{sFo} glc
            s_load_dword s{sF+8}, {sp(WS_)}, s{sFo} offset:32 glc
            L_pf1:
            """)
        if ip == pf2:
            e(f"""
            s_cmp_lg_u32 s{sW}, 0
            s_cbranch_scc1 L_pf3
            L_pf2:
            s_waitcnt lgkmcnt(0)
            s_xor_b64 {sp(sF)}, {sp(sF)}, {sp(sTag)}
            s_xor_b64 {sp(sF+2)}, {sp(sF+2)}, {sp(sTag)}
            s_xor_b64 {sp(sF+4)}, {sp(sF+4)}, {sp(sTag)}
            s_xor_b64 {sp(sF+6)}, {sp(sF+6)}, {sp(sTag)}
            s_xor_b32 s{sF+8}, s{sF+8}, s{sTag}
            s_or_b64 {sp(sF)}, {sp(sF)}, {sp(sF+2)}
            s_or_b64 {sp(sF+4)}, {sp(sF+4)}, {sp(sF+6)}
            s_or_b32 s{sF}, s{sF}, s{sF+8}
            s_or_b64 {sp(sF)}, {sp(sF)}, {sp(sF+4)}
            s_cbranch_scc0 L_pf3
            s_load_dwordx8 s[{sF}:{sF+7}], {sp(WS_)}, s{sFo} glc
            s_load_dword s{sF+8}, {sp(WS_)}, s{sFo} offset:32 glc
            {SPIN("L_pf2")}
            s_waitcnt lgkmcnt(0)
            L_pf3:
            """)

    assert 0 < pf1 < pf2 <= seq.index("K7") + 1
    ip, ii = 0, npre
    while ii < 16:
        k = ratio if (ii - ip) > la else 1
        for _ in range(k):
            process(vm, seq[ip])
            ip += 1
            flags(ip)
        issue(vm, seq[ii], umain)
        ii += 1
    while seq.index("K7") >= ip:
        process(vm, seq[ip])
        ip += 1
        flags(ip)
    rest = seq[ip:]
    wo_slots = [free[0], free[1]]
    fs = [s for s in range(NSLOT) if s not in wo_slots]

    def finish(vm):
        save = (dict(st["sreg"]), list(st["sfree"]), list(free))
        for t in rest:
            process(vm, t)
        e(f"ds_write_b128 v{vRed}, {vr(vD,4)} offset:{LDS_RED}")
        st["sreg"], st["sfree"] = save[0], save[1]
        free[:] = save[2]

    def issue_wo(vm):
        for r in range(8):
            reg = RING + 16 * wo_slots[r >> 2] + 4 * (r & 3)
            e(f"buffer_load_dwordx4 {vr(reg,4)}, v{vWo}, {srd(WO_)}, s{sWo if r < 4 else sWo2} offen offset:{1152*(r&3)}{NT}")
            vm.add("wo")

    Z = vH + 8

    wo_addr = f"""
    s_movk_i32 s{sT1}, 0x2400
    v_lshrrev_b32 v{vT1}, 4, v{vL}
    v_and_b32 v{vWo}, 0xff, v{vLin}
    v_mad_u32_u24 v{vWo}, v{vT1}, s{sT1}, v{vWo}
    s_lshl_b32 s{sT0}, s{sWm}, 4
    v_and_b32 v{vT1}, 15, v{vL}
    v_add_u32 v{vT1}, s{sT0}, v{vT1}
    v_cmp_gt_u32 vcc, 72, v{vT1}
    v_mov_b32 v{vT1}, 0x40000000
    s_mul_i32 s{sWo}, s{sIdx}, 0x9000
    s_lshl_b32 s{sT0}, s{sWm}, 8
    s_add_u32 s{sWo}, s{sWo}, s{sT0}
    v_cndmask_b32 v{vWo}, v{vT1}, v{vWo}, vcc
    s_add_u32 s{sWo2}, s{sWo}, 4608
    """
    t3_addr = f"""
    v_and_b32 v{vPa}, 15, v{vL}
    v_lshrrev_b32 v{vT0}, 4, v{vL}
    v_lshlrev_b32 v{vPb}, 3, v{vT0}
    v_lshlrev_b32 v{vPc}, 12, v{vPa}
    v_lshl_or_b32 v{vPc}, v{vT0}, 4, v{vPc}
    v_lshlrev_b32 v{vPa}, 3, v{vPa}
    v_lshl_or_b32 v{vPa}, v{vT0}, 7, v{vPa}
    v_mov_b32 v{vPd}, 0
    s_lshl_b32 s{sA}, s{sLid}, 11
    s_add_u32 s{sA}, s{sA}, {WS_H1}
    s_and_b32 s{sB}, s{sLid}, 0x80
    s_lshl_b32 s{sB}, s{sB}, 12
    s_lshl_b32 s{sT0}, s{sWm}, 16
    s_add_u32 s{sB}, s{sB}, s{sT0}
    s_lshl_b32 s{sT0}, s{sIdx}, 5
    s_add_u32 s{sB}, s{sB}, s{sT0}
    s_add_u32 s{sB}, s{sB}, {WS_I2}
    s_cmp_eq_u32 s{sWm}, 4
    s_cselect_b32 s{sP0}, 0x00ff00ff, -1
    s_mov_b32 s{sP0+1}, 0
    """
    if asplit:
        e(f"""
        s_cmp_gt_u32 s{sW}, 3
        s_cbranch_scc1 L_B
        """)
        finish(vm.copy())
        e(wo_addr)
        e(t3_addr)
        e(f"""
        s_cmp_eq_u32 s{sW}, 0
        s_waitcnt lgkmcnt(0)
        s_barrier
        s_cbranch_scc1 L_c3
        """)
        stamp(5)
        issue_wo(vm.copy())
        e(f"""
        s_branch L_bf3
        L_B:
        s_cmp_gt_u32 s{sW}, 5
        s_cbranch_scc1 L_B67
        """)
    else:
        e(f"""
        s_cmp_eq_u32 s{sW}, 0
        s_cbranch_scc1 L_c3a
        s_cmp_gt_u32 s{sW}, 5
        s_cbranch_scc1 L_B67
        """)
    e(wo_addr)
    e(f"""
    s_waitcnt lgkmcnt(0)
    s_barrier
    """)
    stamp(5)
    vb = vm.copy()
    issue_wo(vb)
    e(t3_addr)
    finish(vb)
    X = vH + 8
    F0, F1 = vH + 16, vH + 17
    D0, D1, E = vS, vS + 4, vD
    PB = vQ
    o_loads = f"""
    buffer_load_dwordx2 {vr(X,2)}, v{vPa}, {srd(WS_)}, s{sA} offen sc1
    buffer_load_dwordx2 {vr(X+2,2)}, v{vPa}, {srd(WS_)}, s{sA} offen offset:512 sc1
    """
    o_check = f"""
    v_max3_u32 v{vT0}, v{X}, v{X+1}, v{X+2}
    v_max_u32 v{vT0}, v{vT0}, v{X+3}
    v_cmp_eq_u32 vcc, -1, v{vT0}
    """
    e(f"""
    L_bf3:
    s_waitcnt lgkmcnt(0)
    s_barrier
    """)
    stamp(7)
    M0, M1 = sP0 + 2, sP0 + 4

    def o_repoll(k):
        e(f"""
        v_max_u32 v{vT0}, v{X}, v{X+1}
        v_max_u32 v{vT1}, v{X+2}, v{X+3}
        v_cmp_eq_u32 {sp(M0)}, -1, v{vT0}
        v_cmp_eq_u32 {sp(M1)}, -1, v{vT1}
        s_or_b64 exec, {sp(M0)}, {sp(M1)}
        s_cbranch_scc0 L_or{k}c
        s_mov_b64 exec, {sp(M0)}
        s_cbranch_execz L_or{k}a
        buffer_load_dwordx2 {vr(X,2)}, v{vPa}, {srd(WS_)}, s{sA} offen sc1
        L_or{k}a:
        s_mov_b64 exec, {sp(M1)}
        s_cbranch_execz L_or{k}b
        buffer_load_dwordx2 {vr(X+2,2)}, v{vPa}, {srd(WS_)}, s{sA} offen offset:512 sc1
        L_or{k}b:
        s_mov_b64 exec, -1
        """)

    if sel:
        e(f"""
        L_t3b:
        s_cbranch_execz L_t3c
        {o_loads}
        L_ml:
        buffer_load_dwordx2 {vr(X+4,2)}, v{vPb}, {srd(WS_)}, s{sA} offen offset:1024 sc1
        buffer_load_dwordx2 {vr(X+6,2)}, v{vPb}, {srd(WS_)}, s{sA} offen offset:1056 sc1
        s_waitcnt vmcnt(0)
        """)
        o_repoll(0)
        e(f"""
        s_branch L_t3c
        L_or0c:
        s_mov_b64 exec, -1
        L_t3c:
        v_min_f32 v{vMx}, v{X+4}, v{X+6}
        """)
    else:
        e(f"""
        L_t3b:
        s_cbranch_execz L_t3c
        L_ml:
        buffer_load_dwordx2 {vr(X+4,2)}, v{vPb}, {srd(WS_)}, s{sA} offen offset:1024 sc1
        buffer_load_dwordx2 {vr(X+6,2)}, v{vPb}, {srd(WS_)}, s{sA} offen offset:1056 sc1
        {o_loads}
        s_waitcnt vmcnt(0)
        {o_check}
        s_mov_b64 {sp(sP0+2)}, vcc
        s_cbranch_vccz L_t3c
        {o_loads}
        L_t3c:
        v_min_f32 v{vMx}, v{X+4}, v{X+6}
        """)
    allreduce(vMx, vT0, "v_min_f32")
    e(f"""
    v_sub_f32 v{F0}, v{vMx}, v{X+4}
    v_sub_f32 v{F1}, v{vMx}, v{X+6}
    v_exp_f32 v{F0}, v{F0}
    v_exp_f32 v{F1}, v{F1}
    v_mul_f32 v{vMx}, v{F0}, v{X+5}
    v_fmac_f32 v{vMx}, v{F1}, v{X+7}
    """)
    allreduce(vMx, vT0, "v_add_f32")
    e(f"""
    v_cmp_u_f32 vcc, v{vMx}, v{vMx}
    s_cbranch_vccz L_ml_ok
    {"" if sel else "s_waitcnt vmcnt(0)"}
    {SPIN("L_ml")}
    L_ml_ok:
    v_rcp_f32 v{vMx}, v{vMx}
    v_mul_f32 v{F0}, v{F0}, v{vMx}
    v_mul_f32 v{F1}, v{F1}, v{vMx}
    """)
    stamp(8)
    if sel:
        e(f"""
        s_cbranch_execz L_t3e
        s_or_b64 {sp(M0)}, {sp(M0)}, {sp(M1)}
        s_cbranch_scc0 L_t3e
        L_h1:
        s_waitcnt vmcnt(0)
        """)
        o_repoll(1)
        e(f"""
        {SPIN("L_h1")}
        s_waitcnt vmcnt(0)
        L_or1c:
        s_mov_b64 exec, -1
        L_t3e:
        """)
    else:
        e(f"""
        s_cbranch_execz L_t3e
        s_cmp_eq_u64 {sp(sP0+2)}, 0
        s_cbranch_scc1 L_t3e
        L_h1:
        s_waitcnt vmcnt(0)
        {o_check}
        s_cbranch_vccz L_t3e
        {o_loads}
        {SPIN("L_h1")}
        s_waitcnt vmcnt(0)
        L_t3e:
        """)
    stamp(9)
    e(f"""
    v_mfma_f32_16x16x4_f32 {vr(D0,4)}, v{X}, v{F0}, 0
    v_mfma_f32_16x16x4_f32 {vr(D1,4)}, v{X+1}, v{F0}, 0
    v_mfma_f32_16x16x4_f32 {vr(D0,4)}, v{X+2}, v{F1}, {vr(D0,4)}
    v_mfma_f32_16x16x4_f32 {vr(D1,4)}, v{X+3}, v{F1}, {vr(D1,4)}
    """)
    for r in range(4):
        e(f"v_cvt_pk_bf16_f32 v{PB+2*r}, v{D0+r}, v{D0+r}")
    for r in range(4):
        e(f"v_cvt_pk_bf16_f32 v{PB+2*r+1}, v{D1+r}, v{D1+r}")
    diag_mfma(E, [PB + r for r in range(8)], [RING + 16 * wo_slots[r >> 2] + 4 * (r & 3) for r in range(8)], True)
    e(f"""
    s_cbranch_execz L_t4b
    s_mov_b64 exec, {sp(sP0)}
    buffer_store_dwordx4 {vr(E,4)}, v{vPc}, {srd(WS_)}, s{sB} offen sc1
    """)
    stamp(11)
    e(FIN)
    if not asplit:
        e(f"""
        L_c3a:
        v_mov_b32 v{vPd}, 0
        s_waitcnt lgkmcnt(0)
        s_barrier
        """)
    e("L_c3:")
    stamp(5)
    e(f"""
    v_lshrrev_b32 v{vT0}, 5, v{vL}
    v_lshlrev_b32 v{vPb}, 6, v{vT0}
    """)
    for i in range(4):
        e(f"ds_read_b128 {vr(Z+4*i,4)}, v{vPb} offset:{LDS_ML+16*i}")
    e(f"""
    v_bfe_u32 v{vT1}, v{vL}, 2, 2
    v_lshl_or_b32 v{vT1}, v{vT0}, 2, v{vT1}
    v_lshlrev_b32 v{vPc}, 11, v{vT1}
    v_and_b32 v{vT1}, 3, v{vL}
    v_lshl_or_b32 v{vPa}, v{vT1}, 5, v{vPc}
    v_and_b32 v{vT1}, 16, v{vL}
    v_or_b32 v{vPa}, v{vPa}, v{vT1}
    s_and_b32 s{sA}, s{sLid}, 0xf8
    s_lshl_b32 s{sA}, s{sA}, 11
    s_add_u32 s{sA}, s{sA}, {WS_H1}
    s_lshl_b32 s{sT0}, s{sS}, 3
    s_add_u32 s{sB}, s{sA}, s{sT0}
    s_lshl_b32 s{sT0}, s{sS}, 7
    s_add_u32 s{sA}, s{sA}, s{sT0}
    s_waitcnt lgkmcnt(0)
    v_min3_f32 v{vT2}, v{Z}, v{Z+2}, v{Z+4}
    v_min3_f32 v{vT0}, v{Z+6}, v{Z+8}, v{Z+10}
    v_min3_f32 v{vT2}, v{vT2}, v{Z+12}, v{Z+14}
    v_min_f32 v{vT2}, v{vT2}, v{vT0}
    """)
    for w in range(8):
        e(f"v_sub_f32 v{Z+2*w}, v{vT2}, v{Z+2*w}")
    for w in range(8):
        e(f"v_exp_f32 v{Z+2*w}, v{Z+2*w}")
    e(f"v_mul_f32 v{vT2+1}, v{Z}, v{Z+1}")
    for w in range(1, 8):
        e(f"v_fmac_f32 v{vT2+1}, v{Z+2*w}, v{Z+2*w+1}")
    e(f"""
    s_mov_b32 exec_lo, 0x1111
    s_mov_b32 exec_hi, 0x1111
    buffer_store_dwordx2 {vr(vT2,2)}, v{vPc}, {srd(WS_)}, s{sB} offen offset:1024 sc1
    s_mov_b64 exec, -1
    """)
    if not asplit:
        finish(vm.copy())
    Y = [RING + 16 * fs[-1 - (w >> 2)] + 4 * (w & 3) for w in range(8)]
    e(f"""
    s_waitcnt lgkmcnt(0)
    s_barrier
    """)
    stamp(7)
    e("L_t2b:")
    for w in range(8):
        e(f"ds_read_b128 {vr(Y[w],4)}, v{vLin} offset:{LDS_RED+1024*w}")
    for w in range(8):
        if w in (0, 2, 4, 6):
            e(f"s_waitcnt lgkmcnt({6-w})")
        for h in (0, 2):
            if w == 0:
                e(f"v_pk_mul_f32 {vr(vD+h,2)}, {vr(Y[0]+h,2)}, {vr(Z,2)} op_sel_hi:[1,0]")
            else:
                e(f"v_pk_fma_f32 {vr(vD+h,2)}, {vr(Y[w]+h,2)}, {vr(Z+2*w,2)}, {vr(vD+h,2)} op_sel_hi:[1,0,1]")
    e(f"""
    s_cbranch_execz L_t3b
    buffer_store_dwordx4 {vr(vD,4)}, v{vPa}, {srd(WS_)}, s{sA} offen sc1
    """)
    stamp(11)
    e(FIN)
    R = RING + 16 * fs[-1]
    e(f"""
    L_B67:
    s_waitcnt lgkmcnt(0)
    s_barrier
    """)
    stamp(5)
    e(f"""
    v_lshrrev_b32 v{vT0}, 4, v{vL}
    v_and_b32 v{vT1}, 1, v{vL}
    v_lshlrev_b32 v{vT0}, 1, v{vT0}
    v_lshl_or_b32 v{vPd}, v{vT1}, 3, v{vT0}
    s_lshl_b32 s{sP0+2}, s{sLid}, 12
    s_add_u32 s{sP0+2}, s{sP0+2}, {WS_I2}
    s_lshr_b32 s{sP0+3}, s{sLid}, 7
    s_mul_i32 s{sP0+3}, s{sP0+3}, 1152
    s_lshl_b32 s{sT0}, s{sIdx}, 4
    s_add_u32 s{sP0+3}, s{sP0+3}, s{sT0}
    v_add_u32 v{vPd}, s{sP0+3}, v{vPd}
    s_and_b32 s{sEp}, s{sLid}, 0x80
    s_add_u32 s{sEp}, s{sEp}, {WS_EP}
    s_load_dword s{sTag}, {sp(WS_)}, s{sEp}
    v_mov_b32 v{vPc}, s{sEp}
    """)
    finish(vm.copy())
    e(f"""
    s_waitcnt lgkmcnt(0)
    s_barrier
    """)
    stamp(7)
    e(f"""
    s_cmp_lg_u32 s{sW}, 6
    s_cbranch_scc1 L_fin
    s_cmp_ge_u32 s{sIdx}, 72
    s_cbranch_scc1 L_fin
    L_t4b:
    s_cbranch_execz L_t4c
    {"" if sel else "L_h2:"}
    """)
    for i in range(4):
        e(f"buffer_load_dwordx4 {vr(R+4*i,4)}, v{vLin}, {srd(WS_)}, s{sP0+2} offen offset:{1024*i} sc1")
    if sel:
        MM = [sF + 2 * i for i in range(4)]
        e("L_h2:")
        e("s_waitcnt vmcnt(0)")
        for i in range(4):
            e(f"v_max3_u32 v{vA+i}, v{R+4*i}, v{R+4*i+1}, v{R+4*i+2}")
        for i in range(4):
            e(f"v_max_u32 v{vA+i}, v{vA+i}, v{R+4*i+3}")
        for i in range(4):
            e(f"v_cmp_eq_u32 {sp(MM[i])}, -1, v{vA+i}")
        e(f"""
        s_or_b64 vcc, {sp(MM[0])}, {sp(MM[1])}
        s_or_b64 exec, {sp(MM[2])}, {sp(MM[3])}
        s_or_b64 exec, exec, vcc
        s_cbranch_scc0 L_h2_got
        """)
        for i in range(4):
            e(f"""
            s_mov_b64 exec, {sp(MM[i])}
            s_cbranch_execz L_h2_{i}
            buffer_load_dwordx4 {vr(R+4*i,4)}, v{vLin}, {srd(WS_)}, s{sP0+2} offen offset:{1024*i} sc1
            L_h2_{i}:
            """)
        e(f"""
        s_mov_b64 exec, -1
        {SPIN("L_h2")}
        s_waitcnt vmcnt(0)
        L_h2_got:
        s_mov_b64 exec, -1
        """)
    else:
        e("s_waitcnt vmcnt(0)")
    e("L_t4c:")
    pk_sum(R, 4)
    e(f"""
    v_permlane32_swap_b32 v{R}, v{R+2}
    v_permlane32_swap_b32 v{R+1}, v{R+3}
    v_add_f32 v{R}, v{R}, v{R+2}
    v_add_f32 v{R+1}, v{R+1}, v{R+3}
    v_permlane16_swap_b32 v{R}, v{R+1}
    v_add_f32 v{R}, v{R}, v{R+1}
    v_add_f32_dpp v{R}, v{R}, v{R} row_ror:2 row_mask:0xf bank_mask:0xf
    v_add_f32_dpp v{R}, v{R}, v{R} row_ror:4 row_mask:0xf bank_mask:0xf
    v_add_f32_dpp v{R}, v{R}, v{R} row_ror:8 row_mask:0xf bank_mask:0xf
    """)
    if not sel:
        e(f"""
        v_cmp_u_f32 vcc, v{R}, v{R}
        s_cbranch_vccz L_h2_ok
        {SPIN("L_h2")}
        L_h2_ok:
        """)
    e(f"""
    v_cvt_pk_bf16_f32 v{R}, v{R}, v{R}
    """)
    stamp(9)
    if dry:
        e("s_cbranch_execz L_dry_ret")
    e(f"""
    s_mov_b32 exec_lo, 0x30003
    s_mov_b32 exec_hi, 0x30003
    global_store_short v{vPd}, v{R}, {sp(OUT_)}
    s_cmp_lg_u32 s{sIdx}, 0
    s_cbranch_scc1 L_fin
    s_add_u32 s{sTag}, s{sTag}, {EPC}
    v_mov_b32 v{R+1}, s{sTag}
    s_mov_b64 exec, 1
    global_store_dword v{vPc}, v{R+1}, {sp(WS_)}
    L_fin:
    """)
    if prof:
        e("s_waitcnt vmcnt(0)")
        stamp(10)
        e(f"""
        s_waitcnt lgkmcnt(0)
        s_mov_b64 exec, 1
        s_lshl_b32 s{sT0}, s{sLid}, 3
        s_add_u32 s{sT0}, s{sT0}, s{sW}
        s_lshl_b32 s{sT0}, s{sT0}, 6
        s_add_u32 s{sT0}, s{sT0}, {WS_PROF}
        v_mov_b32 v0, 0
        """)
        if pmode == 5:
            stamp(16, 5)
            e(f"s_lshl_b32 s{sT0}, s{sLid}, 3")
            e(f"s_add_u32 s{sT0}, s{sT0}, s{sW}")
            e(f"s_lshl_b32 s{sT0}, s{sT0}, 7")
            e(f"s_add_u32 s{sT0}, s{sT0}, {WS_PROF}")
            for k in range(16):
                e(f"v_mov_b32 v{8+k}, s{sProf+k}")
            for k in range(6):
                e(f"v_mov_b32 v{24+k}, s{sProf+16+2*k}")
            e(f"s_getreg_b32 s{sT1}, hwreg(HW_REG_XCC_ID)")
            e(f"v_mov_b32 v30, s{sT1}")
            e(f"s_getreg_b32 s{sT1}, hwreg(HW_REG_HW_ID)")
            e(f"v_mov_b32 v31, s{sT1}")
            for k in range(6):
                e(f"buffer_store_dwordx4 v[{8+4*k}:{11+4*k}], v0, {srd(WS_)}, s{sT0} offen offset:{16*k}")
        else:
          for k in range(14):
            e(f"v_mov_b32 v{8+k}, s{sProf+2*k}")
          e(f"s_getreg_b32 s{sT1}, hwreg(HW_REG_XCC_ID)")
          e(f"v_mov_b32 v22, s{sT1}")
          e(f"v_mov_b32 v23, s{sSpin}")
          for k in range(4):
            e(f"buffer_store_dwordx4 v[{8+4*k}:{11+4*k}], v0, {srd(WS_)}, s{sT0} offen offset:{16*k}")
    if pad:
        e(f"""
        s_waitcnt vmcnt(0) lgkmcnt(0)
        L_pad:
        s_memrealtime {sp(sProf+2)}
        s_waitcnt lgkmcnt(0)
        s_sub_u32 s{sT0}, s{sProf+2}, s{sProf}
        s_cmp_lt_u32 s{sT0}, {pad}
        s_cbranch_scc1 L_pad
        """)
    e("L_end:")
    e("s_endpgm")
    nsg = (sProf + 32 if pmode == 5 else sProf + 28) if (prof or pad) else sProf
    e.raw(f""".section .rodata,"a"
.p2align 6
.amdhsa_kernel {KNAME}
  .amdhsa_next_free_vgpr 256
  .amdhsa_next_free_sgpr {nsg}
  .amdhsa_accum_offset 256
  .amdhsa_group_segment_fixed_size 0
  .amdhsa_kernarg_size 104
  .amdhsa_user_sgpr_count 2
  .amdhsa_user_sgpr_kernarg_segment_ptr 1
  .amdhsa_system_sgpr_workgroup_id_x 1
.end_amdhsa_kernel""")
    return e.text()


if __name__ == "__main__":
    kw = {}
    for a in sys.argv[2:]:
        k, v = a.split("=")
        try:
            v = int(v, 0)
        except ValueError:
            pass
        kw[k] = v
    open(sys.argv[1], "w").write(gen(**kw))
```

```python
import sys
from emit import Emitter

KNAME = "concat_heads__gqa_block_cached__gqa_block_cached__decode_kernel"
HEADER = open("header.txt").read()

WS_QP, WS_EP, WS_FL, WS_H1, WS_I2, WS_PROF = 0x0, 0x10000, 0x20000, 0x40000, 0x100000, 0x200000
WS_ML = 0x30000
EPC = 0x9e3779b9
LDS_Q, LDS_PART, LDS_ML, LDS_CNT, LDS_RED, LDS_SIZE = 0, 512, 1280, 1408, 2048, 10240

vL, vLin, vK, vX = 0, 1, 2, 3
vZ = 54
vM = 4
vQ = 8
vS = 24
vA = 40
vD = 48
vMx, vAl, vAD, vT0 = 52, 53, 54, 55
vLs = 56
vN0, vT1 = 58, 59
vN1, vLt = 60, 61
vT2 = 62
RING = 64
NSLOT = 10
vH = 224
sKa, sKvh, sS, sIdx, sLid, sW, sT0, sT1 = 3, 5, 6, 7, 8, 9, 10, 11
K_, V_, WQ_, WO_, WS_ = 12, 16, 20, 24, 28
OUT_, DBG_, sX = 32, 34, 36
sF = 60
sTag, sEp, sFo = 38, 58, 59
sC, sStep, sK, sV, sWq, sWo, sWo2, sSpin = 40, 41, 42, 43, 44, 45, 46, 47
sA, sB, sWm = 48, 4, 49
sP0 = 50
sMl = 69
sXc = 62
sProf = 70


def srd(b):
    return f"s[{b}:{b+3}]"


def sp(b):
    return f"s[{b}:{b+1}]"


def vr(b, n):
    return f"v[{b}:{b+n-1}]"


class VM:
    def __init__(self, e):
        self.e = e
        self.ops = []
        self.done = 0

    def add(self, tag):
        self.ops.append(tag)

    def wait_n(self, n):
        n = max(n, 0)
        if len(self.ops) - self.done > n:
            assert n <= 63
            self.e(f"s_waitcnt vmcnt({n})")
            self.done = len(self.ops) - n

    def wait_tag(self, tag):
        last = max(i for i, t in enumerate(self.ops) if t == tag)
        self.wait_n(len(self.ops) - 1 - last)

    def copy(self):
        v = VM(self.e)
        v.ops = list(self.ops)
        v.done = self.done
        return v


def gen(npre=6, upre=12, umain=12, uctl=12, la=3, ratio=2, jctl=1, jpoll=6, pr="6,10,13", woat=14, wosplit=1, wqnoqw=0, wqnocomp=0, wqnotail=0, wqnoclr=0, clr=1, t4bar=1, lay=1, xl=1, idmap=0, t3=1, early=1, p4=0, p3=0, osc="", t3c=0, uq=0, pf1=9, pf2=11, nt="nt", ntq="nt", lead=1, prof=False,
        spin=1 << 16, prio=True, pad=0, dry=False, pmode=1, asplit=True, qprio=0, cprio2=-1, rot=0, noflag=0, sx=0, wqp=-1, sel=1, cx=0, wqoff=0, wqsrc=24, wqstr=13, seg=64):
    e = Emitter()
    NT = (" " + nt) if nt else ""
    NTQ = (" " + ntq) if ntq else ""
    if lead == 1:
        seq = ["K0", "K1"] + [x for n in range(6) for x in (f"V{n}", f"K{n+2}")] + ["V6", "V7"]
    elif lead == 2:
        seq = ["K0", "K1", "K2"] + [x for n in range(5) for x in (f"V{n}", f"K{n+3}")] + ["V5", "V6", "V7"]
    assert len(seq) == 16 and len(set(seq)) == 16
    free = list(range(NSLOT - 2 if woat >= 0 else NSLOT))
    slot = {}
    steps = [int(x) for x in str(pr).split(",") if x != ""]
    p0 = len(steps)
    assert p0 <= 3

    P5 = {0: 0, 1: 1, 3: 2, 5: 3, 7: 4, 10: 5}

    def stamp(k, kind=1):
        if prof and pmode == 5:
            if kind == 1 and k in P5:
                e(f"s_memrealtime {sp(sProf+16+2*P5[k])}")
            if kind == 5:
                if k > 0:
                    e("s_waitcnt lgkmcnt(0)")
                    e(f"s_mov_b32 s{sProf+k-1}, s{sProf+28+2*((k-1)&1)}")
                if k < 16:
                    e(f"s_memrealtime {sp(sProf+28+2*(k&1))}")
        elif prof and ((k == 0 and kind == 1) or (kind == pmode and kind != 5)):
            e(f"s_memrealtime {sp(sProf+2*k)}")

    FIN = "s_branch L_fin" if (prof or pad) else "s_endpgm"

    def issue_load(t, i):
        r = RING + 16 * slot[t] + 4 * i
        if t[0] == "K":
            e(f"buffer_load_dwordx4 {vr(r,4)}, v{vK}, {srd(K_)}, s{sK} offen offset:{64*i}{NT}")
        else:
            e(f"buffer_load_dwordx4 {vr(r,4)}, v{vLin}, {srd(V_)}, s{sV} offen offset:{1024*i}{NT}")

    def issue_end(t):
        if t[1] != "7":
            s = sK if t[0] == "K" else sV
            e(f"s_add_u32 s{s}, s{s}, s{sStep}")
        if seq.index(t) >= 3:
            stamp(seq.index(t) - 2, 2)
        if seq.index(t) <= 12:
            stamp(seq.index(t) + 1, 3)
        stamp(seq.index(t), 5)

    def issue(vm, t, u=None, ctl=False):
        if t not in slot:
            slot[t] = free.pop(0)
        if seq.index(t) in steps and not ctl:
            e(f"s_setprio {p0 - 1 - steps.index(seq.index(t))}")
        for i in range(4):
            if u is not None:
                vm.wait_n(u - 1)
            issue_load(t, i)
            vm.add(t)
        issue_end(t)

    def SPIN(lbl):
        return f"s_addk_i32 s{sSpin}, -1\ns_cmpk_gt_i32 s{sSpin}, 0\ns_cbranch_scc1 {lbl}"

    def pk_sum(base, n):
        step = 1
        while step < n:
            for i in range(0, n - step, 2 * step):
                for h in (0, 2):
                    a, b = base + 4 * i + h, base + 4 * (i + step) + h
                    e(f"v_pk_add_f32 {vr(a,2)}, {vr(a,2)}, {vr(b,2)}")
            step *= 2

    def allreduce(v, tmp, op):
        e(f"v_mov_b32 v{tmp}, v{v}")
        e(f"v_permlane16_swap_b32 v{v}, v{tmp}")
        e(f"{op} v{v}, v{v}, v{tmp}")
        e(f"v_mov_b32 v{tmp}, v{v}")
        e(f"v_permlane32_swap_b32 v{v}, v{tmp}")
        e(f"{op} v{v}, v{v}, v{tmp}")

    vRed, vMLw, vWo, vPa, vPb, vPc, vPd = vH, vH + 1, vH + 2, vH + 3, vH + 4, vH + 5, vH + 6
    vXr = vH + 24
    vPoll = vH + 24
    vXs = vS
    vAcc = vA

    wo_addr = f"""
    s_movk_i32 s{sT1}, 0x2400
    v_lshrrev_b32 v{vT1}, 4, v{vL}
    v_and_b32 v{vWo}, 0xff, v{vLin}
    v_mad_u32_u24 v{vWo}, v{vT1}, s{sT1}, v{vWo}
    s_lshl_b32 s{sT0}, s{sWm}, 4
    v_and_b32 v{vT1}, 15, v{vL}
    v_add_u32 v{vT1}, s{sT0}, v{vT1}
    v_cmp_gt_u32 vcc, 72, v{vT1}
    v_mov_b32 v{vT1}, 0x40000000
    s_mul_i32 s{sWo}, s{sIdx}, 0x9000
    s_lshl_b32 s{sT0}, s{sWm}, 8
    s_add_u32 s{sWo}, s{sWo}, s{sT0}
    v_cndmask_b32 v{vWo}, v{vT1}, v{vWo}, vcc
    s_add_u32 s{sWo2}, s{sWo}, 4608
    """
    t3_addr1 = f"""
    v_lshrrev_b32 v{vT0}, 4, v{vL}
    v_lshlrev_b32 v{vPb}, 7, v{vT0}
    v_bfe_u32 v{vT1}, v{vL}, 2, 2
    v_lshlrev_b32 v{vPc}, 7, v{vT1}
    v_lshl_or_b32 v{vPc}, v{vT0}, 6, v{vPc}
    v_lshl_or_b32 v{vPa}, v{vT1}, 4, v{vPb}
    v_and_b32 v{vT1}, 3, v{vL}
    v_lshl_or_b32 v{vPc}, v{vT1}, 4, v{vPc}
    v_and_b32 v{vT1}, 1, v{vL}
    v_lshl_or_b32 v{vPa}, v{vT1}, 3, v{vPa}
    v_and_b32 v{vT1}, 2, v{vL}
    v_lshl_or_b32 v{vPa}, v{vT1}, 5, v{vPa}
    v_mov_b32 v{vPd}, 0
    s_lshl_b32 s{sA}, s{sLid}, 11
    s_add_u32 s{sA}, s{sA}, {WS_H1}
    s_mul_i32 s{sB}, s{sLid}, 2304
    s_lshl_b32 s{sT0}, s{sWm}, 9
    s_add_u32 s{sB}, s{sB}, s{sT0}
    s_add_u32 s{sB}, s{sB}, {WS_I2}
    s_and_b32 s{sMl}, s{sLid}, 0xf8
    s_lshl_b32 s{sMl}, s{sMl}, 7
    s_and_b32 s{sT0}, s{sLid}, 4
    s_lshl_b32 s{sT0}, s{sT0}, 4
    s_add_u32 s{sMl}, s{sMl}, s{sT0}
    s_add_u32 s{sMl}, s{sMl}, {WS_ML}
    s_cmp_eq_u32 s{sWm}, 4
    s_cselect_b32 s{sP0}, 0x00ff00ff, -1
    s_mov_b32 s{sP0+1}, 0
    """
    t3_addr = f"""
    v_and_b32 v{vPa}, 15, v{vL}
    v_lshrrev_b32 v{vT0}, 4, v{vL}
    v_lshlrev_b32 v{vPb}, 3, v{vT0}
    v_lshlrev_b32 v{vPc}, 12, v{vPa}
    v_lshl_or_b32 v{vPc}, v{vT0}, 4, v{vPc}
    v_lshlrev_b32 v{vPa}, 3, v{vPa}
    v_lshl_or_b32 v{vPa}, v{vT0}, 7, v{vPa}
    v_mov_b32 v{vPd}, 0
    s_lshl_b32 s{sA}, s{sLid}, 11
    s_add_u32 s{sA}, s{sA}, {WS_H1}
    s_and_b32 s{sB}, s{sLid}, 0x80
    s_lshl_b32 s{sB}, s{sB}, 12
    s_lshl_b32 s{sT0}, s{sWm}, 16
    s_add_u32 s{sB}, s{sB}, s{sT0}
    s_lshl_b32 s{sT0}, s{sIdx}, 5
    s_add_u32 s{sB}, s{sB}, s{sT0}
    s_add_u32 s{sB}, s{sB}, {WS_I2}
    s_cmp_eq_u32 s{sWm}, 4
    s_cselect_b32 s{sP0}, 0x00ff00ff, -1
    s_mov_b32 s{sP0+1}, 0
    """

    if lay:
        t3_addr = t3_addr1
    if lay == 2:
        t3_addr += f"""
        v_lshrrev_b32 v{vT0}, 4, v{vL}
        v_and_b32 v{vT1}, 7, v{vL}
        v_lshlrev_b32 v{vPc}, 4, v{vT1}
        v_lshl_or_b32 v{vPc}, v{vT0}, 7, v{vPc}
        v_and_b32 v{vT1}, 8, v{vL}
        v_lshl_or_b32 v{vPc}, v{vT1}, 5, v{vPc}
        """

    def issue_wo(vm, u=None, r0=0, r1=8):
        for r in range(r0, r1):
            reg = RING + 16 * wo_slots[r >> 2] + 4 * (r & 3)
            if u is not None:
                vm.wait_n(u - 1)
            e(f"buffer_load_dwordx4 {vr(reg,4)}, v{vWo}, {srd(WO_)}, s{sWo if r < 4 else sWo2} offen offset:{1152*(r&3)}{NT}")
            vm.add("wo")
    wo_slots = [NSLOT - 2, NSLOT - 1]

    e.raw(HEADER.rstrip())
    e.raw(f"; @launch grid=(256,1,1) block=(512,1,1) lds={LDS_SIZE}")
    e.raw('.amdgcn_target "amdgcn-amd-amdhsa--gfx950"')
    e.raw(".text")
    e.raw(f".globl {KNAME}")
    e.raw(".p2align 8")
    e.raw(f".type {KNAME},@function")
    e.raw(f"{KNAME}:")
    stamp(0)
    if prof and pmode != 5:
        for k in range(1, 14):
            e(f"s_mov_b32 s{sProf+2*k}, 0")
    if pad:
        e(f"s_memrealtime {sp(sProf)}")
    e(f"""
    s_lshr_b32 s{sT0}, s2, 8
    s_cbranch_scc1 L_end
    s_bitcmp1_b32 s2, {7 if idmap else 2}
    s_cselect_b32 s{sKa}, 40, 0
    s_load_dwordx2 {sp(WQ_)}, s[0:1], s{sKa} offset:{wqsrc}
    s_load_dwordx2 {sp(sX)}, s[0:1], s{sKa} offset:0
    s_load_dwordx2 {sp(WS_)}, s[0:1], 96
    s_load_dwordx2 {sp(K_)}, s[0:1], s{sKa} offset:8
    s_load_dwordx2 {sp(V_)}, s[0:1], s{sKa} offset:16
    s_load_dwordx2 {sp(WO_)}, s[0:1], s{sKa} offset:32
    s_load_dwordx2 {sp(OUT_)}, s[0:1], 80
    v_lshrrev_b32 v{vLin}, 6, v0
    v_and_b32 v{vL}, 63, v0
    v_readfirstlane_b32 s{sW}, v{vLin}
    s_and_b32 s{sT0}, s2, 7
    s_lshl_b32 s{sT0}, s{sT0}, 5
    s_lshr_b32 s{sLid}, s2, 3
    s_or_b32 s{sLid}, s{sLid}, s{sT0}
    {f"s_mov_b32 s{sLid}, s2" if idmap else (f"s_xor_b32 s{sLid}, s{sLid}, {sx}" if sx else "")}
    s_and_b32 s{sIdx}, s{sLid}, 0x7f
    s_mov_b32 s{WQ_+2}, 0x480000
    s_mov_b32 s{WQ_+3}, 0x20000
    s_mov_b32 s{WS_+2}, 0x400000
    s_mov_b32 s{WS_+3}, 0x20000
    v_lshlrev_b32 v{vLin}, 4, v{vL}
    v_and_b32 v{vT0}, 3, v{vL}
    v_lshrrev_b32 v{vT1}, 2, v{vL}
    v_mov_b32 v{vX}, 0
    s_sub_u32 s{sWm}, s{sW}, 1
    s_cbranch_scc1 L_clear
    s_cmp_eq_u32 s{sW}, 7
    s_cbranch_scc1 L_wait0
    s_mul_i32 s{sT0}, s{sWm}, 0xc0
    v_mul_u32_u24 v{vX}, 0xc000, v{vT1}
    v_mul_u32_u24 v{vT2}, 12, v{vT1}
    v_lshl_or_b32 v{vX}, v{vT0}, 4, v{vX}
    v_add_u32 v{vT2}, s{sT0}, v{vT2}
    s_lshl_b32 s{sWq}, s{sT0}, 12
    s_xor_b32 s{sT1}, s{sIdx}, {cx}
    s_lshl_b32 s{sT1}, s{sT1}, 6
    s_add_u32 s{sWq}, s{sWq}, s{sT1}
    s_setprio {max(qprio, p0)}
    """)
    wstep = 0x2000
    if seg == 32:
        e(f"""
        v_mul_u32_u24 v{vX}, 0xc000, v{vT1}
        v_and_b32 v{vA}, 1, v{vL}
        v_lshl_or_b32 v{vX}, v{vA}, 4, v{vX}
        v_and_b32 v{vA}, 2, v{vL}
        v_lshl_or_b32 v{vX}, v{vA}, 7, v{vX}
        s_lshl_b32 s{sWq}, s{sT0}, 12
        s_and_b32 s{sT1}, s{sIdx}, 0x78
        s_lshl_b32 s{sT1}, s{sT1}, 6
        s_add_u32 s{sWq}, s{sWq}, s{sT1}
        s_and_b32 s{sT1}, s{sIdx}, 7
        s_lshl_b32 s{sT1}, s{sT1}, 5
        s_add_u32 s{sWq}, s{sWq}, s{sT1}
        """)
    if seg == 16:
        e(f"""
        v_mul_u32_u24 v{vX}, 0xc000, v{vT1}
        v_lshl_or_b32 v{vX}, v{vT0}, 7, v{vX}
        s_lshl_b32 s{sWq}, s{sT0}, 12
        s_and_b32 s{sT1}, s{sIdx}, 0x78
        s_lshl_b32 s{sT1}, s{sT1}, 6
        s_add_u32 s{sWq}, s{sWq}, s{sT1}
        s_and_b32 s{sT1}, s{sIdx}, 7
        s_lshl_b32 s{sT1}, s{sT1}, 4
        s_add_u32 s{sWq}, s{sWq}, s{sT1}
        """)
    if wqoff:
        e(f"s_add_u32 s{sWq}, s{sWq}, {wqoff}")
    if wqstr != 13:
        wstep = wqstr
        e(f"""
        v_mul_u32_u24 v{vX}, {6*wqstr}, v{vT1}
        v_lshl_or_b32 v{vX}, v{vT0}, 4, v{vX}
        s_mul_i32 s{sWq}, s{sWm}, {96*wqstr}
        s_lshl_b32 s{sT1}, s{sIdx}, 6
        s_add_u32 s{sWq}, s{sWq}, s{sT1}
        """)
    if wqp >= 0:
        S = 64 << wqp
        rpl = 1024 // S
        wstep = rpl * 8192
        e(f"""
        v_lshrrev_b32 v{vX}, {2+wqp}, v{vL}
        v_lshlrev_b32 v{vX}, 13, v{vX}
        v_and_b32 v{vA}, {(4<<wqp)-1}, v{vL}
        v_lshl_or_b32 v{vX}, v{vA}, 4, v{vX}
        s_and_b32 s{sT0}, s{sIdx}, {(1<<wqp)-1}
        s_mul_i32 s{sT0}, s{sT0}, 6
        s_add_u32 s{sT0}, s{sT0}, s{sWm}
        s_mul_i32 s{sWq}, s{sT0}, {6*wstep}
        s_lshr_b32 s{sT0}, s{sIdx}, {wqp}
        s_mul_i32 s{sT0}, s{sT0}, {S}
        s_add_u32 s{sWq}, s{sWq}, s{sT0}
        """)
    stamp(1, 4)
    e("s_waitcnt lgkmcnt(0)")
    stamp(2, 4)
    e(f"global_load_dwordx3 {vr(vXr,3)}, v{vT2}, {sp(sX)}")
    for i in range(6):
        e(f"buffer_load_dwordx4 {vr(vH+4*i,4)}, v{vX}, {srd(WQ_)}, s{sWq} offen{NTQ}")
        if i < 5:
            e(f"s_add_u32 s{sWq}, s{sWq}, {wstep}" if wstep != 0x2000 else f"s_addk_i32 s{sWq}, 0x2000")
    stamp(3, 4)
    e("s_branch L_t0")
    e("L_clear:")
    if prio:
        e("s_setprio 3")
    def clears(lbl):
        if lay:
            e(f"""
            s_lshl_b32 s{sT1}, s{sLid}, 7
            s_add_u32 s{sT1}, s{sT1}, {WS_ML}
            buffer_store_dwordx4 {vr(vA,4)}, v{vLin}, {srd(WS_)}, s{sA} offen sc1
            buffer_store_dwordx4 {vr(vA,4)}, v{vLin}, {srd(WS_)}, s{sB} offen sc1
            buffer_store_dwordx4 {vr(vA,4)}, v{vLin}, {srd(WS_)}, s{sB} offen offset:1024 sc1
            s_mov_b64 exec, 0xffff
            buffer_store_dwordx4 {vr(vA,4)}, v{vLin}, {srd(WS_)}, s{sB} offen offset:2048 sc1
            s_mov_b64 exec, 0xff
            buffer_store_dwordx4 {vr(vA+4 if xl else vA,4)}, v{vLin}, {srd(WS_)}, s{sT1} offen sc1
            s_mov_b64 exec, -1
            """)
            return
        e(f"""
        s_mov_b64 exec, 15
        buffer_store_dwordx4 {vr(vA,4)}, v{vLin}, {srd(WS_)}, s{sA} offen offset:1024 sc1
        s_mov_b64 exec, -1
        s_cmp_ge_u32 s{sIdx}, 72
        buffer_store_dwordx4 {vr(vA,4)}, v{vLin}, {srd(WS_)}, s{sA} offen sc1
        s_cbranch_scc1 {lbl}
        buffer_store_dwordx4 {vr(vA,4)}, v{vLin}, {srd(WS_)}, s{sB} offen sc1
        buffer_store_dwordx4 {vr(vA,4)}, v{vLin}, {srd(WS_)}, s{sB} offen offset:1024 sc1
        buffer_store_dwordx4 {vr(vA,4)}, v{vLin}, {srd(WS_)}, s{sB} offen offset:2048 sc1
        buffer_store_dwordx4 {vr(vA,4)}, v{vLin}, {srd(WS_)}, s{sB} offen offset:3072 sc1
        """)
    e(f"""
    v_mov_b32 v{vA}, -1
    v_mov_b32 v{vA+1}, -1
    v_mov_b32 v{vA+2}, -1
    v_mov_b32 v{vA+3}, -1
    v_mov_b32 v{vA+4}, 0
    v_mov_b32 v{vA+5}, 0
    ds_write_b64 v{vA+4}, {vr(vA+4,2)} offset:{LDS_CNT}
    s_and_b32 s{sEp}, s{sLid}, 0x80
    s_add_u32 s{sEp}, s{sEp}, {WS_EP}
    s_lshl_b32 s{sA}, s{sLid}, 11
    s_add_u32 s{sA}, s{sA}, {WS_H1}
    {f"s_mul_i32 s{sB}, s{sLid}, 2304" if lay else f"s_lshl_b32 s{sB}, s{sLid}, 12"}
    s_add_u32 s{sB}, s{sB}, {WS_I2}
    s_waitcnt lgkmcnt(0)
    s_load_dword s{sTag}, {sp(WS_)}, s{sEp}
    """)
    if xl:
        assert lay
        e(f"""
        s_getreg_b32 s{sXc}, hwreg(HW_REG_XCC_ID, 0, 4)
        v_mov_b32 v{vA+4}, -1
        v_mov_b32 v{vA+5}, -1
        v_mov_b32 v{vA+6}, -1
        v_mov_b32 v{vA+7}, s{sXc}
        """)
    if clr == 0:
        if not wqnoclr:
            clears("L_t0")
            if lay:
                e("s_branch L_t0")
        else:
            e("s_cmp_eq_u32 s2, s2\ns_cbranch_scc1 L_t0")
    else:
        e("s_branch L_t0")
    e(f"""
    L_wait0:
    s_waitcnt lgkmcnt(0)
    L_t0:
    s_barrier
    """)
    stamp(1)
    stamp(4, 4)
    e(f"""
    s_and_b32 s{sS}, s{sLid}, 7
    s_lshr_b32 s{sKvh}, s{sIdx}, 3
    s_mov_b32 s{K_+2}, 0x2000000
    s_mov_b32 s{K_+3}, 0x20000
    s_mov_b32 s{V_+2}, 0x2000000
    s_mov_b32 s{V_+3}, 0x20000
    s_mov_b32 s{sStep}, 0x8000
    v_and_b32 v{vT1}, 3, v{vT1}
    v_and_b32 v{vK}, 48, v{vL}
    v_lshl_or_b32 v{vK}, v{vT0}, 10, v{vK}
    v_lshl_or_b32 v{vK}, v{vT1}, 8, v{vK}
    """)
    if rot == 0:
        e(f"s_mov_b32 s{sT0}, s{sW}")
    elif rot == 1:
        e(f"s_add_u32 s{sT0}, s{sW}, s{sIdx}")
        e(f"s_and_b32 s{sT0}, s{sT0}, 7")
    elif rot == 2:
        e(f"s_lshr_b32 s{sT0}, s{sIdx}, 3")
        e(f"s_add_u32 s{sT0}, s{sT0}, s{sW}")
        e(f"s_and_b32 s{sT0}, s{sT0}, 7")
    elif rot == 3:
        e(f"s_lshl_b32 s{sT0}, s{sIdx}, 2")
        e(f"s_xor_b32 s{sT0}, s{sT0}, s{sW}")
        e(f"s_and_b32 s{sT0}, s{sT0}, 7")
    e(f"""
    s_lshl_b32 s{sK}, s{sIdx}, 6
    s_add_u32 s{sK}, s{sK}, s{sT0}
    s_lshl_b32 s{sK}, s{sK}, 12
    s_mov_b32 s{sV}, s{sK}
    v_and_b32 v{vT0}, 1, v{vL}
    v_lshlrev_b32 v{vT0}, 4, v{vT0}
    v_mov_b32 v{vT1}, 0xffff
    v_lshlrev_b32 v{vT0}, v{vT0}, v{vT1}
    v_bfe_u32 v{vT1}, v{vL}, 1, 2
    v_lshlrev_b32_e64 v{vT1}, v{vT1}, 1
    """)
    for d in range(4):
        e(f"v_bfe_i32 v{vM+d}, v{vT1}, {d}, 1")
    for d in range(4):
        e(f"v_and_b32 v{vM+d}, v{vM+d}, v{vT0}")
    e(f"""
    s_mov_b32 s{sC}, 0x3e0293ee
    s_mov_b32 s{sSpin}, {spin}
    s_mov_b32 s{WO_+2}, 0x480000
    s_mov_b32 s{WO_+3}, 0x20000
    v_mov_b32 v{vZ}, 0
    s_cmp_ge_u32 s{sWm}, 6
    s_cbranch_scc1 L_noq
    """)
    slot["K0"] = free.pop(0)
    vq = VM(e)
    vq.add("x")
    for i in range(6):
        vq.add(f"w{i}")
    e(f"""
    v_and_b32 v{vT0}, 3, v{vL}
    v_lshrrev_b32 v{vT1}, 4, v{vL}
    v_lshlrev_b32 v{vT1}, 3, v{vT1}
    v_lshl_or_b32 v{vT0}, v{vT0}, 5, v{vT1}
    s_lshl_b32 s{sT0}, s{sWm}, 7
    v_add_u32 v{vX}, s{sT0}, v{vT0}
    """)
    stamp(5, 4)
    vq.wait_tag("x")
    stamp(6, 4)
    for t in range(3):
        e(f"v_and_b32 v{vXs+4*t}, 0xffff, v{vXr+t}")
        e(f"v_lshlrev_b32 v{vXs+4*t+1}, 16, v{vXr+t}")
        e(f"v_lshrrev_b32 v{vXs+4*t+2}, 16, v{vXr+t}")
        e(f"v_and_b32 v{vXs+4*t+3}, 0xffff0000, v{vXr+t}")
    k0 = 0
    for i in range(6):
        vq.wait_tag(f"w{i}")
        if i == 5:
            stamp(2)
            stamp(7, 4)
        for c in range(8):
            w = vH + 4 * i + (c >> 1)
            x = vXs + 2 * i + (c & 1)
            acc = "0" if i == 0 else f"v{vAcc+c}"
            e(f"v_dot2_f32_bf16 v{vAcc+c}, v{w}, v{x}, {acc}")
        while k0 < 4 and (5 - i) + k0 < uq:
            issue_load("K0", k0)
            vq.add("K0")
            k0 += 1
    for c in range(4):
        e(f"v_permlane32_swap_b32 v{vAcc+c}, v{vAcc+c+4}")
    for c in range(4):
        e(f"v_add_f32 v{vAcc+c}, v{vAcc+c}, v{vAcc+c+4}")
    for c in range(2):
        e(f"v_permlane16_swap_b32 v{vAcc+c}, v{vAcc+c+2}")
    for c in range(2):
        e(f"v_add_f32 v{vAcc+c}, v{vAcc+c}, v{vAcc+c+2}")
    for rot in (8, 4):
        for c in range(2):
            e(f"v_add_f32_dpp v{vAcc+c}, v{vAcc+c}, v{vAcc+c} row_ror:{rot} row_mask:0xf bank_mask:0xf")
    e(f"""
    s_mov_b32 exec_lo, 0x000f000f
    s_mov_b32 exec_hi, 0x000f000f
    ds_write_b64 v{vX}, {vr(vAcc,2)} offset:{LDS_PART}
    v_mov_b32 v{vT0}, 1
    """)
    stamp(8, 4)
    e(f"""
    s_mov_b64 exec, 1
    ds_add_u32 v{vZ}, v{vT0} offset:{LDS_CNT}
    s_mov_b64 exec, -1
    """)
    if max(qprio, p0) != p0:
        e(f"s_setprio {p0}")
    for i in range(k0, 4):
        issue_load("K0", i)
        vq.add("K0")
    e(f"""
    s_branch L_pre1
    L_noq:
    s_cmp_eq_u32 s{sW}, 0
    s_cbranch_scc1 L_ctl
    """)
    assert not dry
    if dry:
        for r in range(vH + 3, vH + 7):
            e(f"v_mov_b32 v{r}, 0")
        e("""
        s_mov_b64 exec, 0
        s_branch L_t2b
        """)
    else:
        e(f"s_setprio {p0}")
        e("s_branch L_dry_ret")
    e("L_ctl:")
    vc = VM(e)
    if clr == 1:
        clears("L_clr1")
        if not lay:
            e("L_clr1:")
    if clr == 2:
        for t in seq[:jctl]:
            issue(vc, t, None, True)
        clears("L_clr1")
        if not lay:
            e("L_clr1:")
    e(f"""
    v_lshlrev_b32 v{vX}, 3, v{vL}
    s_xor_b32 s{sB}, s{sLid}, {cx}
    s_lshl_b32 s{sB}, s{sB}, 7
    s_and_b32 s{sA}, s{sB}, 0x7c00
    s_lshr_b32 s{sFo}, s{sA}, 3
    s_add_u32 s{sFo}, s{sFo}, {WS_FL}
    """)
    if clr == 0:
        e("s_waitcnt vmcnt(0)")
    stamp(2)
    stamp(7, 4)
    vc.add("x")
    if clr != 2:
        for t in seq[:jctl]:
            issue(vc, t, None, True)
    e(f"""
    L_cnt:
    ds_read_b32 v{vT0}, v{vZ} offset:{LDS_CNT}
    s_waitcnt lgkmcnt(0)
    v_cmp_ne_u32 vcc, 6, v{vT0}
    s_cbranch_vccz L_cnt_ok
    {SPIN("L_cnt")}
    L_cnt_ok:
    s_mov_b64 exec, 0xffff
    """)
    stamp(8, 4)
    for i in range(6):
        e(f"ds_read_b64 {vr(vS+2*i,2)}, v{vX} offset:{LDS_PART+128*i}")
    e(f"""
    s_add_u32 s{sTag}, s{sTag}, {EPC}
    s_waitcnt lgkmcnt(0)
    v_pk_add_f32 {vr(vS,2)}, {vr(vS,2)}, {vr(vS+2,2)}
    v_pk_add_f32 {vr(vS+4,2)}, {vr(vS+4,2)}, {vr(vS+6,2)}
    v_pk_add_f32 {vr(vS+8,2)}, {vr(vS+8,2)}, {vr(vS+10,2)}
    v_pk_add_f32 {vr(vS,2)}, {vr(vS,2)}, {vr(vS+4,2)}
    v_pk_add_f32 {vr(vS,2)}, {vr(vS,2)}, {vr(vS+8,2)}
    v_cvt_pk_bf16_f32 v{vS}, v{vS}, v{vS+1}
    v_mov_b32 v{vS+1}, s{sTag}
    s_mov_b32 s{sTag+1}, s{sTag}
    {"" if clr == 0 else f"s_waitcnt vmcnt({4*jctl if clr == 1 else 0})"}
    buffer_store_dwordx2 {vr(vS,2)}, v{vX}, {srd(WS_)}, s{sB} offen sc1
    s_mov_b64 exec, -1
    """)
    stamp(12)
    stamp(9, 4)
    if seg == 64:
        e(f"v_mov_b32 v{vS+2}, v{vX}")
    elif seg == 32:
        e(f"""
        v_lshrrev_b32 v{vS+2}, 3, v{vL}
        v_lshlrev_b32 v{vS+2}, 5, v{vS+2}
        v_and_b32 v{vS+3}, 4, v{vL}
        v_lshl_or_b32 v{vS+2}, v{vS+3}, 6, v{vS+2}
        v_and_b32 v{vS+3}, 3, v{vL}
        v_lshl_or_b32 v{vS+2}, v{vS+3}, 3, v{vS+2}
        """)
    else:
        e(f"""
        v_lshrrev_b32 v{vS+2}, 3, v{vL}
        v_lshlrev_b32 v{vS+2}, 4, v{vS+2}
        v_and_b32 v{vS+3}, 6, v{vL}
        v_lshl_or_b32 v{vS+2}, v{vS+3}, 6, v{vS+2}
        v_and_b32 v{vS+3}, 1, v{vL}
        v_lshl_or_b32 v{vS+2}, v{vS+3}, 3, v{vS+2}
        """)
    for t in seq[jctl:jpoll]:
        issue(vc, t, uctl, True)
    e(f"""
    L_gather1:
    buffer_load_dwordx4 {vr(vPoll,4)}, v{vLin}, {srd(WS_)}, s{sA} offen sc1
    s_waitcnt vmcnt(0)
    v_cmp_ne_u32 vcc, s{sTag}, v{vPoll+1}
    v_cmp_ne_u32 {sp(sP0)}, s{sTag}, v{vPoll+3}
    s_or_b64 vcc, vcc, {sp(sP0)}
    s_cbranch_vccz L_gotq
    {SPIN("L_gather1") if wqnoqw != 1 else ""}
    L_gotq:
    v_mov_b32 v{vT0}, 1
    v_mov_b32 v{vT1}, s{sTag}
    ds_write2_b32 v{vS+2}, v{vPoll}, v{vPoll+2} offset0:0 offset1:1
    s_and_b32 s{sT0}, s{sLid}, 0x7f
    s_and_b32 s{sT1}, s{sLid}, 7
    {"" if lay else f"s_cselect_b32 s{sT0}, 0x7f, s{sT0}"}
    {"" if lay else f"s_cmp_ge_u32 s{sT0}, 72"}
    s_waitcnt lgkmcnt(0)
    ds_write_b32 v{vZ}, v{vT0} offset:{LDS_CNT+4}
    s_cbranch_scc1 L_noep
    s_and_b32 s{sT1}, s{sLid}, 0x80
    s_lshl_b32 s{sT1}, s{sT1}, 4
    s_lshr_b32 s{sT0}, s{sT0}, 1
    s_add_u32 s{sT0}, s{sT0}, s{sT1}
    s_add_u32 s{sT0}, s{sT0}, {WS_FL}
    v_lshlrev_b32 v{vT2}, 7, v{vL}
    s_mov_b64 exec, {"0x1ff" if lay else "0xffff"}
    buffer_store_dword v{vT1}, v{vT2}, {srd(WS_)}, s{sT0} offen sc1
    s_mov_b64 exec, -1
    L_noep:
    """)
    if xl:
        e(f"""
        s_and_b32 s{sT0}, s{sLid}, 0xf8
        s_lshl_b32 s{sT0}, s{sT0}, 7
        s_add_u32 s{sT0}, s{sT0}, {WS_ML + 12}
        v_lshlrev_b32 v{vH+29}, 7, v{vL}
        s_mov_b64 exec, 0xff
        buffer_load_dword v{vH+28}, v{vH+29}, {srd(WS_)}, s{sT0} offen sc1
        s_mov_b64 exec, -1
        """)
    cp2 = p0 - sum(1 for x in steps if x < jpoll) if cprio2 < 0 else cprio2
    if prio and cp2 != 3:
        e(f"s_setprio {cp2}")
    vc.done = len(vc.ops)
    stamp(3)
    vc.add("fl")
    for t in seq[jpoll:npre]:
        issue(vc, t, uctl)
    e("s_branch L_readq")
    e("L_dry_ret:")
    e("s_mov_b64 exec, -1")
    for i in range(4):
        issue_load("K0", i)
    e("L_pre1:")
    vm = VM(e)
    vm.ops = ["K0"] * 4
    issue_end("K0")
    for k in range(1, npre):
        issue(vm, seq[k], upre)
    stamp(3)
    e(f"""
    L_qspin:
    ds_read_b32 v{vT0}, v{vZ} offset:{LDS_CNT+4}
    s_waitcnt lgkmcnt(0)
    v_cmp_eq_u32 vcc, 0, v{vT0}
    s_cbranch_vccz L_readq
    {SPIN("L_qspin") if not wqnoqw else ""}
    L_readq:
    v_bfe_u32 v{vT0}, v{vL}, 3, 1
    v_and_b32 v{vT1}, 48, v{vL}
    v_lshl_or_b32 v{vT0}, v{vT0}, 8, v{vT1}
    """)
    for i in range(4):
        e(f"ds_read_b128 {vr(vQ+4*i,4)}, v{vT0} offset:{LDS_Q+64*i}")
    vm.done = len(vm.ops) - max(len(vm.ops) - vm.done, min(len(vm.ops), len(vc.ops) - vc.done))
    stamp(4)
    e(f"""
    s_lshl_b32 s{sT0}, s{sW}, 10
    v_add_u32 v{vRed}, s{sT0}, v{vLin}
    s_lshl_b32 s{sT0}, s{sW}, 3
    v_lshrrev_b32 v{vMLw}, 2, v{vT0}
    v_and_b32 v{vMLw}, 64, v{vMLw}
    v_add_u32 v{vMLw}, s{sT0}, v{vMLw}
    """)
    if lay:
        e(f"v_lshlrev_b32 v{vH+25}, 2, v{vL}")
    if woat >= 0:
        e(wo_addr)
        e(t3_addr)
    e(f"""
    s_mov_b32 vcc_lo, 0x00ff00ff
    s_mov_b32 vcc_hi, 0xff00ff00
    s_waitcnt lgkmcnt(0)
    """)
    if wqnoqw:
        for r in range(vQ, vQ + 16):
            e(f"v_mov_b32 v{r}, 0")
    if wqnocomp:
        for r in list(range(vS, vS + 16)) + list(range(vD, vD + 4)) + [vMx, vAl, vLs, vLs + 1, vN0, vN1]:
            e(f"v_mov_b32 v{r}, 0")

    st = {"sreg": {}, "sfree": [0, 1, 2, 3]}

    def softmax(c):
        sreg = st["sreg"]
        s0 = vS + 4 * sreg[2 * c]
        s1 = vS + 4 * sreg[2 * c + 1]
        nn, no = (vN0, vN1) if c % 2 == 0 else (vN1, vN0)
        if c == 0:
            e(f"v_max3_f32 v{vT0}, v{s0}, v{s0+1}, v{s0+2}")
            e(f"v_max3_f32 v{vT0}, v{vT0}, v{s0+3}, v{s1}")
            e(f"v_max3_f32 v{vT0}, v{vT0}, v{s1+1}, v{s1+2}")
            e(f"v_max_f32 v{vMx}, v{vT0}, v{s1+3}")
        else:
            e(f"v_max3_f32 v{vT0}, v{s0}, v{s0+1}, v{s0+2}")
            e(f"v_max3_f32 v{vMx}, v{vMx}, v{s0+3}, v{vT0}")
            e(f"v_max3_f32 v{vT0}, v{s1}, v{s1+1}, v{s1+2}")
            e(f"v_max3_f32 v{vMx}, v{vMx}, v{s1+3}, v{vT0}")
        allreduce(vMx, vT0, "v_max_f32")
        e(f"v_mul_f32 v{nn}, 0xbe0293ee, v{vMx}")
        for b in (s0, s1):
            for r in range(4):
                e(f"v_fma_f32 v{b+r}, v{b+r}, s{sC}, v{nn}")
        if c > 0:
            e(f"v_sub_f32 v{vAl}, v{nn}, v{no}")
            e(f"v_exp_f32 v{vAl}, v{vAl}")
        for b in (s0, s1):
            for r in range(4):
                e(f"v_exp_f32 v{b+r}, v{b+r}")
        if c > 0:
            e(f"v_cndmask_b32_dpp v{vAD}, v{vAl}, v{vAl}, vcc row_ror:8 row_mask:0xf bank_mask:0xf")
        e(f"v_pk_add_f32 {vr(vA,2)}, {vr(s0,2)}, {vr(s0+2,2)}")
        e(f"v_pk_add_f32 {vr(vT2,2)}, {vr(s1,2)}, {vr(s1+2,2)}")
        if c == 0:
            e(f"v_pk_add_f32 {vr(vLs,2)}, {vr(vA,2)}, {vr(vT2,2)}")
        else:
            e(f"v_pk_add_f32 {vr(vT2,2)}, {vr(vA,2)}, {vr(vT2,2)}")
            e(f"v_fma_f32 v{vLs}, v{vLs}, v{vAl}, v{vT2}")
            e(f"v_fma_f32 v{vLs+1}, v{vLs+1}, v{vAl}, v{vT2+1}")
        for b in (s0, s1):
            for r in range(4):
                e(f"v_cvt_pk_bf16_f32 v{b+r}, v{b+r}, v{b+r}")
        if c == 3:
            e(f"v_add_f32 v{vLt}, v{vLs}, v{vLs+1}")
            allreduce(vLt, vT0, "v_add_f32")
            e(f"ds_write_b64 v{vMLw}, {vr(vN1,2)} offset:{LDS_ML}")

    def diag_mfma(dst, pregs, bregs, zero_first):
        n = len(pregs)

        def ands(i):
            for d in range(4):
                e(f"v_and_b32 v{vA+4*(i&1)+d}, v{pregs[i]}, v{vM+d}")
        ands(0)
        for i in range(n):
            if i + 1 < n:
                ands(i + 1)
            c = "0" if (zero_first and i == 0) else vr(dst, 4)
            e(f"v_mfma_f32_16x16x32_bf16 {vr(dst,4)}, {vr(vA+4*(i&1),4)}, {vr(bregs[i],4)}, {c}")

    def process(vm, t):
        sreg, sfree = st["sreg"], st["sfree"]
        n = int(t[1])
        base = RING + 16 * slot[t]
        if t[0] == "K":
            sreg[n] = sfree.pop(0)
            s = vS + 4 * sreg[n]
            vm.wait_tag(t)
            for i in range(4 if not wqnocomp else 0):
                c = "0" if i == 0 else vr(s, 4)
                e(f"v_mfma_f32_16x16x32_bf16 {vr(s,4)}, {vr(base+4*i,4)}, {vr(vQ+4*i,4)}, {c}")
            if n & 1 and (not wqnocomp or n == 7):
                softmax(n >> 1)
        else:
            s = vS + 4 * sreg[n]
            if n > 0 and n % 2 == 0:
                for r in range(4):
                    e(f"v_mul_f32 v{vD+r}, v{vAD}, v{vD+r}")
            vm.wait_tag(t)
            if n == 7:
                stamp(6)
            if not wqnocomp:
                diag_mfma(vD, [s + r for r in range(4)], [base + 4 * r for r in range(4)], n == 0)
            sfree.append(sreg[n])
        free.append(slot[t])

    def flags(ip):
        if noflag:
            return
        if lay:
            vF, vFo = vH + 24, vH + 25
            if ip == pf1:
                e(f"""
                s_cmp_lg_u32 s{sW}, 0
                s_cbranch_scc1 L_pf1
                s_cmp_ge_u32 s{sIdx}, 72
                s_cbranch_scc1 L_pf1
                s_mov_b64 exec, 0xffff
                buffer_load_dword v{vF}, v{vFo}, {srd(WS_)}, s{sFo} offen sc1
                s_mov_b64 exec, -1
                L_pf1:
                """)
                st["pf"] = len(vm.ops)
            if ip == pf2:
                e(f"""
                s_cmp_lg_u32 s{sW}, 0
                s_cbranch_scc1 L_pf3
                s_cmp_ge_u32 s{sIdx}, 72
                s_cbranch_scc1 L_pf3
                s_mov_b64 exec, 0xffff
                s_waitcnt vmcnt({len(vm.ops) - st["pf"]})
                L_pf2:
                v_cmp_ne_u32 {sp(sF)}, s{sTag}, v{vF}
                s_cmp_eq_u64 {sp(sF)}, 0
                s_cbranch_scc1 L_pf4
                buffer_load_dword v{vF}, v{vFo}, {srd(WS_)}, s{sFo} offen sc1
                s_waitcnt vmcnt(0)
                {SPIN("L_pf2")}
                L_pf4:
                s_mov_b64 exec, -1
                L_pf3:
                """)
            return
        if ip == pf1:
            e(f"""
            s_cmp_lg_u32 s{sW}, 0
            s_cbranch_scc1 L_pf1
            s_load_dwordx8 s[{sF}:{sF+7}], {sp(WS_)}, s{sFo} glc
            s_load_dword s{sF+8}, {sp(WS_)}, s{sFo} offset:32 glc
            L_pf1:
            """)
        if ip == pf2:
            e(f"""
            s_cmp_lg_u32 s{sW}, 0
            s_cbranch_scc1 L_pf3
            L_pf2:
            s_waitcnt lgkmcnt(0)
            s_xor_b64 {sp(sF)}, {sp(sF)}, {sp(sTag)}
            s_xor_b64 {sp(sF+2)}, {sp(sF+2)}, {sp(sTag)}
            s_xor_b64 {sp(sF+4)}, {sp(sF+4)}, {sp(sTag)}
            s_xor_b64 {sp(sF+6)}, {sp(sF+6)}, {sp(sTag)}
            s_xor_b32 s{sF+8}, s{sF+8}, s{sTag}
            s_or_b64 {sp(sF)}, {sp(sF)}, {sp(sF+2)}
            s_or_b64 {sp(sF+4)}, {sp(sF+4)}, {sp(sF+6)}
            s_or_b32 s{sF}, s{sF}, s{sF+8}
            s_or_b64 {sp(sF)}, {sp(sF)}, {sp(sF+4)}
            s_cbranch_scc0 L_pf3
            s_load_dwordx8 s[{sF}:{sF+7}], {sp(WS_)}, s{sFo} glc
            s_load_dword s{sF+8}, {sp(WS_)}, s{sFo} offset:32 glc
            {SPIN("L_pf2")}
            s_waitcnt lgkmcnt(0)
            L_pf3:
            """)

    assert 0 < pf1 < pf2 <= seq.index("K7") + 1
    ip, ii = 0, npre
    while ii < 16:
        k = ratio if (ii - ip) > la else 1
        for _ in range(k):
            process(vm, seq[ip])
            ip += 1
            flags(ip)
        if woat >= 0 and ii == woat:
            issue_wo(vm, umain, 0, 8 if not wosplit else 4)
        if woat >= 0 and wosplit and ii == woat + wosplit:
            issue_wo(vm, umain, 4, 8)
        issue(vm, seq[ii], umain)
        ii += 1
    while seq.index("K7") >= ip:
        process(vm, seq[ip])
        ip += 1
        flags(ip)
    rest = seq[ip:]
    if woat < 0:
        wo_slots[:] = [free[0], free[1]]
    fs = [s for s in range(NSLOT) if s not in wo_slots]

    def finish(vm):
        save = (dict(st["sreg"]), list(st["sfree"]), list(free))
        for t in rest:
            process(vm, t)
        e(f"ds_write_b128 v{vRed}, {vr(vD,4)} offset:{LDS_RED}")
        st["sreg"], st["sfree"] = save[0], save[1]
        free[:] = save[2]

    Z = vH + 8

    X = vH + 8
    first_poll = f"""
    buffer_load_dwordx2 {vr(X,2)}, v{vPa}, {srd(WS_)}, s{sA} offen sc1
    buffer_load_dwordx2 {vr(X+2,2)}, v{vPa}, {srd(WS_)}, s{sA} offen offset:512 sc1
    buffer_load_dwordx2 {vr(X+4,2)}, v{vPb}, {srd(WS_)}, s{sMl} offen sc1
    buffer_load_dwordx2 {vr(X+6,2)}, v{vPb}, {srd(WS_)}, s{sMl} offen offset:512 sc1
    """
    if early:
        assert t3 and lay and woat >= 0 and asplit
    if asplit:
        e(f"""
        s_cmp_gt_u32 s{sW}, 3
        s_cbranch_scc1 L_B
        """)
        finish(vm.copy())
        if woat < 0:
            e(wo_addr)
            e(t3_addr)
        e(f"""
        s_cmp_eq_u32 s{sW}, 0
        s_waitcnt lgkmcnt(0)
        s_barrier
        s_cbranch_scc1 L_c3
        """)
        stamp(5)
        if woat < 0:
            issue_wo(vm.copy())
        if early:
            e(first_poll)
        e(f"""
        s_branch L_bf3
        L_B:
        s_cmp_gt_u32 s{sW}, 5
        s_cbranch_scc1 L_B67
        """)
    else:
        e(f"""
        s_cmp_eq_u32 s{sW}, 0
        s_cbranch_scc1 L_c3a
        s_cmp_gt_u32 s{sW}, 5
        s_cbranch_scc1 L_B67
        """)
    if woat < 0:
        e(wo_addr)
    e(f"""
    s_waitcnt lgkmcnt(0)
    s_barrier
    """)
    stamp(5)
    vb = vm.copy()
    if woat < 0:
        issue_wo(vb)
        e(t3_addr)
    if early:
        e(first_poll)
        for _ in range(4):
            vb.add("poll")
    finish(vb)
    X = vH + 8
    F0, F1 = vH + 16, vH + 17
    D0, D1, E = vS, vS + 4, vD
    PB = vQ
    o_loads = f"""
    buffer_load_dwordx2 {vr(X,2)}, v{vPa}, {srd(WS_)}, s{sA} offen sc1
    buffer_load_dwordx2 {vr(X+2,2)}, v{vPa}, {srd(WS_)}, s{sA} offen offset:512 sc1
    """
    o_check = f"""
    v_max3_u32 v{vT0}, v{X}, v{X+1}, v{X+2}
    v_max_u32 v{vT0}, v{vT0}, v{X+3}
    v_cmp_eq_u32 vcc, -1, v{vT0}
    """
    e(f"""
    L_bf3:
    s_waitcnt lgkmcnt(0)
    s_barrier
    """)
    stamp(7)
    if wqnotail:
        e('s_cmp_eq_u32 s2, s2\ns_cbranch_scc1 L_fin')
    M0, M1 = sP0 + 2, sP0 + 4

    def o_repoll(k):
        e(f"""
        v_max_u32 v{vT0}, v{X}, v{X+1}
        v_max_u32 v{vT1}, v{X+2}, v{X+3}
        v_cmp_eq_u32 {sp(M0)}, -1, v{vT0}
        v_cmp_eq_u32 {sp(M1)}, -1, v{vT1}
        s_or_b64 exec, {sp(M0)}, {sp(M1)}
        s_cbranch_scc0 L_or{k}c
        s_mov_b64 exec, {sp(M0)}
        s_cbranch_execz L_or{k}a
        buffer_load_dwordx2 {vr(X,2)}, v{vPa}, {srd(WS_)}, s{sA} offen sc1
        L_or{k}a:
        s_mov_b64 exec, {sp(M1)}
        s_cbranch_execz L_or{k}b
        buffer_load_dwordx2 {vr(X+2,2)}, v{vPa}, {srd(WS_)}, s{sA} offen offset:512 sc1
        L_or{k}b:
        s_mov_b64 exec, -1
        """)

    if t3:
        M2, M3 = sP0 + 6, sF
        if not early:
            e(first_poll)
        e(f"""
        L_ml:
        s_waitcnt vmcnt(0)
        v_max_u32 v{vT0}, v{X+4}, v{X+5}
        v_max_u32 v{vT1}, v{X+6}, v{X+7}
        v_cmp_eq_u32 {sp(M2)}, -1, v{vT0}
        v_cmp_eq_u32 {sp(M3)}, -1, v{vT1}
        """)
        o_repoll(0)
        e(f"""
        L_or0c:
        s_or_b64 exec, {sp(M2)}, {sp(M3)}
        s_cbranch_scc0 L_ml_ok
        s_mov_b64 exec, {sp(M2)}
        s_cbranch_execz L_mla
        buffer_load_dwordx2 {vr(X+4,2)}, v{vPb}, {srd(WS_)}, s{sMl} offen sc1
        L_mla:
        s_mov_b64 exec, {sp(M3)}
        s_cbranch_execz L_mlb
        buffer_load_dwordx2 {vr(X+6,2)}, v{vPb}, {srd(WS_)}, s{sMl} offen offset:512 sc1
        L_mlb:
        s_mov_b64 exec, -1
        {SPIN("L_ml")}
        s_waitcnt vmcnt(0)
        L_ml_ok:
        s_mov_b64 exec, -1
        v_min_f32 v{vMx}, v{X+4}, v{X+6}
        """)
        allreduce(vMx, vT0, "v_min_f32")
        e(f"""
        v_sub_f32 v{F0}, v{vMx}, v{X+4}
        v_sub_f32 v{F1}, v{vMx}, v{X+6}
        v_exp_f32 v{F0}, v{F0}
        v_exp_f32 v{F1}, v{F1}
        v_mul_f32 v{vMx}, v{F0}, v{X+5}
        v_fmac_f32 v{vMx}, v{F1}, v{X+7}
        """)
        allreduce(vMx, vT0, "v_add_f32")
        e(f"""
        v_rcp_f32 v{vMx}, v{vMx}
        v_mul_f32 v{F0}, v{F0}, v{vMx}
        v_mul_f32 v{F1}, v{F1}, v{vMx}
        """)
    else:
        if sel:
            e(f"""
            L_t3b:
            s_cbranch_execz L_t3c
            {o_loads}
            L_ml:
            buffer_load_dwordx2 {vr(X+4,2)}, v{vPb}, {srd(WS_)}, s{sMl if lay else sA} offen offset:{0 if lay else 1024} sc1
            buffer_load_dwordx2 {vr(X+6,2)}, v{vPb}, {srd(WS_)}, s{sMl if lay else sA} offen offset:{512 if lay else 1056} sc1
            s_waitcnt vmcnt(0)
            """)
            o_repoll(0)
            e(f"""
            s_branch L_t3c
            L_or0c:
            s_mov_b64 exec, -1
            L_t3c:
            v_min_f32 v{vMx}, v{X+4}, v{X+6}
            """)
        else:
            e(f"""
            L_t3b:
            s_cbranch_execz L_t3c
            L_ml:
            buffer_load_dwordx2 {vr(X+4,2)}, v{vPb}, {srd(WS_)}, s{sA} offen offset:1024 sc1
            buffer_load_dwordx2 {vr(X+6,2)}, v{vPb}, {srd(WS_)}, s{sA} offen offset:1056 sc1
            {o_loads}
            s_waitcnt vmcnt(0)
            {o_check}
            s_mov_b64 {sp(sP0+2)}, vcc
            s_cbranch_vccz L_t3c
            {o_loads}
            L_t3c:
            v_min_f32 v{vMx}, v{X+4}, v{X+6}
            """)
        allreduce(vMx, vT0, "v_min_f32")
        e(f"""
        v_sub_f32 v{F0}, v{vMx}, v{X+4}
        v_sub_f32 v{F1}, v{vMx}, v{X+6}
        v_exp_f32 v{F0}, v{F0}
        v_exp_f32 v{F1}, v{F1}
        v_mul_f32 v{vMx}, v{F0}, v{X+5}
        v_fmac_f32 v{vMx}, v{F1}, v{X+7}
        """)
        allreduce(vMx, vT0, "v_add_f32")
        e(f"""
        v_cmp_u_f32 vcc, v{vMx}, v{vMx}
        s_cbranch_vccz L_ml_ok
        {"" if sel else "s_waitcnt vmcnt(0)"}
        {SPIN("L_ml")}
        L_ml_ok:
        v_rcp_f32 v{vMx}, v{vMx}
        v_mul_f32 v{F0}, v{F0}, v{vMx}
        v_mul_f32 v{F1}, v{F1}, v{vMx}
        """)
    stamp(8)
    if sel:
        e(f"""
        s_cbranch_execz L_t3e
        s_or_b64 {sp(M0)}, {sp(M0)}, {sp(M1)}
        s_cbranch_scc0 L_t3e
        L_h1:
        s_waitcnt vmcnt(0)
        """)
        o_repoll(1)
        e(f"""
        {SPIN("L_h1")}
        s_waitcnt vmcnt(0)
        L_or1c:
        s_mov_b64 exec, -1
        L_t3e:
        """)
    else:
        e(f"""
        s_cbranch_execz L_t3e
        s_cmp_eq_u64 {sp(sP0+2)}, 0
        s_cbranch_scc1 L_t3e
        L_h1:
        s_waitcnt vmcnt(0)
        {o_check}
        s_cbranch_vccz L_t3e
        {o_loads}
        {SPIN("L_h1")}
        s_waitcnt vmcnt(0)
        L_t3e:
        """)
    stamp(9)
    e(f"""
    v_mfma_f32_16x16x4_f32 {vr(D0,4)}, v{X}, v{F0}, 0
    v_mfma_f32_16x16x4_f32 {vr(D1,4)}, v{X+1}, v{F0}, 0
    v_mfma_f32_16x16x4_f32 {vr(D0,4)}, v{X+2}, v{F1}, {vr(D0,4)}
    v_mfma_f32_16x16x4_f32 {vr(D1,4)}, v{X+3}, v{F1}, {vr(D1,4)}
    """)
    for r in range(4):
        e(f"v_cvt_pk_bf16_f32 v{PB+2*r}, v{D0+r}, v{D0+r}")
    for r in range(4):
        e(f"v_cvt_pk_bf16_f32 v{PB+2*r+1}, v{D1+r}, v{D1+r}")
    diag_mfma(E, [PB + r for r in range(8)], [RING + 16 * wo_slots[r >> 2] + 4 * (r & 3) for r in range(8)], True)
    e(f"""
    s_cbranch_execz L_t4b
    s_mov_b64 exec, {sp(sP0)}
    buffer_store_dwordx4 {vr(E,4)}, v{vPc}, {srd(WS_)}, s{sB} offen sc1
    """)
    if t4bar:
        e("s_barrier")
    stamp(11)
    e(FIN)
    if not asplit:
        e(f"""
        L_c3a:
        v_mov_b32 v{vPd}, 0
        s_waitcnt lgkmcnt(0)
        s_barrier
        """)
    e("L_c3:")
    stamp(5)
    e(f"""
    v_lshrrev_b32 v{vT0}, 5, v{vL}
    v_lshlrev_b32 v{vPb}, 6, v{vT0}
    """)
    if xl:
        e(f"""
        s_mov_b64 exec, 0xff
        v_cmp_ne_u32 {sp(sP0)}, s{sXc}, v{vH+28}
        s_mov_b64 exec, -1
        """)

    def hstore(txt, k):
        if not xl:
            e(txt + " sc1")
            return
        e(f"""
        s_cmp_eq_u64 {sp(sP0)}, 0
        s_cbranch_scc1 L_hs{k}a
        {txt} sc1
        s_branch L_hs{k}b
        L_hs{k}a:
        {txt}
        L_hs{k}b:
        """)
    for i in range(4):
        e(f"ds_read_b128 {vr(Z+4*i,4)}, v{vPb} offset:{LDS_ML+16*i}")
    e(f"""
    v_bfe_u32 v{vT1}, v{vL}, 2, 2
    v_lshl_or_b32 v{vT1}, v{vT0}, 2, v{vT1}
    v_lshlrev_b32 v{vPc}, 11, v{vT1}
    v_and_b32 v{vT1}, 3, v{vL}
    v_lshl_or_b32 v{vPa}, v{vT1}, {4 if lay else 5}, v{vPc}
    {f"v_lshlrev_b32 v{vPc}, 4, v{vT1}" if lay else ""}
    {f"v_lshl_or_b32 v{vPc}, v{vT0}, 6, v{vPc}" if lay else ""}
    v_and_b32 v{vT1}, 16, v{vL}
    {f"v_lshl_or_b32 v{vPa}, v{vT1}, 2, v{vPa}" if lay else f"v_or_b32 v{vPa}, v{vPa}, v{vT1}"}
    {f"s_lshl_b32 s{sMl}, s{sLid}, 7" if lay else ""}
    {f"s_add_u32 s{sMl}, s{sMl}, {WS_ML}" if lay else ""}
    s_and_b32 s{sA}, s{sLid}, 0xf8
    s_lshl_b32 s{sA}, s{sA}, 11
    s_add_u32 s{sA}, s{sA}, {WS_H1}
    s_lshl_b32 s{sT0}, s{sS}, 3
    s_add_u32 s{sB}, s{sA}, s{sT0}
    s_lshl_b32 s{sT0}, s{sS}, 7
    s_add_u32 s{sA}, s{sA}, s{sT0}
    s_waitcnt lgkmcnt(0)
    v_min3_f32 v{vT2}, v{Z}, v{Z+2}, v{Z+4}
    v_min3_f32 v{vT0}, v{Z+6}, v{Z+8}, v{Z+10}
    v_min3_f32 v{vT2}, v{vT2}, v{Z+12}, v{Z+14}
    v_min_f32 v{vT2}, v{vT2}, v{vT0}
    """)
    for w in range(8):
        e(f"v_sub_f32 v{Z+2*w}, v{vT2}, v{Z+2*w}")
    for w in range(8):
        e(f"v_exp_f32 v{Z+2*w}, v{Z+2*w}")
    e(f"v_mul_f32 v{vT2+1}, v{Z}, v{Z+1}")
    for w in range(1, 8):
        e(f"v_fmac_f32 v{vT2+1}, v{Z+2*w}, v{Z+2*w+1}")
    if lay:
        e(f"""
        v_mov_b32 v{vS}, v{vT2}
        v_mov_b32 v{vS+1}, v{vT2+1}
        v_mov_b32 v{vS+2}, v{vT2}
        v_mov_b32 v{vS+3}, v{vT2+1}
        s_mov_b32 exec_lo, 15
        s_mov_b32 exec_hi, 15
        """)
        hstore(f"buffer_store_dwordx4 {vr(vS,4)}, v{vPc}, {srd(WS_)}, s{sMl} offen", 0)
        e("s_mov_b64 exec, -1")
    else:
        e(f"""
        s_mov_b32 exec_lo, 0x1111
        s_mov_b32 exec_hi, 0x1111
        buffer_store_dwordx2 {vr(vT2,2)}, v{vPc}, {srd(WS_)}, s{sB} offen offset:1024 sc1
        s_mov_b64 exec, -1
        """)
    if not asplit:
        finish(vm.copy())
    Y = [RING + 16 * fs[-1 - (w >> 2)] + 4 * (w & 3) for w in range(8)]
    e(f"""
    s_waitcnt lgkmcnt(0)
    s_barrier
    """)
    stamp(7)
    if wqnotail:
        e('s_cmp_eq_u32 s2, s2\ns_cbranch_scc1 L_fin')
    e("L_t2b:")
    for w in range(8):
        e(f"ds_read_b128 {vr(Y[w],4)}, v{vLin} offset:{LDS_RED+1024*w}")
    for w in range(8):
        if w in (0, 2, 4, 6):
            e(f"s_waitcnt lgkmcnt({6-w})")
        for h in (0, 2):
            if w == 0:
                e(f"v_pk_mul_f32 {vr(vD+h,2)}, {vr(Y[0]+h,2)}, {vr(Z,2)} op_sel_hi:[1,0]")
            else:
                e(f"v_pk_fma_f32 {vr(vD+h,2)}, {vr(Y[w]+h,2)}, {vr(Z+2*w,2)}, {vr(vD+h,2)} op_sel_hi:[1,0,1]")
    if not t3:
        e("s_cbranch_execz L_t3b")
    hstore(f"buffer_store_dwordx4 {vr(vD,4)}, v{vPa}, {srd(WS_)}, s{sA} offen", 1)
    stamp(11)
    e(FIN)
    R = RING + 16 * fs[-1]
    e(f"""
    L_B67:
    s_waitcnt lgkmcnt(0)
    s_barrier
    """)
    stamp(5)
    e(f"""
    v_lshrrev_b32 v{vT0}, 4, v{vL}
    v_and_b32 v{vT1}, 1, v{vL}
    v_lshlrev_b32 v{vT0}, 1, v{vT0}
    v_lshl_or_b32 v{vPd}, v{vT1}, 3, v{vT0}
    s_lshl_b32 s{sP0+2}, s{sLid}, 12
    s_add_u32 s{sP0+2}, s{sP0+2}, {WS_I2}
    s_lshr_b32 s{sP0+3}, s{sLid}, 7
    s_mul_i32 s{sP0+3}, s{sP0+3}, 1152
    s_lshl_b32 s{sT0}, s{sIdx}, 4
    s_add_u32 s{sP0+3}, s{sP0+3}, s{sT0}
    v_add_u32 v{vPd}, s{sP0+3}, v{vPd}
    s_and_b32 s{sEp}, s{sLid}, 0x80
    s_add_u32 s{sEp}, s{sEp}, {WS_EP}
    s_load_dword s{sTag}, {sp(WS_)}, s{sEp}
    v_mov_b32 v{vPc}, s{sEp}
    """)
    if lay:
        e(f"""
        v_lshrrev_b32 v{vT0}, 1, v{vL}
        v_mul_u32_u24 v{vPa}, 2304, v{vT0}
        v_lshl_or_b32 v{vPa}, v{vT1}, 6, v{vPa}
        s_and_b32 s{sT0}, s{sLid}, 0x80
        s_mul_i32 s{sT0}, s{sT0}, 2304
        s_add_u32 s{sT0}, s{sT0}, {WS_I2}
        s_and_b32 s{sT1}, s{sIdx}, 3
        s_lshl_b32 s{sT1}, s{sT1}, 4
        s_add_u32 s{sT0}, s{sT0}, s{sT1}
        s_lshr_b32 s{sT1}, s{sIdx}, 2
        s_lshl_b32 s{sT1}, s{sT1}, 7
        s_add_u32 s{sP0+2}, s{sT0}, s{sT1}
        s_add_u32 s{sP0+3}, s{sP0+2}, {73728}
        s_add_u32 s{sP0+4}, s{sP0+2}, {2*73728}
        s_add_u32 s{sP0+5}, s{sP0+2}, {3*73728}
        """)
    if lay == 2:
        e(f"""
        v_mul_u32_u24 v{vPa}, 2304, v{vT0}
        v_lshl_or_b32 v{vPa}, v{vT1}, 4, v{vPa}
        s_and_b32 s{sT0}, s{sLid}, 0x80
        s_mul_i32 s{sT0}, s{sT0}, 2304
        s_add_u32 s{sT0}, s{sT0}, {WS_I2}
        s_lshl_b32 s{sT1}, s{sIdx}, 5
        s_add_u32 s{sP0+2}, s{sT0}, s{sT1}
        s_add_u32 s{sP0+3}, s{sP0+2}, {73728}
        s_add_u32 s{sP0+4}, s{sP0+2}, {2*73728}
        s_add_u32 s{sP0+5}, s{sP0+2}, {3*73728}
        v_lshrrev_b32 v{vT0}, 4, v{vL}
        v_lshlrev_b32 v{vT0}, 1, v{vT0}
        v_lshl_or_b32 v{vPd}, v{vT1}, 4, v{vT0}
        s_lshr_b32 s{sT0}, s{sLid}, 7
        s_mul_i32 s{sT0}, s{sT0}, 1152
        s_and_b32 s{sT1}, s{sIdx}, 0x78
        s_lshl_b32 s{sT1}, s{sT1}, 4
        s_add_u32 s{sT0}, s{sT0}, s{sT1}
        s_and_b32 s{sT1}, s{sIdx}, 3
        s_lshl_b32 s{sT1}, s{sT1}, 5
        s_add_u32 s{sT0}, s{sT0}, s{sT1}
        s_and_b32 s{sT1}, s{sIdx}, 4
        s_lshl_b32 s{sT1}, s{sT1}, 1
        s_add_u32 s{sT0}, s{sT0}, s{sT1}
        v_add_u32 v{vPd}, s{sT0}, v{vPd}
        """)

    def t4_load(i):
        if lay:
            return f"buffer_load_dwordx4 {vr(R+4*i,4)}, v{vPa}, {srd(WS_)}, s{sP0+2+i} offen sc1"
        return f"buffer_load_dwordx4 {vr(R+4*i,4)}, v{vLin}, {srd(WS_)}, s{sP0+2} offen offset:{1024*i} sc1"
    finish(vm.copy())
    e(f"""
    s_waitcnt lgkmcnt(0)
    s_barrier
    """)
    stamp(7)
    if wqnotail:
        e('s_cmp_eq_u32 s2, s2\ns_cbranch_scc1 L_fin')
    e(f"""
    s_cmp_lg_u32 s{sW}, 6
    s_cbranch_scc1 L_fin
    s_cmp_ge_u32 s{sIdx}, 72
    s_cbranch_scc1 L_fin
    {"s_barrier" if t4bar else ""}
    L_t4b:
    s_cbranch_execz L_t4c
    {"" if sel else "L_h2:"}
    """)
    for i in range(4):
        e(t4_load(i))
    if sel:
        MM = [sF + 2 * i for i in range(4)]
        if p4:
            e("s_waitcnt vmcnt(0)")
        e("L_h2:")
        if not p4:
            e("s_waitcnt vmcnt(0)")
        for i in range(4):
            e(f"v_max3_u32 v{vA+i}, v{R+4*i}, v{R+4*i+1}, v{R+4*i+2}")
        for i in range(4):
            e(f"v_max_u32 v{vA+i}, v{vA+i}, v{R+4*i+3}")
        for i in range(4):
            e(f"v_cmp_eq_u32 {sp(MM[i])}, -1, v{vA+i}")
        e(f"""
        s_or_b64 vcc, {sp(MM[0])}, {sp(MM[1])}
        s_or_b64 exec, {sp(MM[2])}, {sp(MM[3])}
        s_or_b64 exec, exec, vcc
        s_cbranch_scc0 L_h2_got
        """)
        for i in range(4):
            e(f"""
            s_mov_b64 exec, {sp(MM[i])}
            s_cbranch_execz L_h2_{i}
            {t4_load(i)}
            L_h2_{i}:
            """)
        e(f"""
        s_mov_b64 exec, -1
        {f"s_waitcnt vmcnt({p4})" if p4 else ""}
        {SPIN("L_h2")}
        s_waitcnt vmcnt(0)
        L_h2_got:
        s_mov_b64 exec, -1
        """)
    else:
        e("s_waitcnt vmcnt(0)")
    e("L_t4c:")
    if p4:
        R0, R = R, vS
        for h in (0, 2):
            e(f"v_pk_add_f32 {vr(R+h,2)}, {vr(R0+h,2)}, {vr(R0+4+h,2)}")
        for h in (0, 2):
            e(f"v_pk_add_f32 {vr(R+4+h,2)}, {vr(R0+8+h,2)}, {vr(R0+12+h,2)}")
        for h in (0, 2):
            e(f"v_pk_add_f32 {vr(R+h,2)}, {vr(R+h,2)}, {vr(R+4+h,2)}")
    else:
        pk_sum(R, 4)
    e(f"""
    v_permlane32_swap_b32 v{R}, v{R+2}
    v_permlane32_swap_b32 v{R+1}, v{R+3}
    v_add_f32 v{R}, v{R}, v{R+2}
    v_add_f32 v{R+1}, v{R+1}, v{R+3}
    v_permlane16_swap_b32 v{R}, v{R+1}
    v_add_f32 v{R}, v{R}, v{R+1}
    v_add_f32_dpp v{R}, v{R}, v{R} row_ror:2 row_mask:0xf bank_mask:0xf
    v_add_f32_dpp v{R}, v{R}, v{R} row_ror:4 row_mask:0xf bank_mask:0xf
    v_add_f32_dpp v{R}, v{R}, v{R} row_ror:8 row_mask:0xf bank_mask:0xf
    """)
    if not sel:
        e(f"""
        v_cmp_u_f32 vcc, v{R}, v{R}
        s_cbranch_vccz L_h2_ok
        {SPIN("L_h2")}
        L_h2_ok:
        """)
    e(f"""
    v_cvt_pk_bf16_f32 v{R}, v{R}, v{R}
    """)
    stamp(9)
    if dry:
        e("s_cbranch_execz L_dry_ret")
    e(f"""
    s_mov_b32 exec_lo, 0x30003
    s_mov_b32 exec_hi, 0x30003
    global_store_short v{vPd}, v{R}, {sp(OUT_)}{" " + osc.replace("_", " ") if osc else ""}
    {"s_waitcnt vmcnt(1)" if p4 else ""}
    s_cmp_lg_u32 s{sIdx}, 0
    s_cbranch_scc1 L_fin
    s_add_u32 s{sTag}, s{sTag}, {EPC}
    v_mov_b32 v{R+1}, s{sTag}
    s_mov_b64 exec, 1
    global_store_dword v{vPc}, v{R+1}, {sp(WS_)}{" " + osc.replace("_", " ") if osc else ""}
    L_fin:
    """)
    if prof:
        e("s_waitcnt vmcnt(0)")
        stamp(10)
        e(f"""
        s_waitcnt lgkmcnt(0)
        s_mov_b64 exec, 1
        s_lshl_b32 s{sT0}, s{sLid}, 3
        s_add_u32 s{sT0}, s{sT0}, s{sW}
        s_lshl_b32 s{sT0}, s{sT0}, 6
        s_add_u32 s{sT0}, s{sT0}, {WS_PROF}
        v_mov_b32 v0, 0
        """)
        if pmode == 5:
            stamp(16, 5)
            e(f"s_lshl_b32 s{sT0}, s{sLid}, 3")
            e(f"s_add_u32 s{sT0}, s{sT0}, s{sW}")
            e(f"s_lshl_b32 s{sT0}, s{sT0}, 7")
            e(f"s_add_u32 s{sT0}, s{sT0}, {WS_PROF}")
            for k in range(16):
                e(f"v_mov_b32 v{8+k}, s{sProf+k}")
            for k in range(6):
                e(f"v_mov_b32 v{24+k}, s{sProf+16+2*k}")
            e(f"s_getreg_b32 s{sT1}, hwreg(HW_REG_XCC_ID)")
            e(f"v_mov_b32 v30, s{sT1}")
            e(f"s_getreg_b32 s{sT1}, hwreg(HW_REG_HW_ID)")
            e(f"v_mov_b32 v31, s{sT1}")
            for k in range(6):
                e(f"buffer_store_dwordx4 v[{8+4*k}:{11+4*k}], v0, {srd(WS_)}, s{sT0} offen offset:{16*k}")
        else:
          for k in range(14):
            e(f"v_mov_b32 v{8+k}, s{sProf+2*k}")
          e(f"s_getreg_b32 s{sT1}, hwreg(HW_REG_XCC_ID)")
          e(f"v_mov_b32 v22, s{sT1}")
          e(f"v_mov_b32 v23, s{sSpin}")
          for k in range(4):
            e(f"buffer_store_dwordx4 v[{8+4*k}:{11+4*k}], v0, {srd(WS_)}, s{sT0} offen offset:{16*k}")
    if pad:
        e(f"""
        s_waitcnt vmcnt(0) lgkmcnt(0)
        L_pad:
        s_memrealtime {sp(sProf+2)}
        s_waitcnt lgkmcnt(0)
        s_sub_u32 s{sT0}, s{sProf+2}, s{sProf}
        s_cmp_lt_u32 s{sT0}, {pad}
        s_cbranch_scc1 L_pad
        """)
    e("L_end:")
    e("s_endpgm")
    nsg = (sProf + 32 if pmode == 5 else sProf + 28) if (prof or pad) else sProf
    e.raw(f""".section .rodata,"a"
.p2align 6
.amdhsa_kernel {KNAME}
  .amdhsa_next_free_vgpr 256
  .amdhsa_next_free_sgpr {nsg}
  .amdhsa_accum_offset 256
  .amdhsa_group_segment_fixed_size 0
  .amdhsa_kernarg_size 104
  .amdhsa_user_sgpr_count 2
  .amdhsa_user_sgpr_kernarg_segment_ptr 1
  .amdhsa_system_sgpr_workgroup_id_x 1
.end_amdhsa_kernel""")
    return e.text()


if __name__ == "__main__":
    kw = {}
    for a in sys.argv[2:]:
        k, v = a.split("=")
        try:
            v = int(v, 0)
        except ValueError:
            pass
        kw[k] = v
    open(sys.argv[1], "w").write(gen(**kw))
```

```python
import sys
from emit import Emitter

KNAME = "concat_heads__gqa_block_cached__gqa_block_cached__decode_kernel"
HEADER = open("header.txt").read()

WS_QP, WS_EP, WS_FL, WS_H1, WS_I2, WS_PROF = 0x0, 0x10000, 0x20000, 0x40000, 0x100000, 0x200000
WS_ML = 0x30000
WS_QP2 = 0x1A0000
EPC = 0x9e3779b9
LDS_Q, LDS_PART, LDS_ML, LDS_CNT, LDS_RED, LDS_SIZE = 0, 512, 1280, 1408, 2048, 10240

vL, vLin, vK, vX = 0, 1, 2, 3
vZ = 54
vM = 4
vQ = 8
vS = 24
vA = 40
vD = 48
vMx, vAl, vAD, vT0 = 52, 53, 54, 55
vLs = 56
vN0, vT1 = 58, 59
vN1, vLt = 60, 61
vT2 = 62
RING = 64
NSLOT = 10
vH = 224
sKa, sKvh, sS, sIdx, sLid, sW, sT0, sT1 = 3, 5, 6, 7, 8, 9, 10, 11
K_, V_, WQ_, WO_, WS_ = 12, 16, 20, 24, 28
OUT_, DBG_, sX = 32, 34, 36
sF = 60
sTag, sEp, sFo = 38, 58, 59
sC, sStep, sK, sV, sWq, sWo, sWo2, sSpin = 40, 41, 42, 43, 44, 45, 46, 47
sA, sB, sWm = 48, 4, 49
sP0 = 50
sMl = 69
sXc = 62
sProf = 70


def srd(b):
    return f"s[{b}:{b+3}]"


def sp(b):
    return f"s[{b}:{b+1}]"


def vr(b, n):
    return f"v[{b}:{b+n-1}]"


class VM:
    def __init__(self, e):
        self.e = e
        self.ops = []
        self.done = 0

    def add(self, tag):
        self.ops.append(tag)

    def wait_n(self, n):
        n = max(n, 0)
        if len(self.ops) - self.done > n:
            assert n <= 63
            self.e(f"s_waitcnt vmcnt({n})")
            self.done = len(self.ops) - n

    def wait_tag(self, tag):
        last = max(i for i, t in enumerate(self.ops) if t == tag)
        self.wait_n(len(self.ops) - 1 - last)

    def copy(self):
        v = VM(self.e)
        v.ops = list(self.ops)
        v.done = self.done
        return v


def gen(npre=6, upre=12, umain=12, uctl=12, la=3, ratio=2, jctl=1, jpoll=6, pr="6,10,13", woat=14, wosplit=1, wqnoqw=0, wqnocomp=0, wqnotail=0, wqnoclr=0, wqcol=0, ntw="nt", wp=2, xq=1, qf="nt", wqg=8, wqs=0, uwo=-1, wopos=0, prend=-1, qs="", clr=1, t4bar=1, lay=1, xl=1, idmap=0, t3=1, early=1, p4=0, p3=0, osc="", t3c=0, uq=0, pf1=9, pf2=11, nt="nt", ntq="nt", lead=1, prof=False,
        spin=1 << 16, prio=True, pad=0, dry=False, pmode=1, asplit=True, qprio=0, cprio2=-1, rot=0, noflag=0, sx=0, wqp=-1, sel=1, cx=0, wqoff=0, wqsrc=24, wqstr=13, seg=64):
    e = Emitter()
    NT = (" " + nt) if nt else ""
    NTQ = (" " + ntq) if ntq else ""
    NTW = (" " + ntw) if ntw else ""
    if lead == 1:
        seq = ["K0", "K1"] + [x for n in range(6) for x in (f"V{n}", f"K{n+2}")] + ["V6", "V7"]
    elif lead == 2:
        seq = ["K0", "K1", "K2"] + [x for n in range(5) for x in (f"V{n}", f"K{n+3}")] + ["V5", "V6", "V7"]
    assert len(seq) == 16 and len(set(seq)) == 16
    free = list(range(NSLOT - 2 if woat >= 0 else NSLOT))
    slot = {}
    steps = [int(x) for x in str(pr).split(",") if x != ""]
    p0 = len(steps)
    assert p0 <= 3

    P5 = {0: 0, 1: 1, 3: 2, 5: 3, 7: 4, 10: 5}

    def stamp(k, kind=1):
        if prof and pmode == 5:
            if kind == 1 and k in P5:
                e(f"s_memrealtime {sp(sProf+16+2*P5[k])}")
            if kind == 5:
                if k > 0:
                    e("s_waitcnt lgkmcnt(0)")
                    e(f"s_mov_b32 s{sProf+k-1}, s{sProf+28+2*((k-1)&1)}")
                if k < 16:
                    e(f"s_memrealtime {sp(sProf+28+2*(k&1))}")
        elif prof and ((k == 0 and kind == 1) or (kind == pmode and kind != 5)):
            e(f"s_memrealtime {sp(sProf+2*k)}")

    FIN = "s_branch L_fin" if (prof or pad) else "s_endpgm"

    def issue_load(t, i):
        r = RING + 16 * slot[t] + 4 * i
        if t[0] == "K":
            e(f"buffer_load_dwordx4 {vr(r,4)}, v{vK}, {srd(K_)}, s{sK} offen offset:{64*i}{NT}")
        else:
            e(f"buffer_load_dwordx4 {vr(r,4)}, v{vLin}, {srd(V_)}, s{sV} offen offset:{1024*i}{NT}")

    def issue_end(t):
        if t[1] != "7":
            s = sK if t[0] == "K" else sV
            e(f"s_add_u32 s{s}, s{s}, s{sStep}")
        if seq.index(t) >= 3:
            stamp(seq.index(t) - 2, 2)
        if seq.index(t) <= 12:
            stamp(seq.index(t) + 1, 3)
        stamp(seq.index(t), 5)

    def issue(vm, t, u=None, ctl=False):
        if t not in slot:
            slot[t] = free.pop(0)
        if seq.index(t) in steps and not ctl:
            e(f"s_setprio {p0 - 1 - steps.index(seq.index(t))}")
        for i in range(4):
            if u is not None:
                vm.wait_n(u - 1)
            issue_load(t, i)
            vm.add(t)
        issue_end(t)

    def SPIN(lbl):
        return f"s_addk_i32 s{sSpin}, -1\ns_cmpk_gt_i32 s{sSpin}, 0\ns_cbranch_scc1 {lbl}"

    def pk_sum(base, n):
        step = 1
        while step < n:
            for i in range(0, n - step, 2 * step):
                for h in (0, 2):
                    a, b = base + 4 * i + h, base + 4 * (i + step) + h
                    e(f"v_pk_add_f32 {vr(a,2)}, {vr(a,2)}, {vr(b,2)}")
            step *= 2

    def allreduce(v, tmp, op):
        e(f"v_mov_b32 v{tmp}, v{v}")
        e(f"v_permlane16_swap_b32 v{v}, v{tmp}")
        e(f"{op} v{v}, v{v}, v{tmp}")
        e(f"v_mov_b32 v{tmp}, v{v}")
        e(f"v_permlane32_swap_b32 v{v}, v{tmp}")
        e(f"{op} v{v}, v{v}, v{tmp}")

    vRed, vMLw, vWo, vPa, vPb, vPc, vPd = vH, vH + 1, vH + 2, vH + 3, vH + 4, vH + 5, vH + 6
    vXr = vH + 24
    vPoll = vH + 24
    vXs = vS
    vAcc = vA

    wo_addr = f"""
    s_movk_i32 s{sT1}, 0x2400
    v_lshrrev_b32 v{vT1}, 4, v{vL}
    v_and_b32 v{vWo}, 0xff, v{vLin}
    v_mad_u32_u24 v{vWo}, v{vT1}, s{sT1}, v{vWo}
    s_lshl_b32 s{sT0}, s{sWm}, 4
    v_and_b32 v{vT1}, 15, v{vL}
    v_add_u32 v{vT1}, s{sT0}, v{vT1}
    v_cmp_gt_u32 vcc, 72, v{vT1}
    v_mov_b32 v{vT1}, 0x40000000
    s_mul_i32 s{sWo}, s{sIdx}, 0x9000
    s_lshl_b32 s{sT0}, s{sWm}, 8
    s_add_u32 s{sWo}, s{sWo}, s{sT0}
    v_cndmask_b32 v{vWo}, v{vT1}, v{vWo}, vcc
    s_add_u32 s{sWo2}, s{sWo}, 4608
    """
    if wqcol:
        wo_addr = f"""
        s_movk_i32 s{sT1}, 0x2400
        v_lshrrev_b32 v{vT1}, 4, v{vL}
        v_and_b32 v{vWo}, 0xff, v{vLin}
        v_mad_u32_u24 v{vWo}, v{vT1}, s{sT1}, v{vWo}
        v_and_b32 v{vT1}, 15, v{vL}
        v_cmp_gt_u32 vcc, 9, v{vT1}
        v_mov_b32 v{vT1}, 0x40000000
        s_mul_i32 s{sWo}, s{sKvh}, 0x48000
        s_mul_i32 s{sT0}, s{sW}, 0x9000
        s_add_u32 s{sWo}, s{sWo}, s{sT0}
        s_mul_i32 s{sT0}, s{sS}, 144
        s_add_u32 s{sWo}, s{sWo}, s{sT0}
        v_cndmask_b32 v{vWo}, v{vT1}, v{vWo}, vcc
        s_add_u32 s{sWo2}, s{sWo}, 4608
        """
    t3_addr1 = f"""
    v_lshrrev_b32 v{vT0}, 4, v{vL}
    v_lshlrev_b32 v{vPb}, 7, v{vT0}
    v_bfe_u32 v{vT1}, v{vL}, 2, 2
    v_lshlrev_b32 v{vPc}, 7, v{vT1}
    v_lshl_or_b32 v{vPc}, v{vT0}, 6, v{vPc}
    v_lshl_or_b32 v{vPa}, v{vT1}, 4, v{vPb}
    v_and_b32 v{vT1}, 3, v{vL}
    v_lshl_or_b32 v{vPc}, v{vT1}, 4, v{vPc}
    v_and_b32 v{vT1}, 1, v{vL}
    v_lshl_or_b32 v{vPa}, v{vT1}, 3, v{vPa}
    v_and_b32 v{vT1}, 2, v{vL}
    v_lshl_or_b32 v{vPa}, v{vT1}, 5, v{vPa}
    v_mov_b32 v{vPd}, 0
    s_lshl_b32 s{sA}, s{sLid}, 11
    s_add_u32 s{sA}, s{sA}, {WS_H1}
    s_mul_i32 s{sB}, s{sLid}, 2304
    s_lshl_b32 s{sT0}, s{sWm}, 9
    s_add_u32 s{sB}, s{sB}, s{sT0}
    s_add_u32 s{sB}, s{sB}, {WS_I2}
    s_and_b32 s{sMl}, s{sLid}, 0xf8
    s_lshl_b32 s{sMl}, s{sMl}, 7
    s_and_b32 s{sT0}, s{sLid}, 4
    s_lshl_b32 s{sT0}, s{sT0}, 4
    s_add_u32 s{sMl}, s{sMl}, s{sT0}
    s_add_u32 s{sMl}, s{sMl}, {WS_ML}
    s_cmp_eq_u32 s{sWm}, 4
    s_cselect_b32 s{sP0}, 0x00ff00ff, -1
    s_mov_b32 s{sP0+1}, 0
    """
    t3_addr = f"""
    v_and_b32 v{vPa}, 15, v{vL}
    v_lshrrev_b32 v{vT0}, 4, v{vL}
    v_lshlrev_b32 v{vPb}, 3, v{vT0}
    v_lshlrev_b32 v{vPc}, 12, v{vPa}
    v_lshl_or_b32 v{vPc}, v{vT0}, 4, v{vPc}
    v_lshlrev_b32 v{vPa}, 3, v{vPa}
    v_lshl_or_b32 v{vPa}, v{vT0}, 7, v{vPa}
    v_mov_b32 v{vPd}, 0
    s_lshl_b32 s{sA}, s{sLid}, 11
    s_add_u32 s{sA}, s{sA}, {WS_H1}
    s_and_b32 s{sB}, s{sLid}, 0x80
    s_lshl_b32 s{sB}, s{sB}, 12
    s_lshl_b32 s{sT0}, s{sWm}, 16
    s_add_u32 s{sB}, s{sB}, s{sT0}
    s_lshl_b32 s{sT0}, s{sIdx}, 5
    s_add_u32 s{sB}, s{sB}, s{sT0}
    s_add_u32 s{sB}, s{sB}, {WS_I2}
    s_cmp_eq_u32 s{sWm}, 4
    s_cselect_b32 s{sP0}, 0x00ff00ff, -1
    s_mov_b32 s{sP0+1}, 0
    """

    if lay:
        t3_addr = t3_addr1
    if lay == 2:
        t3_addr += f"""
        v_lshrrev_b32 v{vT0}, 4, v{vL}
        v_and_b32 v{vT1}, 7, v{vL}
        v_lshlrev_b32 v{vPc}, 4, v{vT1}
        v_lshl_or_b32 v{vPc}, v{vT0}, 7, v{vPc}
        v_and_b32 v{vT1}, 8, v{vL}
        v_lshl_or_b32 v{vPc}, v{vT1}, 5, v{vPc}
        """

    def issue_wo(vm, u=None, r0=0, r1=8):
        if 16 in steps and r0 == 0:
            assert woat == 16 and not wosplit
            e(f"s_setprio {p0 - 1 - steps.index(16)}")
        for r in range(r0, r1):
            reg = RING + 16 * wo_slots[r >> 2] + 4 * (r & 3)
            if u is not None:
                vm.wait_n(u - 1)
            e(f"buffer_load_dwordx4 {vr(reg,4)}, v{vWo}, {srd(WO_)}, s{sWo if r < 4 else sWo2} offen offset:{1152*(r&3)}{NTW}")
            vm.add("wo")
        if r1 == 8 and prend >= 0:
            e(f"s_setprio {prend}")
    wo_slots = [NSLOT - 2, NSLOT - 1]

    e.raw(HEADER.rstrip())
    e.raw(f"; @launch grid=(256,1,1) block=(512,1,1) lds={LDS_SIZE}")
    e.raw('.amdgcn_target "amdgcn-amd-amdhsa--gfx950"')
    e.raw(".text")
    e.raw(f".globl {KNAME}")
    e.raw(".p2align 8")
    e.raw(f".type {KNAME},@function")
    e.raw(f"{KNAME}:")
    stamp(0)
    if prof and pmode != 5:
        for k in range(1, 14):
            e(f"s_mov_b32 s{sProf+2*k}, 0")
    if pad:
        e(f"s_memrealtime {sp(sProf)}")
    e(f"""
    s_lshr_b32 s{sT0}, s2, 8
    s_cbranch_scc1 L_end
    s_bitcmp1_b32 s2, {7 if idmap else 2}
    s_cselect_b32 s{sKa}, 40, 0
    s_load_dwordx2 {sp(WQ_)}, s[0:1], s{sKa} offset:{wqsrc}
    s_load_dwordx2 {sp(sX)}, s[0:1], s{sKa} offset:0
    s_load_dwordx2 {sp(WS_)}, s[0:1], 96
    s_load_dwordx2 {sp(K_)}, s[0:1], s{sKa} offset:8
    s_load_dwordx2 {sp(V_)}, s[0:1], s{sKa} offset:16
    s_load_dwordx2 {sp(WO_)}, s[0:1], s{sKa} offset:32
    s_load_dwordx2 {sp(OUT_)}, s[0:1], 80
    v_lshrrev_b32 v{vLin}, 6, v0
    v_and_b32 v{vL}, 63, v0
    v_readfirstlane_b32 s{sW}, v{vLin}
    s_and_b32 s{sT0}, s2, 7
    s_lshl_b32 s{sT0}, s{sT0}, 5
    s_lshr_b32 s{sLid}, s2, 3
    s_or_b32 s{sLid}, s{sLid}, s{sT0}
    {f"s_mov_b32 s{sLid}, s2" if idmap else (f"s_xor_b32 s{sLid}, s{sLid}, {sx}" if sx else "")}
    s_and_b32 s{sIdx}, s{sLid}, 0x7f
    s_mov_b32 s{WQ_+2}, 0x480000
    s_mov_b32 s{WQ_+3}, 0x20000
    s_mov_b32 s{WS_+2}, 0x400000
    s_mov_b32 s{WS_+3}, 0x20000
    v_lshlrev_b32 v{vLin}, 4, v{vL}
    v_and_b32 v{vT0}, 3, v{vL}
    v_lshrrev_b32 v{vT1}, 2, v{vL}
    v_mov_b32 v{vX}, 0
    s_sub_u32 s{sWm}, s{sW}, 1
    s_cbranch_scc1 L_clear
    s_cmp_eq_u32 s{sW}, 7
    s_cbranch_scc1 L_wait0
    """)
    if wp:
        assert cx == 0 and seg == 64
        e(f"""
        s_and_b32 s{sT1}, s{sIdx}, 3
        s_mul_i32 s{sT0}, s{sWm}, 48
        s_mul_i32 s{sT1}, s{sT1}, 288
        v_lshrrev_b32 v{vA}, 4, v{vL}
        v_and_b32 v{vX}, 0xf0, v{vLin}
        s_add_u32 s{sT0}, s{sT0}, s{sT1}
        v_mul_u32_u24 v{vT2}, 0xc000, v{vA}
        v_mad_u32_u24 v{vA}, v{vA}, 12, s{sT0}
        s_lshl_b32 s{sWq}, s{sT0}, 12
        s_lshr_b32 s{sT1}, s{sIdx}, 2
        s_lshl_b32 s{sT1}, s{sT1}, 8
        v_add_u32 v{vX}, v{vX}, v{vT2}
        v_mov_b32 v{vT2}, v{vA}
        s_add_u32 s{sWq}, s{sWq}, s{sT1}
        """)
    else:
        e(f"""
        s_mul_i32 s{sT0}, s{sWm}, 0xc0
        v_mul_u32_u24 v{vX}, 0xc000, v{vT1}
        v_mul_u32_u24 v{vT2}, 12, v{vT1}
        v_lshl_or_b32 v{vX}, v{vT0}, 4, v{vX}
        v_add_u32 v{vT2}, s{sT0}, v{vT2}
        s_lshl_b32 s{sWq}, s{sT0}, 12
        s_xor_b32 s{sT1}, s{sIdx}, {cx}
        s_lshl_b32 s{sT1}, s{sT1}, 6
        s_add_u32 s{sWq}, s{sWq}, s{sT1}
        """)
    e(f"s_setprio {max(qprio, p0)}")
    wstep = 0x2000
    if seg == 32:
        e(f"""
        v_mul_u32_u24 v{vX}, 0xc000, v{vT1}
        v_and_b32 v{vA}, 1, v{vL}
        v_lshl_or_b32 v{vX}, v{vA}, 4, v{vX}
        v_and_b32 v{vA}, 2, v{vL}
        v_lshl_or_b32 v{vX}, v{vA}, 7, v{vX}
        s_lshl_b32 s{sWq}, s{sT0}, 12
        s_and_b32 s{sT1}, s{sIdx}, 0x78
        s_lshl_b32 s{sT1}, s{sT1}, 6
        s_add_u32 s{sWq}, s{sWq}, s{sT1}
        s_and_b32 s{sT1}, s{sIdx}, 7
        s_lshl_b32 s{sT1}, s{sT1}, 5
        s_add_u32 s{sWq}, s{sWq}, s{sT1}
        """)
    if seg == 16:
        e(f"""
        v_mul_u32_u24 v{vX}, 0xc000, v{vT1}
        v_lshl_or_b32 v{vX}, v{vT0}, 7, v{vX}
        s_lshl_b32 s{sWq}, s{sT0}, 12
        s_and_b32 s{sT1}, s{sIdx}, 0x78
        s_lshl_b32 s{sT1}, s{sT1}, 6
        s_add_u32 s{sWq}, s{sWq}, s{sT1}
        s_and_b32 s{sT1}, s{sIdx}, 7
        s_lshl_b32 s{sT1}, s{sT1}, 4
        s_add_u32 s{sWq}, s{sWq}, s{sT1}
        """)
    if wqoff:
        e(f"s_add_u32 s{sWq}, s{sWq}, {wqoff}")
    if wqstr != 13:
        wstep = wqstr
        e(f"""
        v_mul_u32_u24 v{vX}, {6*wqstr}, v{vT1}
        v_lshl_or_b32 v{vX}, v{vT0}, 4, v{vX}
        s_mul_i32 s{sWq}, s{sWm}, {96*wqstr}
        s_lshl_b32 s{sT1}, s{sIdx}, 6
        s_add_u32 s{sWq}, s{sWq}, s{sT1}
        """)
    if wqp >= 0:
        S = 64 << wqp
        rpl = 1024 // S
        wstep = rpl * 8192
        e(f"""
        v_lshrrev_b32 v{vX}, {2+wqp}, v{vL}
        v_lshlrev_b32 v{vX}, 13, v{vX}
        v_and_b32 v{vA}, {(4<<wqp)-1}, v{vL}
        v_lshl_or_b32 v{vX}, v{vA}, 4, v{vX}
        s_and_b32 s{sT0}, s{sIdx}, {(1<<wqp)-1}
        s_mul_i32 s{sT0}, s{sT0}, 6
        s_add_u32 s{sT0}, s{sT0}, s{sWm}
        s_mul_i32 s{sWq}, s{sT0}, {6*wstep}
        s_lshr_b32 s{sT0}, s{sIdx}, {wqp}
        s_mul_i32 s{sT0}, s{sT0}, {S}
        s_add_u32 s{sWq}, s{sWq}, s{sT0}
        """)
    stamp(1, 4)
    e("s_waitcnt lgkmcnt(0)")
    stamp(2, 4)
    e(f"global_load_dwordx3 {vr(vXr,3)}, v{vT2}, {sp(sX)}")
    for i in range(6):
        e(f"buffer_load_dwordx4 {vr(vH+4*i,4)}, v{vX}, {srd(WQ_)}, s{sWq} offen{NTQ}")
        if i < 5:
            e(f"s_add_u32 s{sWq}, s{sWq}, {wstep}" if wstep != 0x2000 else f"s_addk_i32 s{sWq}, 0x2000")
    stamp(3, 4)
    e("s_branch L_t0")
    e("L_clear:")
    if prio:
        e("s_setprio 3")
    def clears(lbl):
        if lay:
            e(f"""
            s_lshl_b32 s{sT1}, s{sLid}, 7
            s_add_u32 s{sT1}, s{sT1}, {WS_ML}
            buffer_store_dwordx4 {vr(vA,4)}, v{vLin}, {srd(WS_)}, s{sA} offen sc1
            buffer_store_dwordx4 {vr(vA,4)}, v{vLin}, {srd(WS_)}, s{sB} offen sc1
            buffer_store_dwordx4 {vr(vA,4)}, v{vLin}, {srd(WS_)}, s{sB} offen offset:1024 sc1
            s_mov_b64 exec, 0xffff
            buffer_store_dwordx4 {vr(vA,4)}, v{vLin}, {srd(WS_)}, s{sB} offen offset:2048 sc1
            s_mov_b64 exec, 0xff
            buffer_store_dwordx4 {vr(vA+4 if xl else vA,4)}, v{vLin}, {srd(WS_)}, s{sT1} offen sc1
            s_mov_b64 exec, -1
            """)
            return
        e(f"""
        s_mov_b64 exec, 15
        buffer_store_dwordx4 {vr(vA,4)}, v{vLin}, {srd(WS_)}, s{sA} offen offset:1024 sc1
        s_mov_b64 exec, -1
        s_cmp_ge_u32 s{sIdx}, 72
        buffer_store_dwordx4 {vr(vA,4)}, v{vLin}, {srd(WS_)}, s{sA} offen sc1
        s_cbranch_scc1 {lbl}
        buffer_store_dwordx4 {vr(vA,4)}, v{vLin}, {srd(WS_)}, s{sB} offen sc1
        buffer_store_dwordx4 {vr(vA,4)}, v{vLin}, {srd(WS_)}, s{sB} offen offset:1024 sc1
        buffer_store_dwordx4 {vr(vA,4)}, v{vLin}, {srd(WS_)}, s{sB} offen offset:2048 sc1
        buffer_store_dwordx4 {vr(vA,4)}, v{vLin}, {srd(WS_)}, s{sB} offen offset:3072 sc1
        """)
    e(f"""
    v_mov_b32 v{vA}, -1
    v_mov_b32 v{vA+1}, -1
    v_mov_b32 v{vA+2}, -1
    v_mov_b32 v{vA+3}, -1
    v_mov_b32 v{vA+4}, 0
    v_mov_b32 v{vA+5}, 0
    ds_write_b64 v{vA+4}, {vr(vA+4,2)} offset:{LDS_CNT}
    s_and_b32 s{sEp}, s{sLid}, 0x80
    s_add_u32 s{sEp}, s{sEp}, {WS_EP}
    s_lshl_b32 s{sA}, s{sLid}, 11
    s_add_u32 s{sA}, s{sA}, {WS_H1}
    {f"s_mul_i32 s{sB}, s{sLid}, 2304" if lay else f"s_lshl_b32 s{sB}, s{sLid}, 12"}
    s_add_u32 s{sB}, s{sB}, {WS_I2}
    s_waitcnt lgkmcnt(0)
    s_load_dword s{sTag}, {sp(WS_)}, s{sEp}
    """)
    if xl:
        assert lay
        e(f"""
        s_getreg_b32 s{sXc}, hwreg(HW_REG_XCC_ID, 0, 4)
        v_mov_b32 v{vA+4}, -1
        v_mov_b32 v{vA+5}, -1
        v_mov_b32 v{vA+6}, -1
        v_mov_b32 v{vA+7}, s{sXc}
        """)
    if clr == 0:
        if not wqnoclr:
            clears("L_t0")
            if lay:
                e("s_branch L_t0")
        else:
            e("s_cmp_eq_u32 s2, s2\ns_cbranch_scc1 L_t0")
    else:
        e("s_branch L_t0")
    e(f"""
    L_wait0:
    s_waitcnt lgkmcnt(0)
    L_t0:
    s_barrier
    """)
    stamp(1)
    stamp(4, 4)
    e(f"""
    s_and_b32 s{sS}, s{sLid}, 7
    s_lshr_b32 s{sKvh}, s{sIdx}, 3
    s_mov_b32 s{K_+2}, 0x2000000
    s_mov_b32 s{K_+3}, 0x20000
    s_mov_b32 s{V_+2}, 0x2000000
    s_mov_b32 s{V_+3}, 0x20000
    s_mov_b32 s{sStep}, 0x8000
    v_and_b32 v{vT1}, 3, v{vT1}
    v_and_b32 v{vK}, 48, v{vL}
    v_lshl_or_b32 v{vK}, v{vT0}, 10, v{vK}
    v_lshl_or_b32 v{vK}, v{vT1}, 8, v{vK}
    """)
    if rot == 0:
        e(f"s_mov_b32 s{sT0}, s{sW}")
    elif rot == 1:
        e(f"s_add_u32 s{sT0}, s{sW}, s{sIdx}")
        e(f"s_and_b32 s{sT0}, s{sT0}, 7")
    elif rot == 2:
        e(f"s_lshr_b32 s{sT0}, s{sIdx}, 3")
        e(f"s_add_u32 s{sT0}, s{sT0}, s{sW}")
        e(f"s_and_b32 s{sT0}, s{sT0}, 7")
    elif rot == 3:
        e(f"s_lshl_b32 s{sT0}, s{sIdx}, 2")
        e(f"s_xor_b32 s{sT0}, s{sT0}, s{sW}")
        e(f"s_and_b32 s{sT0}, s{sT0}, 7")
    e(f"""
    s_lshl_b32 s{sK}, s{sIdx}, 6
    s_add_u32 s{sK}, s{sK}, s{sT0}
    s_lshl_b32 s{sK}, s{sK}, 12
    s_mov_b32 s{sV}, s{sK}
    v_and_b32 v{vT0}, 1, v{vL}
    v_lshlrev_b32 v{vT0}, 4, v{vT0}
    v_mov_b32 v{vT1}, 0xffff
    v_lshlrev_b32 v{vT0}, v{vT0}, v{vT1}
    v_bfe_u32 v{vT1}, v{vL}, 1, 2
    v_lshlrev_b32_e64 v{vT1}, v{vT1}, 1
    """)
    for d in range(4):
        e(f"v_bfe_i32 v{vM+d}, v{vT1}, {d}, 1")
    for d in range(4):
        e(f"v_and_b32 v{vM+d}, v{vM+d}, v{vT0}")
    e(f"""
    s_mov_b32 s{sC}, 0x3e0293ee
    s_mov_b32 s{sSpin}, {spin}
    s_mov_b32 s{WO_+2}, 0x480000
    s_mov_b32 s{WO_+3}, 0x20000
    v_mov_b32 v{vZ}, 0
    s_cmp_ge_u32 s{sWm}, 6
    s_cbranch_scc1 L_noq
    """)
    slot["K0"] = free.pop(0)
    vq = VM(e)
    vq.add("x")
    for i in range(6):
        vq.add(f"w{i}")
    e(f"""
    v_and_b32 v{vT0}, {15 if wp == 2 else 3}, v{vL}
    v_lshrrev_b32 v{vT1}, 4, v{vL}
    v_lshlrev_b32 v{vT1}, 3, v{vT1}
    v_lshl_or_b32 v{vT0}, v{vT0}, 5, v{vT1}
    s_lshl_b32 s{sT0}, s{sWm}, {9 if wp == 2 else 7}
    v_add_u32 v{vX}, s{sT0}, v{vT0}
    """)
    stamp(5, 4)
    vq.wait_tag("x")
    stamp(6, 4)
    for t in range(3):
        e(f"v_and_b32 v{vXs+4*t}, 0xffff, v{vXr+t}")
        e(f"v_lshlrev_b32 v{vXs+4*t+1}, 16, v{vXr+t}")
        e(f"v_lshrrev_b32 v{vXs+4*t+2}, 16, v{vXr+t}")
        e(f"v_and_b32 v{vXs+4*t+3}, 0xffff0000, v{vXr+t}")
    k0 = 0
    for i in range(6):
        vq.wait_tag(f"w{i}")
        if i == 5:
            stamp(2)
            stamp(7, 4)
        for c in range(8):
            w = vH + 4 * i + (c >> 1)
            x = vXs + 2 * i + (c & 1)
            acc = "0" if i == 0 else f"v{vAcc+c}"
            e(f"v_dot2_f32_bf16 v{vAcc+c}, v{w}, v{x}, {acc}")
        while k0 < 4 and (5 - i) + k0 < uq:
            issue_load("K0", k0)
            vq.add("K0")
            k0 += 1
    for c in range(4):
        e(f"v_permlane32_swap_b32 v{vAcc+c}, v{vAcc+c+4}")
    for c in range(4):
        e(f"v_add_f32 v{vAcc+c}, v{vAcc+c}, v{vAcc+c+4}")
    for c in range(2):
        e(f"v_permlane16_swap_b32 v{vAcc+c}, v{vAcc+c+2}")
    for c in range(2):
        e(f"v_add_f32 v{vAcc+c}, v{vAcc+c}, v{vAcc+c+2}")
    if wp == 0:
        for rot in (8, 4):
            for c in range(2):
                e(f"v_add_f32_dpp v{vAcc+c}, v{vAcc+c}, v{vAcc+c} row_ror:{rot} row_mask:0xf bank_mask:0xf")
        e(f"""
        s_mov_b32 exec_lo, 0x000f000f
        s_mov_b32 exec_hi, 0x000f000f
        """)
    e(f"""
    ds_write_b64 v{vX}, {vr(vAcc,2)} offset:{LDS_RED if wp == 2 else LDS_PART}
    v_mov_b32 v{vT0}, 1
    """)
    stamp(8, 4)
    e(f"""
    s_mov_b64 exec, 1
    ds_add_u32 v{vZ}, v{vT0} offset:{LDS_CNT}
    s_mov_b64 exec, -1
    """)
    if max(qprio, p0) != p0:
        e(f"s_setprio {p0}")
    for i in range(k0, 4):
        issue_load("K0", i)
        vq.add("K0")
    e(f"""
    s_branch L_pre1
    L_noq:
    s_cmp_eq_u32 s{sW}, 0
    s_cbranch_scc1 L_ctl
    """)
    assert not dry
    if dry:
        for r in range(vH + 3, vH + 7):
            e(f"v_mov_b32 v{r}, 0")
        e("""
        s_mov_b64 exec, 0
        s_branch L_t2b
        """)
    else:
        e(f"s_setprio {p0}")
        e("s_branch L_dry_ret")
    e("L_ctl:")
    vc = VM(e)
    if clr == 1 and not wqnoclr:
        clears("L_clr1")
        if not lay:
            e("L_clr1:")
    if clr == 2:
        for t in seq[:jctl]:
            issue(vc, t, None, True)
        clears("L_clr1")
        if not lay:
            e("L_clr1:")
    e(f"""
    v_lshlrev_b32 v{vX}, 3, v{vL}
    s_xor_b32 s{sB}, s{sLid}, {cx}
    s_lshl_b32 s{sB}, s{sB}, 7
    s_and_b32 s{sA}, s{sB}, 0x7c00
    s_lshr_b32 s{sFo}, s{sA}, 3
    s_add_u32 s{sFo}, s{sFo}, {WS_FL}
    """)
    if xq:
        assert wp == 2 and xl and clr == 1
        e(f"""
        s_mov_b32 s{sWo}, s{sA}
        s_mov_b32 s{sWo2}, 0
        """)
    if wp == 2:
        e(f"""
        s_lshl_b32 s{sB}, s{sB}, 3
        s_lshl_b32 s{sA}, s{sA}, 3
        s_add_u32 s{sB}, s{sB}, {WS_QP2}
        s_add_u32 s{sA}, s{sA}, {WS_QP2}
        s_add_u32 s{sMl}, s{sA}, 4096
        """)
    if clr == 0:
        e("s_waitcnt vmcnt(0)")
    stamp(2)
    stamp(7, 4)
    vc.add("x")
    if clr != 2:
        for t in seq[:jctl]:
            issue(vc, t, None, True)
    if xq:
        e(f"""
        s_lshl_b32 s{sT0}, s{sLid}, 7
        v_mov_b32 v{vT2}, s{sXc}
        s_waitcnt lgkmcnt(0)
        s_add_u32 s{sTag}, s{sTag}, {EPC}
        v_mov_b32 v{vT2+1}, s{sTag}
        s_mov_b64 exec, 1
        buffer_store_dwordx2 {vr(vT2,2)}, v{vZ}, {srd(WS_)}, s{sT0} offen sc1
        s_mov_b64 exec, -1
        """)
    e(f"""
    L_cnt:
    ds_read_b32 v{vT0}, v{vZ} offset:{LDS_CNT}
    s_waitcnt lgkmcnt(0)
    v_cmp_ne_u32 vcc, 6, v{vT0}
    s_cbranch_vccz L_cnt_ok
    {SPIN("L_cnt")}
    L_cnt_ok:
    {"" if wp == 2 else "s_mov_b64 exec, 0xffff"}
    """)
    stamp(8, 4)
    for i in range(6):
        e(f"ds_read_b64 {vr(vS+2*i,2)}, v{vX} offset:{LDS_RED+512*i if wp == 2 else LDS_PART+128*i}")
    e(f"""
    {"" if xq else f"s_add_u32 s{sTag}, s{sTag}, {EPC}"}
    s_waitcnt lgkmcnt(0)
    v_pk_add_f32 {vr(vS,2)}, {vr(vS,2)}, {vr(vS+2,2)}
    v_pk_add_f32 {vr(vS+4,2)}, {vr(vS+4,2)}, {vr(vS+6,2)}
    v_pk_add_f32 {vr(vS+8,2)}, {vr(vS+8,2)}, {vr(vS+10,2)}
    v_pk_add_f32 {vr(vS,2)}, {vr(vS,2)}, {vr(vS+4,2)}
    v_pk_add_f32 {vr(vS,2)}, {vr(vS,2)}, {vr(vS+8,2)}
    """)
    if wp == 2:
        e(f"""
        v_mov_b32 v{vS+3}, s{sTag}
        v_mov_b32 v{vS+2}, v{vS+1}
        v_mov_b32 v{vS+1}, s{sTag}
        s_mov_b32 s{sTag+1}, s{sTag}
        {f"v_lshlrev_b32 v{vX}, 7, v{vL}" if xq else ""}
        {"" if clr == 0 else f"s_waitcnt vmcnt({4*jctl+xq if clr == 1 else 0})"}
        {f"s_mov_b64 exec, {hex((1 << (8*wqs)) - 1)}" if wqs else ""}
        buffer_store_dwordx4 {vr(vS,4)}, v{vLin}, {srd(WS_)}, s{sB} offen{(" " + qs if qs else "") if xq else " sc1"}
        {"s_mov_b64 exec, -1" if wqs else ""}
        """)
    else:
        e(f"""
        v_cvt_pk_bf16_f32 v{vS}, v{vS}, v{vS+1}
        v_mov_b32 v{vS+1}, s{sTag}
        s_mov_b32 s{sTag+1}, s{sTag}
        {"" if clr == 0 else f"s_waitcnt vmcnt({4*jctl if clr == 1 else 0})"}
        buffer_store_dwordx2 {vr(vS,2)}, v{vX}, {srd(WS_)}, s{sB} offen sc1
        s_mov_b64 exec, -1
        """)
    stamp(12)
    stamp(9, 4)
    if wp == 2:
        pass
    elif seg == 64:
        e(f"v_mov_b32 v{vS+2}, v{vX}")
    elif seg == 32:
        e(f"""
        v_lshrrev_b32 v{vS+2}, 3, v{vL}
        v_lshlrev_b32 v{vS+2}, 5, v{vS+2}
        v_and_b32 v{vS+3}, 4, v{vL}
        v_lshl_or_b32 v{vS+2}, v{vS+3}, 6, v{vS+2}
        v_and_b32 v{vS+3}, 3, v{vL}
        v_lshl_or_b32 v{vS+2}, v{vS+3}, 3, v{vS+2}
        """)
    else:
        e(f"""
        v_lshrrev_b32 v{vS+2}, 3, v{vL}
        v_lshlrev_b32 v{vS+2}, 4, v{vS+2}
        v_and_b32 v{vS+3}, 6, v{vL}
        v_lshl_or_b32 v{vS+2}, v{vS+3}, 6, v{vS+2}
        v_and_b32 v{vS+3}, 1, v{vL}
        v_lshl_or_b32 v{vS+2}, v{vS+3}, 3, v{vS+2}
        """)
    for t in seq[jctl:jpoll]:
        issue(vc, t, uctl, True)
    if wp == 2:
        Q = RING + 16 * (NSLOT - 2)
        def gl(fl):
            if xq:
                e(f"""
                s_mov_b64 exec, 0xff
                buffer_load_dwordx2 {vr(vH+28,2)}, v{vX}, {srd(WS_)}, s{sWo} offen sc1
                s_mov_b64 exec, -1
                """)
            for j in range(wqg):
                e(f"buffer_load_dwordx4 {vr(Q+4*j,4)}, v{vLin}, {srd(WS_)}, s{sA if j < 4 else sMl} offen offset:{1024*(j&3)}{fl}")
        if qf != "sc1":
            gl(" " + qf.replace("_", " ") if qf else "")
            e("s_branch L_gather2")
        e("L_gather1:")
        gl(" sc1")
        e("L_gather2:")
        if xq:
            e(f"""
            s_waitcnt vmcnt({wqg})
            s_mov_b64 exec, 0xff
            v_cmp_ne_u32 vcc, s{sTag}, v{vH+29}
            v_cmp_ne_u32 {sp(sP0)}, s{sXc}, v{vH+28}
            s_mov_b64 exec, -1
            s_cbranch_vccnz L_again
            s_cmp_eq_u64 {sp(sP0)}, 0
            s_cbranch_scc1 L_chk
            s_cmp_lg_u32 s{sWo2}, 0
            s_cbranch_scc1 L_chk
            buffer_store_dwordx4 {vr(vS,4)}, v{vLin}, {srd(WS_)}, s{sB} offen sc1
            s_mov_b32 s{sWo2}, 1
            L_chk:
            """)
        e("s_waitcnt vmcnt(0)")
        if wqs:
            e("s_mov_b64 exec, 0xff")
        for j in range(wqg):
            if j == 0:
                e(f"v_max_u32 v{vT0}, v{Q+1}, v{Q+3}")
                e(f"v_min_u32 v{vT1}, v{Q+1}, v{Q+3}")
            else:
                e(f"v_max3_u32 v{vT0}, v{vT0}, v{Q+4*j+1}, v{Q+4*j+3}")
                e(f"v_min3_u32 v{vT1}, v{vT1}, v{Q+4*j+1}, v{Q+4*j+3}")
        e(f"""
        v_cmp_ne_u32 vcc, s{sTag}, v{vT0}
        v_cmp_ne_u32 {sp(sP0)}, s{sTag}, v{vT1}
        s_mov_b64 exec, -1
        s_or_b64 vcc, vcc, {sp(sP0)}
        s_cbranch_vccz L_gotq
        L_again:
        s_waitcnt vmcnt(0)
        {SPIN("L_gather1") if wqnoqw != 1 else ""}
        L_gotq:
        """)
        for h in range(2):
            for c in (0, 2):
                b = Q + 16 * h + c
                e(f"v_add_f32 v{b}, v{b}, v{b+4}")
                e(f"v_add_f32 v{b+8}, v{b+8}, v{b+12}")
        for h in range(2):
            for c in (0, 2):
                b = Q + 16 * h + c
                e(f"v_add_f32 v{b}, v{b}, v{b+8}")
        e(f"""
        v_lshlrev_b32 v{vS+2}, 2, v{vL}
        v_cvt_pk_bf16_f32 v{vPoll}, v{Q}, v{Q+2}
        v_cvt_pk_bf16_f32 v{vPoll+2}, v{Q+16}, v{Q+18}
        """)
    else:
        e(f"""
        L_gather1:
        buffer_load_dwordx4 {vr(vPoll,4)}, v{vLin}, {srd(WS_)}, s{sA} offen sc1
        s_waitcnt vmcnt(0)
        v_cmp_ne_u32 vcc, s{sTag}, v{vPoll+1}
        v_cmp_ne_u32 {sp(sP0)}, s{sTag}, v{vPoll+3}
        s_or_b64 vcc, vcc, {sp(sP0)}
        s_cbranch_vccz L_gotq
        {SPIN("L_gather1") if wqnoqw != 1 else ""}
        L_gotq:
        """)
    e(f"""
    v_mov_b32 v{vT0}, 1
    v_mov_b32 v{vT1}, s{sTag}
    ds_write2_b32 v{vS+2}, v{vPoll}, v{vPoll+2} offset0:0 offset1:{64 if wp == 2 else 1}
    s_and_b32 s{sT0}, s{sLid}, 0x7f
    s_and_b32 s{sT1}, s{sLid}, 7
    {"" if lay else f"s_cselect_b32 s{sT0}, 0x7f, s{sT0}"}
    {"" if lay else f"s_cmp_ge_u32 s{sT0}, 72"}
    s_waitcnt lgkmcnt(0)
    ds_write_b32 v{vZ}, v{vT0} offset:{LDS_CNT+4}
    s_cbranch_scc1 L_noep
    s_and_b32 s{sT1}, s{sLid}, 0x80
    s_lshl_b32 s{sT1}, s{sT1}, 4
    s_lshr_b32 s{sT0}, s{sT0}, 1
    s_add_u32 s{sT0}, s{sT0}, s{sT1}
    s_add_u32 s{sT0}, s{sT0}, {WS_FL}
    v_lshlrev_b32 v{vT2}, 7, v{vL}
    s_mov_b64 exec, {"0x1ff" if lay else "0xffff"}
    buffer_store_dword v{vT1}, v{vT2}, {srd(WS_)}, s{sT0} offen sc1
    s_mov_b64 exec, -1
    L_noep:
    """)
    if xl and not xq:
        e(f"""
        s_and_b32 s{sT0}, s{sLid}, 0xf8
        s_lshl_b32 s{sT0}, s{sT0}, 7
        s_add_u32 s{sT0}, s{sT0}, {WS_ML + 12}
        v_lshlrev_b32 v{vH+29}, 7, v{vL}
        s_mov_b64 exec, 0xff
        buffer_load_dword v{vH+28}, v{vH+29}, {srd(WS_)}, s{sT0} offen sc1
        s_mov_b64 exec, -1
        """)
    cp2 = p0 - sum(1 for x in steps if x < jpoll) if cprio2 < 0 else cprio2
    if prio and cp2 != 3:
        e(f"s_setprio {cp2}")
    vc.done = len(vc.ops)
    stamp(3)
    vc.add("fl")
    for t in seq[jpoll:npre]:
        issue(vc, t, uctl)
    e("s_branch L_readq")
    e("L_dry_ret:")
    e("s_mov_b64 exec, -1")
    for i in range(4):
        issue_load("K0", i)
    e("L_pre1:")
    vm = VM(e)
    vm.ops = ["K0"] * 4
    issue_end("K0")
    for k in range(1, npre):
        issue(vm, seq[k], upre)
    stamp(3)
    e(f"""
    L_qspin:
    ds_read_b32 v{vT0}, v{vZ} offset:{LDS_CNT+4}
    s_waitcnt lgkmcnt(0)
    v_cmp_eq_u32 vcc, 0, v{vT0}
    s_cbranch_vccz L_readq
    {SPIN("L_qspin") if not wqnoqw else ""}
    L_readq:
    v_bfe_u32 v{vT0}, v{vL}, 3, 1
    v_and_b32 v{vT1}, 48, v{vL}
    v_lshl_or_b32 v{vT0}, v{vT0}, 8, v{vT1}
    """)
    for i in range(4):
        e(f"ds_read_b128 {vr(vQ+4*i,4)}, v{vT0} offset:{LDS_Q+64*i}")
    vm.done = len(vm.ops) - max(len(vm.ops) - vm.done, min(len(vm.ops), len(vc.ops) - vc.done))
    stamp(4)
    e(f"""
    s_lshl_b32 s{sT0}, s{sW}, 10
    v_add_u32 v{vRed}, s{sT0}, v{vLin}
    s_lshl_b32 s{sT0}, s{sW}, 3
    v_lshrrev_b32 v{vMLw}, 2, v{vT0}
    v_and_b32 v{vMLw}, 64, v{vMLw}
    v_add_u32 v{vMLw}, s{sT0}, v{vMLw}
    """)
    if lay:
        e(f"v_lshlrev_b32 v{vH+25}, 2, v{vL}")
    if woat >= 0:
        e(wo_addr)
        e(t3_addr)
    e(f"""
    s_mov_b32 vcc_lo, 0x00ff00ff
    s_mov_b32 vcc_hi, 0xff00ff00
    s_waitcnt lgkmcnt(0)
    """)
    if wqnoqw:
        for r in range(vQ, vQ + 16):
            e(f"v_mov_b32 v{r}, 0")
    if wqnocomp:
        for r in list(range(vS, vS + 16)) + list(range(vD, vD + 4)) + [vMx, vAl, vLs, vLs + 1, vN0, vN1]:
            e(f"v_mov_b32 v{r}, 0")

    st = {"sreg": {}, "sfree": [0, 1, 2, 3]}

    def softmax(c):
        sreg = st["sreg"]
        s0 = vS + 4 * sreg[2 * c]
        s1 = vS + 4 * sreg[2 * c + 1]
        nn, no = (vN0, vN1) if c % 2 == 0 else (vN1, vN0)
        if c == 0:
            e(f"v_max3_f32 v{vT0}, v{s0}, v{s0+1}, v{s0+2}")
            e(f"v_max3_f32 v{vT0}, v{vT0}, v{s0+3}, v{s1}")
            e(f"v_max3_f32 v{vT0}, v{vT0}, v{s1+1}, v{s1+2}")
            e(f"v_max_f32 v{vMx}, v{vT0}, v{s1+3}")
        else:
            e(f"v_max3_f32 v{vT0}, v{s0}, v{s0+1}, v{s0+2}")
            e(f"v_max3_f32 v{vMx}, v{vMx}, v{s0+3}, v{vT0}")
            e(f"v_max3_f32 v{vT0}, v{s1}, v{s1+1}, v{s1+2}")
            e(f"v_max3_f32 v{vMx}, v{vMx}, v{s1+3}, v{vT0}")
        allreduce(vMx, vT0, "v_max_f32")
        e(f"v_mul_f32 v{nn}, 0xbe0293ee, v{vMx}")
        for b in (s0, s1):
            for r in range(4):
                e(f"v_fma_f32 v{b+r}, v{b+r}, s{sC}, v{nn}")
        if c > 0:
            e(f"v_sub_f32 v{vAl}, v{nn}, v{no}")
            e(f"v_exp_f32 v{vAl}, v{vAl}")
        for b in (s0, s1):
            for r in range(4):
                e(f"v_exp_f32 v{b+r}, v{b+r}")
        if c > 0:
            e(f"v_cndmask_b32_dpp v{vAD}, v{vAl}, v{vAl}, vcc row_ror:8 row_mask:0xf bank_mask:0xf")
        e(f"v_pk_add_f32 {vr(vA,2)}, {vr(s0,2)}, {vr(s0+2,2)}")
        e(f"v_pk_add_f32 {vr(vT2,2)}, {vr(s1,2)}, {vr(s1+2,2)}")
        if c == 0:
            e(f"v_pk_add_f32 {vr(vLs,2)}, {vr(vA,2)}, {vr(vT2,2)}")
        else:
            e(f"v_pk_add_f32 {vr(vT2,2)}, {vr(vA,2)}, {vr(vT2,2)}")
            e(f"v_fma_f32 v{vLs}, v{vLs}, v{vAl}, v{vT2}")
            e(f"v_fma_f32 v{vLs+1}, v{vLs+1}, v{vAl}, v{vT2+1}")
        for b in (s0, s1):
            for r in range(4):
                e(f"v_cvt_pk_bf16_f32 v{b+r}, v{b+r}, v{b+r}")
        if c == 3:
            e(f"v_add_f32 v{vLt}, v{vLs}, v{vLs+1}")
            allreduce(vLt, vT0, "v_add_f32")
            e(f"ds_write_b64 v{vMLw}, {vr(vN1,2)} offset:{LDS_ML}")

    def diag_mfma(dst, pregs, bregs, zero_first):
        n = len(pregs)

        def ands(i):
            for d in range(4):
                e(f"v_and_b32 v{vA+4*(i&1)+d}, v{pregs[i]}, v{vM+d}")
        ands(0)
        for i in range(n):
            if i + 1 < n:
                ands(i + 1)
            c = "0" if (zero_first and i == 0) else vr(dst, 4)
            e(f"v_mfma_f32_16x16x32_bf16 {vr(dst,4)}, {vr(vA+4*(i&1),4)}, {vr(bregs[i],4)}, {c}")

    def process(vm, t):
        sreg, sfree = st["sreg"], st["sfree"]
        n = int(t[1])
        base = RING + 16 * slot[t]
        if t[0] == "K":
            sreg[n] = sfree.pop(0)
            s = vS + 4 * sreg[n]
            vm.wait_tag(t)
            for i in range(4 if not wqnocomp else 0):
                c = "0" if i == 0 else vr(s, 4)
                e(f"v_mfma_f32_16x16x32_bf16 {vr(s,4)}, {vr(base+4*i,4)}, {vr(vQ+4*i,4)}, {c}")
            if n & 1 and (not wqnocomp or n == 7):
                softmax(n >> 1)
        else:
            s = vS + 4 * sreg[n]
            if n > 0 and n % 2 == 0:
                for r in range(4):
                    e(f"v_mul_f32 v{vD+r}, v{vAD}, v{vD+r}")
            vm.wait_tag(t)
            if n == 7:
                stamp(6)
            if not wqnocomp:
                diag_mfma(vD, [s + r for r in range(4)], [base + 4 * r for r in range(4)], n == 0)
            sfree.append(sreg[n])
        free.append(slot[t])

    def flags(ip):
        if noflag:
            return
        if lay:
            vF, vFo = vH + 24, vH + 25
            if ip == pf1:
                e(f"""
                s_cmp_lg_u32 s{sW}, 0
                s_cbranch_scc1 L_pf1
                s_cmp_ge_u32 s{sIdx}, 72
                s_cbranch_scc1 L_pf1
                s_mov_b64 exec, 0xffff
                buffer_load_dword v{vF}, v{vFo}, {srd(WS_)}, s{sFo} offen sc1
                s_mov_b64 exec, -1
                L_pf1:
                """)
                st["pf"] = len(vm.ops)
            if ip == pf2:
                e(f"""
                s_cmp_lg_u32 s{sW}, 0
                s_cbranch_scc1 L_pf3
                s_cmp_ge_u32 s{sIdx}, 72
                s_cbranch_scc1 L_pf3
                s_mov_b64 exec, 0xffff
                s_waitcnt vmcnt({len(vm.ops) - st["pf"]})
                L_pf2:
                v_cmp_ne_u32 {sp(sF)}, s{sTag}, v{vF}
                s_cmp_eq_u64 {sp(sF)}, 0
                s_cbranch_scc1 L_pf4
                buffer_load_dword v{vF}, v{vFo}, {srd(WS_)}, s{sFo} offen sc1
                s_waitcnt vmcnt(0)
                {SPIN("L_pf2")}
                L_pf4:
                s_mov_b64 exec, -1
                L_pf3:
                """)
            return
        if ip == pf1:
            e(f"""
            s_cmp_lg_u32 s{sW}, 0
            s_cbranch_scc1 L_pf1
            s_load_dwordx8 s[{sF}:{sF+7}], {sp(WS_)}, s{sFo} glc
            s_load_dword s{sF+8}, {sp(WS_)}, s{sFo} offset:32 glc
            L_pf1:
            """)
        if ip == pf2:
            e(f"""
            s_cmp_lg_u32 s{sW}, 0
            s_cbranch_scc1 L_pf3
            L_pf2:
            s_waitcnt lgkmcnt(0)
            s_xor_b64 {sp(sF)}, {sp(sF)}, {sp(sTag)}
            s_xor_b64 {sp(sF+2)}, {sp(sF+2)}, {sp(sTag)}
            s_xor_b64 {sp(sF+4)}, {sp(sF+4)}, {sp(sTag)}
            s_xor_b64 {sp(sF+6)}, {sp(sF+6)}, {sp(sTag)}
            s_xor_b32 s{sF+8}, s{sF+8}, s{sTag}
            s_or_b64 {sp(sF)}, {sp(sF)}, {sp(sF+2)}
            s_or_b64 {sp(sF+4)}, {sp(sF+4)}, {sp(sF+6)}
            s_or_b32 s{sF}, s{sF}, s{sF+8}
            s_or_b64 {sp(sF)}, {sp(sF)}, {sp(sF+4)}
            s_cbranch_scc0 L_pf3
            s_load_dwordx8 s[{sF}:{sF+7}], {sp(WS_)}, s{sFo} glc
            s_load_dword s{sF+8}, {sp(WS_)}, s{sFo} offset:32 glc
            {SPIN("L_pf2")}
            s_waitcnt lgkmcnt(0)
            L_pf3:
            """)

    assert 0 < pf1 < pf2 <= seq.index("K7") + 1
    ip, ii = 0, npre
    UWO = umain if uwo < 0 else (uwo if uwo else None)
    while ii < 16:
        k = ratio if (ii - ip) > la else 1
        for _ in range(k):
            process(vm, seq[ip])
            ip += 1
            flags(ip)
        if woat >= 0 and ii == woat:
            issue_wo(vm, UWO, 0, 8 if not wosplit else 4)
        if woat >= 0 and wosplit and ii == woat + wosplit:
            issue_wo(vm, UWO, 4, 8)
        issue(vm, seq[ii], umain)
        ii += 1
    if woat == 16 - wosplit and wopos == 0:
        issue_wo(vm, UWO, 4 if wosplit else 0, 8)
    if woat == 16 and wopos:
        for _ in range(wopos):
            process(vm, seq[ip])
            ip += 1
            flags(ip)
        issue_wo(vm, UWO, 0, 8)
    while seq.index("K7") >= ip:
        process(vm, seq[ip])
        ip += 1
        flags(ip)
    rest = seq[ip:]
    if woat < 0:
        wo_slots[:] = [free[0], free[1]]
    fs = [s for s in range(NSLOT) if s not in wo_slots]

    def finish(vm):
        save = (dict(st["sreg"]), list(st["sfree"]), list(free))
        for t in rest:
            process(vm, t)
        e(f"ds_write_b128 v{vRed}, {vr(vD,4)} offset:{LDS_RED}")
        st["sreg"], st["sfree"] = save[0], save[1]
        free[:] = save[2]

    Z = vH + 8

    X = vH + 8
    first_poll = f"""
    buffer_load_dwordx2 {vr(X,2)}, v{vPa}, {srd(WS_)}, s{sA} offen sc1
    buffer_load_dwordx2 {vr(X+2,2)}, v{vPa}, {srd(WS_)}, s{sA} offen offset:512 sc1
    buffer_load_dwordx2 {vr(X+4,2)}, v{vPb}, {srd(WS_)}, s{sMl} offen sc1
    buffer_load_dwordx2 {vr(X+6,2)}, v{vPb}, {srd(WS_)}, s{sMl} offen offset:512 sc1
    """
    if early:
        assert t3 and lay and woat >= 0 and asplit
    if asplit:
        e(f"""
        s_cmp_gt_u32 s{sW}, 3
        s_cbranch_scc1 L_B
        """)
        finish(vm.copy())
        if woat < 0:
            e(wo_addr)
            e(t3_addr)
        e(f"""
        s_cmp_eq_u32 s{sW}, 0
        s_waitcnt lgkmcnt(0)
        s_barrier
        s_cbranch_scc1 L_c3
        """)
        stamp(5)
        if woat < 0:
            issue_wo(vm.copy())
        if early:
            e(first_poll)
        e(f"""
        s_branch L_bf3
        L_B:
        s_cmp_gt_u32 s{sW}, 5
        s_cbranch_scc1 L_B67
        """)
    else:
        e(f"""
        s_cmp_eq_u32 s{sW}, 0
        s_cbranch_scc1 L_c3a
        s_cmp_gt_u32 s{sW}, 5
        s_cbranch_scc1 L_B67
        """)
    if woat < 0:
        e(wo_addr)
    e(f"""
    s_waitcnt lgkmcnt(0)
    s_barrier
    """)
    stamp(5)
    vb = vm.copy()
    if woat < 0:
        issue_wo(vb)
        e(t3_addr)
    if early:
        e(first_poll)
        for _ in range(4):
            vb.add("poll")
    finish(vb)
    X = vH + 8
    F0, F1 = vH + 16, vH + 17
    D0, D1, E = vS, vS + 4, vD
    PB = vQ
    o_loads = f"""
    buffer_load_dwordx2 {vr(X,2)}, v{vPa}, {srd(WS_)}, s{sA} offen sc1
    buffer_load_dwordx2 {vr(X+2,2)}, v{vPa}, {srd(WS_)}, s{sA} offen offset:512 sc1
    """
    o_check = f"""
    v_max3_u32 v{vT0}, v{X}, v{X+1}, v{X+2}
    v_max_u32 v{vT0}, v{vT0}, v{X+3}
    v_cmp_eq_u32 vcc, -1, v{vT0}
    """
    e(f"""
    L_bf3:
    s_waitcnt lgkmcnt(0)
    s_barrier
    """)
    stamp(7)
    if wqnotail:
        e('s_cmp_eq_u32 s2, s2\ns_cbranch_scc1 L_fin')
    M0, M1 = sP0 + 2, sP0 + 4

    def o_repoll(k):
        e(f"""
        v_max_u32 v{vT0}, v{X}, v{X+1}
        v_max_u32 v{vT1}, v{X+2}, v{X+3}
        v_cmp_eq_u32 {sp(M0)}, -1, v{vT0}
        v_cmp_eq_u32 {sp(M1)}, -1, v{vT1}
        s_or_b64 exec, {sp(M0)}, {sp(M1)}
        s_cbranch_scc0 L_or{k}c
        s_mov_b64 exec, {sp(M0)}
        s_cbranch_execz L_or{k}a
        buffer_load_dwordx2 {vr(X,2)}, v{vPa}, {srd(WS_)}, s{sA} offen sc1
        L_or{k}a:
        s_mov_b64 exec, {sp(M1)}
        s_cbranch_execz L_or{k}b
        buffer_load_dwordx2 {vr(X+2,2)}, v{vPa}, {srd(WS_)}, s{sA} offen offset:512 sc1
        L_or{k}b:
        s_mov_b64 exec, -1
        """)

    if t3:
        M2, M3 = sP0 + 6, sF
        if not early:
            e(first_poll)
        e(f"""
        L_ml:
        s_waitcnt vmcnt(0)
        v_max_u32 v{vT0}, v{X+4}, v{X+5}
        v_max_u32 v{vT1}, v{X+6}, v{X+7}
        v_cmp_eq_u32 {sp(M2)}, -1, v{vT0}
        v_cmp_eq_u32 {sp(M3)}, -1, v{vT1}
        """)
        o_repoll(0)
        e(f"""
        L_or0c:
        s_or_b64 exec, {sp(M2)}, {sp(M3)}
        s_cbranch_scc0 L_ml_ok
        s_mov_b64 exec, {sp(M2)}
        s_cbranch_execz L_mla
        buffer_load_dwordx2 {vr(X+4,2)}, v{vPb}, {srd(WS_)}, s{sMl} offen sc1
        L_mla:
        s_mov_b64 exec, {sp(M3)}
        s_cbranch_execz L_mlb
        buffer_load_dwordx2 {vr(X+6,2)}, v{vPb}, {srd(WS_)}, s{sMl} offen offset:512 sc1
        L_mlb:
        s_mov_b64 exec, -1
        {SPIN("L_ml")}
        s_waitcnt vmcnt(0)
        L_ml_ok:
        s_mov_b64 exec, -1
        v_min_f32 v{vMx}, v{X+4}, v{X+6}
        """)
        allreduce(vMx, vT0, "v_min_f32")
        e(f"""
        v_sub_f32 v{F0}, v{vMx}, v{X+4}
        v_sub_f32 v{F1}, v{vMx}, v{X+6}
        v_exp_f32 v{F0}, v{F0}
        v_exp_f32 v{F1}, v{F1}
        v_mul_f32 v{vMx}, v{F0}, v{X+5}
        v_fmac_f32 v{vMx}, v{F1}, v{X+7}
        """)
        allreduce(vMx, vT0, "v_add_f32")
        e(f"""
        v_rcp_f32 v{vMx}, v{vMx}
        v_mul_f32 v{F0}, v{F0}, v{vMx}
        v_mul_f32 v{F1}, v{F1}, v{vMx}
        """)
    else:
        if sel:
            e(f"""
            L_t3b:
            s_cbranch_execz L_t3c
            {o_loads}
            L_ml:
            buffer_load_dwordx2 {vr(X+4,2)}, v{vPb}, {srd(WS_)}, s{sMl if lay else sA} offen offset:{0 if lay else 1024} sc1
            buffer_load_dwordx2 {vr(X+6,2)}, v{vPb}, {srd(WS_)}, s{sMl if lay else sA} offen offset:{512 if lay else 1056} sc1
            s_waitcnt vmcnt(0)
            """)
            o_repoll(0)
            e(f"""
            s_branch L_t3c
            L_or0c:
            s_mov_b64 exec, -1
            L_t3c:
            v_min_f32 v{vMx}, v{X+4}, v{X+6}
            """)
        else:
            e(f"""
            L_t3b:
            s_cbranch_execz L_t3c
            L_ml:
            buffer_load_dwordx2 {vr(X+4,2)}, v{vPb}, {srd(WS_)}, s{sA} offen offset:1024 sc1
            buffer_load_dwordx2 {vr(X+6,2)}, v{vPb}, {srd(WS_)}, s{sA} offen offset:1056 sc1
            {o_loads}
            s_waitcnt vmcnt(0)
            {o_check}
            s_mov_b64 {sp(sP0+2)}, vcc
            s_cbranch_vccz L_t3c
            {o_loads}
            L_t3c:
            v_min_f32 v{vMx}, v{X+4}, v{X+6}
            """)
        allreduce(vMx, vT0, "v_min_f32")
        e(f"""
        v_sub_f32 v{F0}, v{vMx}, v{X+4}
        v_sub_f32 v{F1}, v{vMx}, v{X+6}
        v_exp_f32 v{F0}, v{F0}
        v_exp_f32 v{F1}, v{F1}
        v_mul_f32 v{vMx}, v{F0}, v{X+5}
        v_fmac_f32 v{vMx}, v{F1}, v{X+7}
        """)
        allreduce(vMx, vT0, "v_add_f32")
        e(f"""
        v_cmp_u_f32 vcc, v{vMx}, v{vMx}
        s_cbranch_vccz L_ml_ok
        {"" if sel else "s_waitcnt vmcnt(0)"}
        {SPIN("L_ml")}
        L_ml_ok:
        v_rcp_f32 v{vMx}, v{vMx}
        v_mul_f32 v{F0}, v{F0}, v{vMx}
        v_mul_f32 v{F1}, v{F1}, v{vMx}
        """)
    stamp(8)
    if sel:
        e(f"""
        s_cbranch_execz L_t3e
        s_or_b64 {sp(M0)}, {sp(M0)}, {sp(M1)}
        s_cbranch_scc0 L_t3e
        L_h1:
        s_waitcnt vmcnt(0)
        """)
        o_repoll(1)
        e(f"""
        {SPIN("L_h1")}
        s_waitcnt vmcnt(0)
        L_or1c:
        s_mov_b64 exec, -1
        L_t3e:
        """)
    else:
        e(f"""
        s_cbranch_execz L_t3e
        s_cmp_eq_u64 {sp(sP0+2)}, 0
        s_cbranch_scc1 L_t3e
        L_h1:
        s_waitcnt vmcnt(0)
        {o_check}
        s_cbranch_vccz L_t3e
        {o_loads}
        {SPIN("L_h1")}
        s_waitcnt vmcnt(0)
        L_t3e:
        """)
    stamp(9)
    e(f"""
    v_mfma_f32_16x16x4_f32 {vr(D0,4)}, v{X}, v{F0}, 0
    v_mfma_f32_16x16x4_f32 {vr(D1,4)}, v{X+1}, v{F0}, 0
    v_mfma_f32_16x16x4_f32 {vr(D0,4)}, v{X+2}, v{F1}, {vr(D0,4)}
    v_mfma_f32_16x16x4_f32 {vr(D1,4)}, v{X+3}, v{F1}, {vr(D1,4)}
    """)
    for r in range(4):
        e(f"v_cvt_pk_bf16_f32 v{PB+2*r}, v{D0+r}, v{D0+r}")
    for r in range(4):
        e(f"v_cvt_pk_bf16_f32 v{PB+2*r+1}, v{D1+r}, v{D1+r}")
    diag_mfma(E, [PB + r for r in range(8)], [RING + 16 * wo_slots[r >> 2] + 4 * (r & 3) for r in range(8)], True)
    e(f"""
    s_cbranch_execz L_t4b
    s_mov_b64 exec, {sp(sP0)}
    buffer_store_dwordx4 {vr(E,4)}, v{vPc}, {srd(WS_)}, s{sB} offen sc1
    """)
    if t4bar:
        e("s_barrier")
    stamp(11)
    e(FIN)
    if not asplit:
        e(f"""
        L_c3a:
        v_mov_b32 v{vPd}, 0
        s_waitcnt lgkmcnt(0)
        s_barrier
        """)
    e("L_c3:")
    stamp(5)
    e(f"""
    v_lshrrev_b32 v{vT0}, 5, v{vL}
    v_lshlrev_b32 v{vPb}, 6, v{vT0}
    """)
    if xl:
        e(f"""
        s_mov_b64 exec, 0xff
        v_cmp_ne_u32 {sp(sP0)}, s{sXc}, v{vH+28}
        s_mov_b64 exec, -1
        """)

    def hstore(txt, k):
        if not xl:
            e(txt + " sc1")
            return
        e(f"""
        s_cmp_eq_u64 {sp(sP0)}, 0
        s_cbranch_scc1 L_hs{k}a
        {txt} sc1
        s_branch L_hs{k}b
        L_hs{k}a:
        {txt}
        L_hs{k}b:
        """)
    for i in range(4):
        e(f"ds_read_b128 {vr(Z+4*i,4)}, v{vPb} offset:{LDS_ML+16*i}")
    e(f"""
    v_bfe_u32 v{vT1}, v{vL}, 2, 2
    v_lshl_or_b32 v{vT1}, v{vT0}, 2, v{vT1}
    v_lshlrev_b32 v{vPc}, 11, v{vT1}
    v_and_b32 v{vT1}, 3, v{vL}
    v_lshl_or_b32 v{vPa}, v{vT1}, {4 if lay else 5}, v{vPc}
    {f"v_lshlrev_b32 v{vPc}, 4, v{vT1}" if lay else ""}
    {f"v_lshl_or_b32 v{vPc}, v{vT0}, 6, v{vPc}" if lay else ""}
    v_and_b32 v{vT1}, 16, v{vL}
    {f"v_lshl_or_b32 v{vPa}, v{vT1}, 2, v{vPa}" if lay else f"v_or_b32 v{vPa}, v{vPa}, v{vT1}"}
    {f"s_lshl_b32 s{sMl}, s{sLid}, 7" if lay else ""}
    {f"s_add_u32 s{sMl}, s{sMl}, {WS_ML}" if lay else ""}
    s_and_b32 s{sA}, s{sLid}, 0xf8
    s_lshl_b32 s{sA}, s{sA}, 11
    s_add_u32 s{sA}, s{sA}, {WS_H1}
    s_lshl_b32 s{sT0}, s{sS}, 3
    s_add_u32 s{sB}, s{sA}, s{sT0}
    s_lshl_b32 s{sT0}, s{sS}, 7
    s_add_u32 s{sA}, s{sA}, s{sT0}
    s_waitcnt lgkmcnt(0)
    v_min3_f32 v{vT2}, v{Z}, v{Z+2}, v{Z+4}
    v_min3_f32 v{vT0}, v{Z+6}, v{Z+8}, v{Z+10}
    v_min3_f32 v{vT2}, v{vT2}, v{Z+12}, v{Z+14}
    v_min_f32 v{vT2}, v{vT2}, v{vT0}
    """)
    for w in range(8):
        e(f"v_sub_f32 v{Z+2*w}, v{vT2}, v{Z+2*w}")
    for w in range(8):
        e(f"v_exp_f32 v{Z+2*w}, v{Z+2*w}")
    e(f"v_mul_f32 v{vT2+1}, v{Z}, v{Z+1}")
    for w in range(1, 8):
        e(f"v_fmac_f32 v{vT2+1}, v{Z+2*w}, v{Z+2*w+1}")
    if lay:
        e(f"""
        v_mov_b32 v{vS}, v{vT2}
        v_mov_b32 v{vS+1}, v{vT2+1}
        v_mov_b32 v{vS+2}, v{vT2}
        v_mov_b32 v{vS+3}, v{vT2+1}
        s_mov_b32 exec_lo, 15
        s_mov_b32 exec_hi, 15
        """)
        hstore(f"buffer_store_dwordx4 {vr(vS,4)}, v{vPc}, {srd(WS_)}, s{sMl} offen", 0)
        e("s_mov_b64 exec, -1")
    else:
        e(f"""
        s_mov_b32 exec_lo, 0x1111
        s_mov_b32 exec_hi, 0x1111
        buffer_store_dwordx2 {vr(vT2,2)}, v{vPc}, {srd(WS_)}, s{sB} offen offset:1024 sc1
        s_mov_b64 exec, -1
        """)
    if not asplit:
        finish(vm.copy())
    Y = [RING + 16 * fs[-1 - (w >> 2)] + 4 * (w & 3) for w in range(8)]
    e(f"""
    s_waitcnt lgkmcnt(0)
    s_barrier
    """)
    stamp(7)
    if wqnotail:
        e('s_cmp_eq_u32 s2, s2\ns_cbranch_scc1 L_fin')
    e("L_t2b:")
    for w in range(8):
        e(f"ds_read_b128 {vr(Y[w],4)}, v{vLin} offset:{LDS_RED+1024*w}")
    for w in range(8):
        if w in (0, 2, 4, 6):
            e(f"s_waitcnt lgkmcnt({6-w})")
        for h in (0, 2):
            if w == 0:
                e(f"v_pk_mul_f32 {vr(vD+h,2)}, {vr(Y[0]+h,2)}, {vr(Z,2)} op_sel_hi:[1,0]")
            else:
                e(f"v_pk_fma_f32 {vr(vD+h,2)}, {vr(Y[w]+h,2)}, {vr(Z+2*w,2)}, {vr(vD+h,2)} op_sel_hi:[1,0,1]")
    if not t3:
        e("s_cbranch_execz L_t3b")
    hstore(f"buffer_store_dwordx4 {vr(vD,4)}, v{vPa}, {srd(WS_)}, s{sA} offen", 1)
    stamp(11)
    e(FIN)
    R = RING + 16 * fs[-1]
    e(f"""
    L_B67:
    s_waitcnt lgkmcnt(0)
    s_barrier
    """)
    stamp(5)
    e(f"""
    v_lshrrev_b32 v{vT0}, 4, v{vL}
    v_and_b32 v{vT1}, 1, v{vL}
    v_lshlrev_b32 v{vT0}, 1, v{vT0}
    v_lshl_or_b32 v{vPd}, v{vT1}, 3, v{vT0}
    s_lshl_b32 s{sP0+2}, s{sLid}, 12
    s_add_u32 s{sP0+2}, s{sP0+2}, {WS_I2}
    s_lshr_b32 s{sP0+3}, s{sLid}, 7
    s_mul_i32 s{sP0+3}, s{sP0+3}, 1152
    s_lshl_b32 s{sT0}, s{sIdx}, 4
    s_add_u32 s{sP0+3}, s{sP0+3}, s{sT0}
    v_add_u32 v{vPd}, s{sP0+3}, v{vPd}
    s_and_b32 s{sEp}, s{sLid}, 0x80
    s_add_u32 s{sEp}, s{sEp}, {WS_EP}
    s_load_dword s{sTag}, {sp(WS_)}, s{sEp}
    v_mov_b32 v{vPc}, s{sEp}
    """)
    if lay:
        e(f"""
        v_lshrrev_b32 v{vT0}, 1, v{vL}
        v_mul_u32_u24 v{vPa}, 2304, v{vT0}
        v_lshl_or_b32 v{vPa}, v{vT1}, 6, v{vPa}
        s_and_b32 s{sT0}, s{sLid}, 0x80
        s_mul_i32 s{sT0}, s{sT0}, 2304
        s_add_u32 s{sT0}, s{sT0}, {WS_I2}
        s_and_b32 s{sT1}, s{sIdx}, 3
        s_lshl_b32 s{sT1}, s{sT1}, 4
        s_add_u32 s{sT0}, s{sT0}, s{sT1}
        s_lshr_b32 s{sT1}, s{sIdx}, 2
        s_lshl_b32 s{sT1}, s{sT1}, 7
        s_add_u32 s{sP0+2}, s{sT0}, s{sT1}
        s_add_u32 s{sP0+3}, s{sP0+2}, {73728}
        s_add_u32 s{sP0+4}, s{sP0+2}, {2*73728}
        s_add_u32 s{sP0+5}, s{sP0+2}, {3*73728}
        """)
    if lay == 2:
        e(f"""
        v_mul_u32_u24 v{vPa}, 2304, v{vT0}
        v_lshl_or_b32 v{vPa}, v{vT1}, 4, v{vPa}
        s_and_b32 s{sT0}, s{sLid}, 0x80
        s_mul_i32 s{sT0}, s{sT0}, 2304
        s_add_u32 s{sT0}, s{sT0}, {WS_I2}
        s_lshl_b32 s{sT1}, s{sIdx}, 5
        s_add_u32 s{sP0+2}, s{sT0}, s{sT1}
        s_add_u32 s{sP0+3}, s{sP0+2}, {73728}
        s_add_u32 s{sP0+4}, s{sP0+2}, {2*73728}
        s_add_u32 s{sP0+5}, s{sP0+2}, {3*73728}
        v_lshrrev_b32 v{vT0}, 4, v{vL}
        v_lshlrev_b32 v{vT0}, 1, v{vT0}
        v_lshl_or_b32 v{vPd}, v{vT1}, 4, v{vT0}
        s_lshr_b32 s{sT0}, s{sLid}, 7
        s_mul_i32 s{sT0}, s{sT0}, 1152
        s_and_b32 s{sT1}, s{sIdx}, 0x78
        s_lshl_b32 s{sT1}, s{sT1}, 4
        s_add_u32 s{sT0}, s{sT0}, s{sT1}
        s_and_b32 s{sT1}, s{sIdx}, 3
        s_lshl_b32 s{sT1}, s{sT1}, 5
        s_add_u32 s{sT0}, s{sT0}, s{sT1}
        s_and_b32 s{sT1}, s{sIdx}, 4
        s_lshl_b32 s{sT1}, s{sT1}, 1
        s_add_u32 s{sT0}, s{sT0}, s{sT1}
        v_add_u32 v{vPd}, s{sT0}, v{vPd}
        """)

    def t4_load(i):
        if lay:
            return f"buffer_load_dwordx4 {vr(R+4*i,4)}, v{vPa}, {srd(WS_)}, s{sP0+2+i} offen sc1"
        return f"buffer_load_dwordx4 {vr(R+4*i,4)}, v{vLin}, {srd(WS_)}, s{sP0+2} offen offset:{1024*i} sc1"
    finish(vm.copy())
    e(f"""
    s_waitcnt lgkmcnt(0)
    s_barrier
    """)
    stamp(7)
    if wqnotail:
        e('s_cmp_eq_u32 s2, s2\ns_cbranch_scc1 L_fin')
    e(f"""
    s_cmp_lg_u32 s{sW}, 6
    s_cbranch_scc1 L_fin
    s_cmp_ge_u32 s{sIdx}, 72
    s_cbranch_scc1 L_fin
    {"s_barrier" if t4bar else ""}
    L_t4b:
    s_cbranch_execz L_t4c
    {"" if sel else "L_h2:"}
    """)
    for i in range(4):
        e(t4_load(i))
    if sel:
        MM = [sF + 2 * i for i in range(4)]
        if p4:
            e("s_waitcnt vmcnt(0)")
        e("L_h2:")
        if not p4:
            e("s_waitcnt vmcnt(0)")
        for i in range(4):
            e(f"v_max3_u32 v{vA+i}, v{R+4*i}, v{R+4*i+1}, v{R+4*i+2}")
        for i in range(4):
            e(f"v_max_u32 v{vA+i}, v{vA+i}, v{R+4*i+3}")
        for i in range(4):
            e(f"v_cmp_eq_u32 {sp(MM[i])}, -1, v{vA+i}")
        e(f"""
        s_or_b64 vcc, {sp(MM[0])}, {sp(MM[1])}
        s_or_b64 exec, {sp(MM[2])}, {sp(MM[3])}
        s_or_b64 exec, exec, vcc
        s_cbranch_scc0 L_h2_got
        """)
        for i in range(4):
            e(f"""
            s_mov_b64 exec, {sp(MM[i])}
            s_cbranch_execz L_h2_{i}
            {t4_load(i)}
            L_h2_{i}:
            """)
        e(f"""
        s_mov_b64 exec, -1
        {f"s_waitcnt vmcnt({p4})" if p4 else ""}
        {SPIN("L_h2")}
        s_waitcnt vmcnt(0)
        L_h2_got:
        s_mov_b64 exec, -1
        """)
    else:
        e("s_waitcnt vmcnt(0)")
    e("L_t4c:")
    if p4:
        R0, R = R, vS
        for h in (0, 2):
            e(f"v_pk_add_f32 {vr(R+h,2)}, {vr(R0+h,2)}, {vr(R0+4+h,2)}")
        for h in (0, 2):
            e(f"v_pk_add_f32 {vr(R+4+h,2)}, {vr(R0+8+h,2)}, {vr(R0+12+h,2)}")
        for h in (0, 2):
            e(f"v_pk_add_f32 {vr(R+h,2)}, {vr(R+h,2)}, {vr(R+4+h,2)}")
    else:
        pk_sum(R, 4)
    e(f"""
    v_permlane32_swap_b32 v{R}, v{R+2}
    v_permlane32_swap_b32 v{R+1}, v{R+3}
    v_add_f32 v{R}, v{R}, v{R+2}
    v_add_f32 v{R+1}, v{R+1}, v{R+3}
    v_permlane16_swap_b32 v{R}, v{R+1}
    v_add_f32 v{R}, v{R}, v{R+1}
    v_add_f32_dpp v{R}, v{R}, v{R} row_ror:2 row_mask:0xf bank_mask:0xf
    v_add_f32_dpp v{R}, v{R}, v{R} row_ror:4 row_mask:0xf bank_mask:0xf
    v_add_f32_dpp v{R}, v{R}, v{R} row_ror:8 row_mask:0xf bank_mask:0xf
    """)
    if not sel:
        e(f"""
        v_cmp_u_f32 vcc, v{R}, v{R}
        s_cbranch_vccz L_h2_ok
        {SPIN("L_h2")}
        L_h2_ok:
        """)
    e(f"""
    v_cvt_pk_bf16_f32 v{R}, v{R}, v{R}
    """)
    stamp(9)
    if dry:
        e("s_cbranch_execz L_dry_ret")
    e(f"""
    s_mov_b32 exec_lo, 0x30003
    s_mov_b32 exec_hi, 0x30003
    global_store_short v{vPd}, v{R}, {sp(OUT_)}{" " + osc.replace("_", " ") if osc else ""}
    {"s_waitcnt vmcnt(1)" if p4 else ""}
    s_cmp_lg_u32 s{sIdx}, 0
    s_cbranch_scc1 L_fin
    s_add_u32 s{sTag}, s{sTag}, {EPC}
    v_mov_b32 v{R+1}, s{sTag}
    s_mov_b64 exec, 1
    global_store_dword v{vPc}, v{R+1}, {sp(WS_)}{" " + osc.replace("_", " ") if osc else ""}
    L_fin:
    """)
    if prof:
        e("s_waitcnt vmcnt(0)")
        stamp(10)
        e(f"""
        s_waitcnt lgkmcnt(0)
        s_mov_b64 exec, 1
        s_lshl_b32 s{sT0}, s{sLid}, 3
        s_add_u32 s{sT0}, s{sT0}, s{sW}
        s_lshl_b32 s{sT0}, s{sT0}, 6
        s_add_u32 s{sT0}, s{sT0}, {WS_PROF}
        v_mov_b32 v0, 0
        """)
        if pmode == 5:
            stamp(16, 5)
            e(f"s_lshl_b32 s{sT0}, s{sLid}, 3")
            e(f"s_add_u32 s{sT0}, s{sT0}, s{sW}")
            e(f"s_lshl_b32 s{sT0}, s{sT0}, 7")
            e(f"s_add_u32 s{sT0}, s{sT0}, {WS_PROF}")
            for k in range(16):
                e(f"v_mov_b32 v{8+k}, s{sProf+k}")
            for k in range(6):
                e(f"v_mov_b32 v{24+k}, s{sProf+16+2*k}")
            e(f"s_getreg_b32 s{sT1}, hwreg(HW_REG_XCC_ID)")
            e(f"v_mov_b32 v30, s{sT1}")
            e(f"s_getreg_b32 s{sT1}, hwreg(HW_REG_HW_ID)")
            e(f"v_mov_b32 v31, s{sT1}")
            for k in range(6):
                e(f"buffer_store_dwordx4 v[{8+4*k}:{11+4*k}], v0, {srd(WS_)}, s{sT0} offen offset:{16*k}")
        else:
          for k in range(14):
            e(f"v_mov_b32 v{8+k}, s{sProf+2*k}")
          e(f"s_getreg_b32 s{sT1}, hwreg(HW_REG_XCC_ID)")
          e(f"v_mov_b32 v22, s{sT1}")
          e(f"v_mov_b32 v23, s{sSpin}")
          for k in range(4):
            e(f"buffer_store_dwordx4 v[{8+4*k}:{11+4*k}], v0, {srd(WS_)}, s{sT0} offen offset:{16*k}")
    if pad:
        e(f"""
        s_waitcnt vmcnt(0) lgkmcnt(0)
        L_pad:
        s_memrealtime {sp(sProf+2)}
        s_waitcnt lgkmcnt(0)
        s_sub_u32 s{sT0}, s{sProf+2}, s{sProf}
        s_cmp_lt_u32 s{sT0}, {pad}
        s_cbranch_scc1 L_pad
        """)
    e("L_end:")
    e("s_endpgm")
    nsg = (sProf + 32 if pmode == 5 else sProf + 28) if (prof or pad) else sProf
    e.raw(f""".section .rodata,"a"
.p2align 6
.amdhsa_kernel {KNAME}
  .amdhsa_next_free_vgpr 256
  .amdhsa_next_free_sgpr {nsg}
  .amdhsa_accum_offset 256
  .amdhsa_group_segment_fixed_size 0
  .amdhsa_kernarg_size 104
  .amdhsa_user_sgpr_count 2
  .amdhsa_user_sgpr_kernarg_segment_ptr 1
  .amdhsa_system_sgpr_workgroup_id_x 1
.end_amdhsa_kernel""")
    return e.text()


if __name__ == "__main__":
    kw = {}
    for a in sys.argv[2:]:
        k, v = a.split("=")
        try:
            v = int(v, 0)
        except ValueError:
            pass
        kw[k] = v
    open(sys.argv[1], "w").write(gen(**kw))
```

```python
import sys
from emit import Emitter

KNAME = "concat_heads__gqa_block_cached__gqa_block_cached__decode_kernel"
HEADER = open("header.txt").read()

WS_QP, WS_EP, WS_FL, WS_H1, WS_I2, WS_PROF = 0x0, 0x10000, 0x20000, 0x40000, 0x100000, 0x200000
WS_ML = 0x30000
WS_QP2 = 0x1A0000
EPC = 0x9e3779b9
LDS_Q, LDS_PART, LDS_ML, LDS_CNT, LDS_RED, LDS_SIZE = 0, 512, 1280, 1408, 2048, 10240

vL, vLin, vK, vX = 0, 1, 2, 3
vZ = 54
vM = 4
vQ = 8
vS = 24
vA = 40
vD = 48
vMx, vAl, vAD, vT0 = 52, 53, 54, 55
vLs = 56
vN0, vT1 = 58, 59
vN1, vLt = 60, 61
vT2 = 62
RING = 64
NSLOT = 10
vH = 224
sKa, sKvh, sS, sIdx, sLid, sW, sT0, sT1 = 3, 5, 6, 7, 8, 9, 10, 11
K_, V_, WQ_, WO_, WS_ = 12, 16, 20, 24, 28
OUT_, DBG_, sX = 32, 34, 36
sF = 60
sTag, sEp, sFo = 38, 58, 59
sC, sStep, sK, sV, sWq, sWo, sWo2, sSpin = 40, 41, 42, 43, 44, 45, 46, 47
sA, sB, sWm = 48, 4, 49
sP0 = 50
sMl = 69
sXc = 62
sProf = 70


def srd(b):
    return f"s[{b}:{b+3}]"


def sp(b):
    return f"s[{b}:{b+1}]"


def vr(b, n):
    return f"v[{b}:{b+n-1}]"


class VM:
    def __init__(self, e):
        self.e = e
        self.ops = []
        self.done = 0

    def add(self, tag):
        self.ops.append(tag)

    def wait_n(self, n):
        n = max(n, 0)
        if len(self.ops) - self.done > n:
            assert n <= 63
            self.e(f"s_waitcnt vmcnt({n})")
            self.done = len(self.ops) - n

    def wait_tag(self, tag):
        last = max(i for i, t in enumerate(self.ops) if t == tag)
        self.wait_n(len(self.ops) - 1 - last)

    def copy(self):
        v = VM(self.e)
        v.ops = list(self.ops)
        v.done = self.done
        return v


def gen(npre=6, upre=12, umain=12, uctl=8, la=4, ratio=2, jctl=1, jpoll=6, pr="10,14,16", woat=16, wosplit=0, wqnoqw=0, wqnocomp=0, wqnotail=0, wqnoclr=0, wqcol=0, ntw="nt", wp=2, xq=1, qf="nt", wqg=8, wqs=0, uwo=0, wopos=0, prend=3, pre7=0, kq=0, cup=0, wqk=0, fp=1, b2=0, hop="c3,B67", hopat=0, early_s="WS", qs="", clr=1, t4bar=1, lay=1, xl=1, idmap=0, t3=1, early=1, p4=0, p3=0, osc="", t3c=0, uq=0, pf1=9, pf2=11, nt="nt", ntq="nt", lead=1, prof=False,
        spin=1 << 16, prio=True, pad=0, dry=False, pmode=1, asplit=True, qprio=0, cprio2=-1, rot=0, noflag=0, sx=0, wqp=-1, sel=1, cx=0, wqoff=0, wqsrc=24, wqstr=13, seg=64):
    e = Emitter()
    NT = (" " + nt) if nt else ""
    NTQ = (" " + ntq) if ntq else ""
    NTW = (" " + ntw) if ntw else ""
    if lead == 1:
        seq = ["K0", "K1"] + [x for n in range(6) for x in (f"V{n}", f"K{n+2}")] + ["V6", "V7"]
    elif lead == 2:
        seq = ["K0", "K1", "K2"] + [x for n in range(5) for x in (f"V{n}", f"K{n+3}")] + ["V5", "V6", "V7"]
    assert len(seq) == 16 and len(set(seq)) == 16
    free = list(range(NSLOT - 2 if woat >= 0 else NSLOT))
    slot = {}
    steps = [int(x) for x in str(pr).split(",") if x != ""]
    p0 = len(steps)
    assert p0 <= 3

    P5 = {0: 0, 1: 1, 3: 2, 5: 3, 7: 4, 10: 5}

    def stamp(k, kind=1):
        if prof and pmode == 5:
            if kind == 1 and k in P5:
                e(f"s_memrealtime {sp(sProf+16+2*P5[k])}")
            if kind == 5:
                if k > 0:
                    e("s_waitcnt lgkmcnt(0)")
                    e(f"s_mov_b32 s{sProf+k-1}, s{sProf+28+2*((k-1)&1)}")
                if k < 16:
                    e(f"s_memrealtime {sp(sProf+28+2*(k&1))}")
        elif prof and ((k == 0 and kind == 1) or (kind == pmode and kind != 5)):
            e(f"s_memrealtime {sp(sProf+2*k)}")

    FIN = "s_branch L_fin" if (prof or pad) else "s_endpgm"

    def issue_load(t, i):
        r = RING + 16 * slot[t] + 4 * i
        if t[0] == "K":
            e(f"buffer_load_dwordx4 {vr(r,4)}, v{vK}, {srd(K_)}, s{sK} offen offset:{64*i}{NT}")
        else:
            e(f"buffer_load_dwordx4 {vr(r,4)}, v{vLin}, {srd(V_)}, s{sV} offen offset:{1024*i}{NT}")

    def issue_end(t):
        if t[1] != "7":
            s = sK if t[0] == "K" else sV
            e(f"s_add_u32 s{s}, s{s}, s{sStep}")
        if seq.index(t) >= 3:
            stamp(seq.index(t) - 2, 2)
        if seq.index(t) <= 12:
            stamp(seq.index(t) + 1, 3)
        stamp(seq.index(t), 5)

    def issue(vm, t, u=None, ctl=False):
        if t not in slot:
            slot[t] = free.pop(0)
        if seq.index(t) in steps and not ctl:
            e(f"s_setprio {p0 - 1 - steps.index(seq.index(t))}")
        for i in range(4):
            if u is not None:
                vm.wait_n(u - 1)
            issue_load(t, i)
            vm.add(t)
        issue_end(t)

    def SPIN(lbl):
        return f"s_addk_i32 s{sSpin}, -1\ns_cmpk_gt_i32 s{sSpin}, 0\ns_cbranch_scc1 {lbl}"

    def pk_sum(base, n):
        step = 1
        while step < n:
            for i in range(0, n - step, 2 * step):
                for h in (0, 2):
                    a, b = base + 4 * i + h, base + 4 * (i + step) + h
                    e(f"v_pk_add_f32 {vr(a,2)}, {vr(a,2)}, {vr(b,2)}")
            step *= 2

    def allreduce(v, tmp, op):
        e(f"v_mov_b32 v{tmp}, v{v}")
        e(f"v_permlane16_swap_b32 v{v}, v{tmp}")
        e(f"{op} v{v}, v{v}, v{tmp}")
        e(f"v_mov_b32 v{tmp}, v{v}")
        e(f"v_permlane32_swap_b32 v{v}, v{tmp}")
        e(f"{op} v{v}, v{v}, v{tmp}")

    vRed, vMLw, vWo, vPa, vPb, vPc, vPd = vH, vH + 1, vH + 2, vH + 3, vH + 4, vH + 5, vH + 6
    vXr = vH + 24
    vPoll = vH + 24
    vXs = vS
    vAcc = vA

    wo_addr = f"""
    s_movk_i32 s{sT1}, 0x2400
    v_lshrrev_b32 v{vT1}, 4, v{vL}
    v_and_b32 v{vWo}, 0xff, v{vLin}
    v_mad_u32_u24 v{vWo}, v{vT1}, s{sT1}, v{vWo}
    s_lshl_b32 s{sT0}, s{sWm}, 4
    v_and_b32 v{vT1}, 15, v{vL}
    v_add_u32 v{vT1}, s{sT0}, v{vT1}
    v_cmp_gt_u32 vcc, 72, v{vT1}
    v_mov_b32 v{vT1}, 0x40000000
    s_mul_i32 s{sWo}, s{sIdx}, 0x9000
    s_lshl_b32 s{sT0}, s{sWm}, 8
    s_add_u32 s{sWo}, s{sWo}, s{sT0}
    v_cndmask_b32 v{vWo}, v{vT1}, v{vWo}, vcc
    s_add_u32 s{sWo2}, s{sWo}, 4608
    """
    if wqcol:
        wo_addr = f"""
        s_movk_i32 s{sT1}, 0x2400
        v_lshrrev_b32 v{vT1}, 4, v{vL}
        v_and_b32 v{vWo}, 0xff, v{vLin}
        v_mad_u32_u24 v{vWo}, v{vT1}, s{sT1}, v{vWo}
        v_and_b32 v{vT1}, 15, v{vL}
        v_cmp_gt_u32 vcc, 9, v{vT1}
        v_mov_b32 v{vT1}, 0x40000000
        s_mul_i32 s{sWo}, s{sKvh}, 0x48000
        s_mul_i32 s{sT0}, s{sW}, 0x9000
        s_add_u32 s{sWo}, s{sWo}, s{sT0}
        s_mul_i32 s{sT0}, s{sS}, 144
        s_add_u32 s{sWo}, s{sWo}, s{sT0}
        v_cndmask_b32 v{vWo}, v{vT1}, v{vWo}, vcc
        s_add_u32 s{sWo2}, s{sWo}, 4608
        """
    t3_addr1 = f"""
    v_lshrrev_b32 v{vT0}, 4, v{vL}
    v_lshlrev_b32 v{vPb}, 7, v{vT0}
    v_bfe_u32 v{vT1}, v{vL}, 2, 2
    v_lshlrev_b32 v{vPc}, 7, v{vT1}
    v_lshl_or_b32 v{vPc}, v{vT0}, 6, v{vPc}
    v_lshl_or_b32 v{vPa}, v{vT1}, 4, v{vPb}
    v_and_b32 v{vT1}, 3, v{vL}
    v_lshl_or_b32 v{vPc}, v{vT1}, 4, v{vPc}
    v_and_b32 v{vT1}, 1, v{vL}
    v_lshl_or_b32 v{vPa}, v{vT1}, 3, v{vPa}
    v_and_b32 v{vT1}, 2, v{vL}
    v_lshl_or_b32 v{vPa}, v{vT1}, 5, v{vPa}
    v_mov_b32 v{vPd}, 0
    s_lshl_b32 s{sA}, s{sLid}, 11
    s_add_u32 s{sA}, s{sA}, {WS_H1}
    s_mul_i32 s{sB}, s{sLid}, 2304
    s_lshl_b32 s{sT0}, s{sWm}, 9
    s_add_u32 s{sB}, s{sB}, s{sT0}
    s_add_u32 s{sB}, s{sB}, {WS_I2}
    s_and_b32 s{sMl}, s{sLid}, 0xf8
    s_lshl_b32 s{sMl}, s{sMl}, 7
    s_and_b32 s{sT0}, s{sLid}, 4
    s_lshl_b32 s{sT0}, s{sT0}, 4
    s_add_u32 s{sMl}, s{sMl}, s{sT0}
    s_add_u32 s{sMl}, s{sMl}, {WS_ML}
    s_cmp_eq_u32 s{sWm}, 4
    s_cselect_b32 s{sP0}, 0x00ff00ff, -1
    s_mov_b32 s{sP0+1}, 0
    """
    t3_addr = f"""
    v_and_b32 v{vPa}, 15, v{vL}
    v_lshrrev_b32 v{vT0}, 4, v{vL}
    v_lshlrev_b32 v{vPb}, 3, v{vT0}
    v_lshlrev_b32 v{vPc}, 12, v{vPa}
    v_lshl_or_b32 v{vPc}, v{vT0}, 4, v{vPc}
    v_lshlrev_b32 v{vPa}, 3, v{vPa}
    v_lshl_or_b32 v{vPa}, v{vT0}, 7, v{vPa}
    v_mov_b32 v{vPd}, 0
    s_lshl_b32 s{sA}, s{sLid}, 11
    s_add_u32 s{sA}, s{sA}, {WS_H1}
    s_and_b32 s{sB}, s{sLid}, 0x80
    s_lshl_b32 s{sB}, s{sB}, 12
    s_lshl_b32 s{sT0}, s{sWm}, 16
    s_add_u32 s{sB}, s{sB}, s{sT0}
    s_lshl_b32 s{sT0}, s{sIdx}, 5
    s_add_u32 s{sB}, s{sB}, s{sT0}
    s_add_u32 s{sB}, s{sB}, {WS_I2}
    s_cmp_eq_u32 s{sWm}, 4
    s_cselect_b32 s{sP0}, 0x00ff00ff, -1
    s_mov_b32 s{sP0+1}, 0
    """

    if lay:
        t3_addr = t3_addr1
    if lay == 2:
        t3_addr += f"""
        v_lshrrev_b32 v{vT0}, 4, v{vL}
        v_and_b32 v{vT1}, 7, v{vL}
        v_lshlrev_b32 v{vPc}, 4, v{vT1}
        v_lshl_or_b32 v{vPc}, v{vT0}, 7, v{vPc}
        v_and_b32 v{vT1}, 8, v{vL}
        v_lshl_or_b32 v{vPc}, v{vT1}, 5, v{vPc}
        """

    def issue_wo(vm, u=None, r0=0, r1=8):
        if 16 in steps and r0 == 0:
            assert woat == 16 and not wosplit
            e(f"s_setprio {p0 - 1 - steps.index(16)}")
        for r in range(r0, r1):
            reg = RING + 16 * wo_slots[r >> 2] + 4 * (r & 3)
            if u is not None:
                vm.wait_n(u - 1)
            e(f"buffer_load_dwordx4 {vr(reg,4)}, v{vWo}, {srd(WO_)}, s{sWo if r < 4 else sWo2} offen offset:{1152*(r&3)}{NTW}")
            vm.add("wo")
        if r1 == 8 and prend >= 0:
            e(f"s_setprio {prend}")
    wo_slots = [NSLOT - 2, NSLOT - 1]

    def consts():
        e(f"""
        s_and_b32 s{sS}, s{sLid}, 7
        s_lshr_b32 s{sKvh}, s{sIdx}, 3
        s_mov_b32 s{K_+2}, 0x2000000
        s_mov_b32 s{K_+3}, 0x20000
        s_mov_b32 s{V_+2}, 0x2000000
        s_mov_b32 s{V_+3}, 0x20000
        s_mov_b32 s{sStep}, 0x8000
        v_and_b32 v{vT1}, 3, v{vT1}
        v_and_b32 v{vK}, 48, v{vL}
        v_lshl_or_b32 v{vK}, v{vT0}, 10, v{vK}
        v_lshl_or_b32 v{vK}, v{vT1}, 8, v{vK}
        """)
        if rot == 0:
            e(f"s_mov_b32 s{sT0}, s{sW}")
        elif rot == 1:
            e(f"s_add_u32 s{sT0}, s{sW}, s{sIdx}")
            e(f"s_and_b32 s{sT0}, s{sT0}, 7")
        elif rot == 2:
            e(f"s_lshr_b32 s{sT0}, s{sIdx}, 3")
            e(f"s_add_u32 s{sT0}, s{sT0}, s{sW}")
            e(f"s_and_b32 s{sT0}, s{sT0}, 7")
        elif rot == 3:
            e(f"s_lshl_b32 s{sT0}, s{sIdx}, 2")
            e(f"s_xor_b32 s{sT0}, s{sT0}, s{sW}")
            e(f"s_and_b32 s{sT0}, s{sT0}, 7")
        e(f"""
        s_lshl_b32 s{sK}, s{sIdx}, 6
        s_add_u32 s{sK}, s{sK}, s{sT0}
        s_lshl_b32 s{sK}, s{sK}, 12
        s_mov_b32 s{sV}, s{sK}
        v_and_b32 v{vT0}, 1, v{vL}
        v_lshlrev_b32 v{vT0}, 4, v{vT0}
        v_mov_b32 v{vT1}, 0xffff
        v_lshlrev_b32 v{vT0}, v{vT0}, v{vT1}
        v_bfe_u32 v{vT1}, v{vL}, 1, 2
        v_lshlrev_b32_e64 v{vT1}, v{vT1}, 1
        """)
        for d in range(4):
            e(f"v_bfe_i32 v{vM+d}, v{vT1}, {d}, 1")
        for d in range(4):
            e(f"v_and_b32 v{vM+d}, v{vM+d}, v{vT0}")
        e(f"""
        s_mov_b32 s{sC}, 0x3e0293ee
        s_mov_b32 s{sSpin}, {spin}
        s_mov_b32 s{WO_+2}, 0x480000
        s_mov_b32 s{WO_+3}, 0x20000
        v_mov_b32 v{vZ}, 0
        """)
    e.raw(HEADER.rstrip())
    e.raw(f"; @launch grid=(256,1,1) block=(512,1,1) lds={LDS_SIZE}")
    e.raw('.amdgcn_target "amdgcn-amd-amdhsa--gfx950"')
    e.raw(".text")
    e.raw(f".globl {KNAME}")
    e.raw(".p2align 8")
    e.raw(f".type {KNAME},@function")
    e.raw(f"{KNAME}:")
    hops = [x for x in str(hop).split(",") if x]

    def padspot(name, live=False):
        if name not in hops:
            return
        if live:
            e(f"s_branch P_{name}_skip")
        e(f"P_{name}:\ns_branch L_hopret")
        if live:
            e(f"P_{name}_skip:")

    if fp:
        assert wp == 2 and not (pre7 or kq or cup or pad or sx or wqp >= 0) and clr == 1
        stamp(0)
        late = {"WS": f"s_load_dwordx2 {sp(WS_)}, s[0:1], 96",
                "K": f"s_load_dwordx2 {sp(K_)}, s[0:1], s{sKa} offset:8",
                "V": f"s_load_dwordx2 {sp(V_)}, s[0:1], s{sKa} offset:16",
                "WO": f"s_load_dwordx2 {sp(WO_)}, s[0:1], s{sKa} offset:32",
                "OUT": f"s_load_dwordx2 {sp(OUT_)}, s[0:1], 80"}
        e(f"""
        s_lshr_b32 s{sT0}, s2, 8
        s_cbranch_scc1 L_end
        s_bitcmp1_b32 s2, {7 if idmap else 2}
        s_cselect_b32 s{sKa}, 40, 0
        s_load_dwordx2 {sp(WQ_)}, s[0:1], s{sKa} offset:24
        s_load_dwordx2 {sp(sX)}, s[0:1], s{sKa} offset:0
        """)
        for k in [x for x in str(early_s).split(",") if x]:
            e(late.pop(k))
        e(f"""
        v_lshrrev_b32 v{vLin}, 6, v0
        v_and_b32 v{vL}, 63, v0
        v_readfirstlane_b32 s{sW}, v{vLin}
        s_lshr_b32 s{sLid}, s2, {0 if idmap else 3}
        v_lshrrev_b32 v{vA}, 4, v{vL}
        s_sub_u32 s{sWm}, s{sW}, 1
        s_cmp_ge_u32 s{sWm}, 6
        s_cbranch_scc1 L_rest
        s_and_b32 s{sT0}, s{sLid}, 3
        s_mul_i32 s{sT0}, s{sT0}, 6
        s_add_u32 s{sT0}, s{sT0}, s{sWm}
        s_mul_i32 s{sT0}, s{sT0}, 48
        """)
        if idmap:
            e(f"s_bfe_u32 s{sT1}, s2, 0x50002")
        else:
            e(f"""
            s_and_b32 s{sT1}, s2, 3
            s_lshr_b32 s{sWq}, s2, 5
            s_lshl3_add_u32 s{sT1}, s{sT1}, s{sWq}
            """)
        e(f"""
        s_lshl_b32 s{sT1}, s{sT1}, 8
        s_lshl_b32 s{sWq}, s{sT0}, 12
        s_add_u32 s{sWq}, s{sWq}, s{sT1}
        v_and_b32 v{vX}, 15, v{vL}
        v_mul_u32_u24 v{vA}, 3, v{vA}
        v_lshlrev_b32 v{vX}, 4, v{vX}
        v_lshl_add_u32 v{vT2}, v{vA}, 2, s{sT0}
        v_lshl_or_b32 v{vX}, v{vA}, 14, v{vX}
        s_mov_b32 s{WQ_+2}, 0x480000
        s_mov_b32 s{WQ_+3}, 0x20000
        s_setprio {max(qprio, p0)}
        s_waitcnt lgkmcnt(0)
        """)
        stamp(2, 4)
        e(f"global_load_dwordx3 {vr(vXr,3)}, v{vT2}, {sp(sX)}")
        for i in range(6):
            e(f"buffer_load_dwordx4 {vr(vH+4*i,4)}, v{vX}, {srd(WQ_)}, s{sWq} offen{NTQ}")
            if i < 5:
                e(f"s_addk_i32 s{sWq}, 0x2000")
        vq = VM(e)
        vq.add("x")
        for i in range(6):
            vq.add(f"w{i}")
        slot["K0"] = free.pop(0)
        e("L_rest:")
        for k in late:
            e(late[k])
        stamp(3, 4)
        if prof and pmode not in (4, 5, 6):
            for k in range(1, 14):
                e(f"s_mov_b32 s{sProf+2*k}, 0")
        if not idmap:
            e(f"""
            s_and_b32 s{sT0}, s2, 7
            s_lshl_b32 s{sT0}, s{sT0}, 5
            s_or_b32 s{sLid}, s{sLid}, s{sT0}
            """)
        e(f"""
        s_and_b32 s{sIdx}, s{sLid}, 0x7f
        s_mov_b32 s{WS_+2}, 0x400000
        s_mov_b32 s{WS_+3}, 0x20000
        v_lshlrev_b32 v{vLin}, 4, v{vL}
        v_and_b32 v{vT0}, 3, v{vL}
        v_lshrrev_b32 v{vT1}, 2, v{vL}
        s_cmp_lg_u32 s{sW}, 0
        s_cbranch_scc1 L_t0
        """)
    else:
        stamp(0)
        if prof and pmode not in (5, 6):
            for k in range(1, 14):
                e(f"s_mov_b32 s{sProf+2*k}, 0")
        if pad:
            e(f"s_memrealtime {sp(sProf)}")
        e(f"""
        s_lshr_b32 s{sT0}, s2, 8
        s_cbranch_scc1 L_end
        s_bitcmp1_b32 s2, {7 if idmap else 2}
        s_cselect_b32 s{sKa}, 40, 0
        """)
        stamp(1, 6)
        if wqk:
            e(f"s_load_dwordx2 {sp(WQ_)}, s[0:1], s{sKa} offset:{wqsrc}")
            e("s_waitcnt lgkmcnt(0)")
            stamp(7, 6)
        e(f"""
        s_load_dwordx2 {sp(WQ_)}, s[0:1], s{sKa} offset:{wqsrc}
        s_load_dwordx2 {sp(sX)}, s[0:1], s{sKa} offset:0
        s_load_dwordx2 {sp(WS_)}, s[0:1], 96
        s_load_dwordx2 {sp(K_)}, s[0:1], s{sKa} offset:8
        s_load_dwordx2 {sp(V_)}, s[0:1], s{sKa} offset:16
        s_load_dwordx2 {sp(WO_)}, s[0:1], s{sKa} offset:32
        s_load_dwordx2 {sp(OUT_)}, s[0:1], 80
        """)
        stamp(2, 6)
        e(f"""
        v_lshrrev_b32 v{vLin}, 6, v0
        v_and_b32 v{vL}, 63, v0
        v_readfirstlane_b32 s{sW}, v{vLin}
        s_and_b32 s{sT0}, s2, 7
        s_lshl_b32 s{sT0}, s{sT0}, 5
        s_lshr_b32 s{sLid}, s2, 3
        s_or_b32 s{sLid}, s{sLid}, s{sT0}
        {f"s_mov_b32 s{sLid}, s2" if idmap else (f"s_xor_b32 s{sLid}, s{sLid}, {sx}" if sx else "")}
        s_and_b32 s{sIdx}, s{sLid}, 0x7f
        """)
        stamp(3, 6)
        e(f"""
        s_mov_b32 s{WQ_+2}, 0x480000
        s_mov_b32 s{WQ_+3}, 0x20000
        s_mov_b32 s{WS_+2}, 0x400000
        s_mov_b32 s{WS_+3}, 0x20000
        v_lshlrev_b32 v{vLin}, 4, v{vL}
        v_and_b32 v{vT0}, 3, v{vL}
        v_lshrrev_b32 v{vT1}, 2, v{vL}
        v_mov_b32 v{vX}, 0
        """)
        if pre7 or kq or cup:
            assert wp
            consts()
        e(f"""
        s_sub_u32 s{sWm}, s{sW}, 1
        s_cbranch_scc1 L_clear
        s_cmp_eq_u32 s{sW}, 7
        s_cbranch_scc1 L_wait0
        """)
        stamp(4, 6)
        if wp:
            assert cx == 0 and seg == 64
            e(f"""
            s_and_b32 s{sT1}, s{sIdx}, 3
            s_mul_i32 s{sT0}, s{sWm}, 48
            s_mul_i32 s{sT1}, s{sT1}, 288
            v_lshrrev_b32 v{vA}, 4, v{vL}
            v_and_b32 v{vX}, 0xf0, v{vLin}
            s_add_u32 s{sT0}, s{sT0}, s{sT1}
            v_mul_u32_u24 v{vT2}, 0xc000, v{vA}
            v_mad_u32_u24 v{vA}, v{vA}, 12, s{sT0}
            s_lshl_b32 s{sWq}, s{sT0}, 12
            s_lshr_b32 s{sT1}, s{sIdx}, 2
            s_lshl_b32 s{sT1}, s{sT1}, 8
            v_add_u32 v{vX}, v{vX}, v{vT2}
            v_mov_b32 v{vT2}, v{vA}
            s_add_u32 s{sWq}, s{sWq}, s{sT1}
            """)
        else:
            e(f"""
            s_mul_i32 s{sT0}, s{sWm}, 0xc0
            v_mul_u32_u24 v{vX}, 0xc000, v{vT1}
            v_mul_u32_u24 v{vT2}, 12, v{vT1}
            v_lshl_or_b32 v{vX}, v{vT0}, 4, v{vX}
            v_add_u32 v{vT2}, s{sT0}, v{vT2}
            s_lshl_b32 s{sWq}, s{sT0}, 12
            s_xor_b32 s{sT1}, s{sIdx}, {cx}
            s_lshl_b32 s{sT1}, s{sT1}, 6
            s_add_u32 s{sWq}, s{sWq}, s{sT1}
            """)
        e(f"s_setprio {max(qprio, p0)}")
        wstep = 0x2000
        if seg == 32:
            e(f"""
            v_mul_u32_u24 v{vX}, 0xc000, v{vT1}
            v_and_b32 v{vA}, 1, v{vL}
            v_lshl_or_b32 v{vX}, v{vA}, 4, v{vX}
            v_and_b32 v{vA}, 2, v{vL}
            v_lshl_or_b32 v{vX}, v{vA}, 7, v{vX}
            s_lshl_b32 s{sWq}, s{sT0}, 12
            s_and_b32 s{sT1}, s{sIdx}, 0x78
            s_lshl_b32 s{sT1}, s{sT1}, 6
            s_add_u32 s{sWq}, s{sWq}, s{sT1}
            s_and_b32 s{sT1}, s{sIdx}, 7
            s_lshl_b32 s{sT1}, s{sT1}, 5
            s_add_u32 s{sWq}, s{sWq}, s{sT1}
            """)
        if seg == 16:
            e(f"""
            v_mul_u32_u24 v{vX}, 0xc000, v{vT1}
            v_lshl_or_b32 v{vX}, v{vT0}, 7, v{vX}
            s_lshl_b32 s{sWq}, s{sT0}, 12
            s_and_b32 s{sT1}, s{sIdx}, 0x78
            s_lshl_b32 s{sT1}, s{sT1}, 6
            s_add_u32 s{sWq}, s{sWq}, s{sT1}
            s_and_b32 s{sT1}, s{sIdx}, 7
            s_lshl_b32 s{sT1}, s{sT1}, 4
            s_add_u32 s{sWq}, s{sWq}, s{sT1}
            """)
        if wqoff:
            e(f"s_add_u32 s{sWq}, s{sWq}, {wqoff}")
        if wqstr != 13:
            wstep = wqstr
            e(f"""
            v_mul_u32_u24 v{vX}, {6*wqstr}, v{vT1}
            v_lshl_or_b32 v{vX}, v{vT0}, 4, v{vX}
            s_mul_i32 s{sWq}, s{sWm}, {96*wqstr}
            s_lshl_b32 s{sT1}, s{sIdx}, 6
            s_add_u32 s{sWq}, s{sWq}, s{sT1}
            """)
        if wqp >= 0:
            S = 64 << wqp
            rpl = 1024 // S
            wstep = rpl * 8192
            e(f"""
            v_lshrrev_b32 v{vX}, {2+wqp}, v{vL}
            v_lshlrev_b32 v{vX}, 13, v{vX}
            v_and_b32 v{vA}, {(4<<wqp)-1}, v{vL}
            v_lshl_or_b32 v{vX}, v{vA}, 4, v{vX}
            s_and_b32 s{sT0}, s{sIdx}, {(1<<wqp)-1}
            s_mul_i32 s{sT0}, s{sT0}, 6
            s_add_u32 s{sT0}, s{sT0}, s{sWm}
            s_mul_i32 s{sWq}, s{sT0}, {6*wstep}
            s_lshr_b32 s{sT0}, s{sIdx}, {wqp}
            s_mul_i32 s{sT0}, s{sT0}, {S}
            s_add_u32 s{sWq}, s{sWq}, s{sT0}
            """)
        stamp(1, 4)
        stamp(5, 6)
        e("s_waitcnt lgkmcnt(0)")
        stamp(2, 4)
        stamp(6, 6)
        e(f"global_load_dwordx3 {vr(vXr,3)}, v{vT2}, {sp(sX)}")
        for i in range(6):
            e(f"buffer_load_dwordx4 {vr(vH+4*i,4)}, v{vX}, {srd(WQ_)}, s{sWq} offen{NTQ}")
            if i < 5:
                e(f"s_add_u32 s{sWq}, s{sWq}, {wstep}" if wstep != 0x2000 else f"s_addk_i32 s{sWq}, 0x2000")
        vq = VM(e)
        vq.add("x")
        for i in range(6):
            vq.add(f"w{i}")
        slot["K0"] = free.pop(0)
        for t in seq[:kq]:
            issue(vq, t)
        stamp(3, 4)
        e("s_branch L_t0")
    e("L_clear:")
    if prio:
        e("s_setprio 3")
    def clears(lbl):
        if lay:
            e(f"""
            s_lshl_b32 s{sT1}, s{sLid}, 7
            s_add_u32 s{sT1}, s{sT1}, {WS_ML}
            buffer_store_dwordx4 {vr(vA,4)}, v{vLin}, {srd(WS_)}, s{sA} offen sc1
            buffer_store_dwordx4 {vr(vA,4)}, v{vLin}, {srd(WS_)}, s{sB} offen sc1
            buffer_store_dwordx4 {vr(vA,4)}, v{vLin}, {srd(WS_)}, s{sB} offen offset:1024 sc1
            s_mov_b64 exec, 0xffff
            buffer_store_dwordx4 {vr(vA,4)}, v{vLin}, {srd(WS_)}, s{sB} offen offset:2048 sc1
            s_mov_b64 exec, 0xff
            buffer_store_dwordx4 {vr(vA+4 if xl else vA,4)}, v{vLin}, {srd(WS_)}, s{sT1} offen sc1
            s_mov_b64 exec, -1
            """)
            return
        e(f"""
        s_mov_b64 exec, 15
        buffer_store_dwordx4 {vr(vA,4)}, v{vLin}, {srd(WS_)}, s{sA} offen offset:1024 sc1
        s_mov_b64 exec, -1
        s_cmp_ge_u32 s{sIdx}, 72
        buffer_store_dwordx4 {vr(vA,4)}, v{vLin}, {srd(WS_)}, s{sA} offen sc1
        s_cbranch_scc1 {lbl}
        buffer_store_dwordx4 {vr(vA,4)}, v{vLin}, {srd(WS_)}, s{sB} offen sc1
        buffer_store_dwordx4 {vr(vA,4)}, v{vLin}, {srd(WS_)}, s{sB} offen offset:1024 sc1
        buffer_store_dwordx4 {vr(vA,4)}, v{vLin}, {srd(WS_)}, s{sB} offen offset:2048 sc1
        buffer_store_dwordx4 {vr(vA,4)}, v{vLin}, {srd(WS_)}, s{sB} offen offset:3072 sc1
        """)
    e(f"""
    v_mov_b32 v{vA}, -1
    v_mov_b32 v{vA+1}, -1
    v_mov_b32 v{vA+2}, -1
    v_mov_b32 v{vA+3}, -1
    v_mov_b32 v{vA+4}, 0
    v_mov_b32 v{vA+5}, 0
    ds_write_b64 v{vA+4}, {vr(vA+4,2)} offset:{LDS_CNT}
    s_and_b32 s{sEp}, s{sLid}, 0x80
    s_add_u32 s{sEp}, s{sEp}, {WS_EP}
    s_lshl_b32 s{sA}, s{sLid}, 11
    s_add_u32 s{sA}, s{sA}, {WS_H1}
    {f"s_mul_i32 s{sB}, s{sLid}, 2304" if lay else f"s_lshl_b32 s{sB}, s{sLid}, 12"}
    s_add_u32 s{sB}, s{sB}, {WS_I2}
    s_waitcnt lgkmcnt(0)
    s_load_dword s{sTag}, {sp(WS_)}, s{sEp}
    """)
    if xl:
        assert lay
        e(f"""
        s_getreg_b32 s{sXc}, hwreg(HW_REG_XCC_ID, 0, 4)
        v_mov_b32 v{vA+4}, -1
        v_mov_b32 v{vA+5}, -1
        v_mov_b32 v{vA+6}, -1
        v_mov_b32 v{vA+7}, s{sXc}
        """)
    if clr == 0:
        if not wqnoclr:
            clears("L_t0")
            if lay:
                e("s_branch L_t0")
        else:
            e("s_cmp_eq_u32 s2, s2\ns_cbranch_scc1 L_t0")
    elif not fp:
        e("s_branch L_t0")
    if not fp:
        e(f"""
        L_wait0:
        s_waitcnt lgkmcnt(0)
        """)
    for t in seq[:pre7]:
        issue(VM(e), t)
    e(f"""
    L_t0:
    s_barrier
    """)
    stamp(1)
    stamp(4, 4)
    if not (pre7 or kq or cup):
        consts()
    e(f"""
    s_cmp_ge_u32 s{sWm}, 6
    s_cbranch_scc1 L_noq
    """)
    e(f"""
    v_and_b32 v{vT0}, {15 if wp == 2 else 3}, v{vL}
    v_lshrrev_b32 v{vT1}, 4, v{vL}
    v_lshlrev_b32 v{vT1}, 3, v{vT1}
    v_lshl_or_b32 v{vT0}, v{vT0}, 5, v{vT1}
    s_lshl_b32 s{sT0}, s{sWm}, {9 if wp == 2 else 7}
    v_add_u32 v{vX}, s{sT0}, v{vT0}
    """)
    stamp(5, 4)
    if hops:
        for k, name in enumerate(hops):
            e(f"s_cmp_eq_u32 s{sWm}, {k + hopat}\ns_cbranch_scc1 P_{name}")
        e("L_hopret:")
    if fp:
        e("s_waitcnt lgkmcnt(0)")
    vq.wait_tag("x")
    stamp(6, 4)
    for t in range(3):
        e(f"v_and_b32 v{vXs+4*t}, 0xffff, v{vXr+t}")
        e(f"v_lshlrev_b32 v{vXs+4*t+1}, 16, v{vXr+t}")
        e(f"v_lshrrev_b32 v{vXs+4*t+2}, 16, v{vXr+t}")
        e(f"v_and_b32 v{vXs+4*t+3}, 0xffff0000, v{vXr+t}")
    k0 = 0
    for i in range(6):
        vq.wait_tag(f"w{i}")
        if i == 5:
            stamp(2)
            stamp(7, 4)
        for c in range(8):
            w = vH + 4 * i + (c >> 1)
            x = vXs + 2 * i + (c & 1)
            acc = "0" if i == 0 else f"v{vAcc+c}"
            e(f"v_dot2_f32_bf16 v{vAcc+c}, v{w}, v{x}, {acc}")
        while k0 < 4 and (5 - i) + k0 < uq and not kq:
            issue_load("K0", k0)
            vq.add("K0")
            k0 += 1
    for c in range(4):
        e(f"v_permlane32_swap_b32 v{vAcc+c}, v{vAcc+c+4}")
    for c in range(4):
        e(f"v_add_f32 v{vAcc+c}, v{vAcc+c}, v{vAcc+c+4}")
    for c in range(2):
        e(f"v_permlane16_swap_b32 v{vAcc+c}, v{vAcc+c+2}")
    for c in range(2):
        e(f"v_add_f32 v{vAcc+c}, v{vAcc+c}, v{vAcc+c+2}")
    if wp == 0:
        for rot in (8, 4):
            for c in range(2):
                e(f"v_add_f32_dpp v{vAcc+c}, v{vAcc+c}, v{vAcc+c} row_ror:{rot} row_mask:0xf bank_mask:0xf")
        e(f"""
        s_mov_b32 exec_lo, 0x000f000f
        s_mov_b32 exec_hi, 0x000f000f
        """)
    e(f"""
    ds_write_b64 v{vX}, {vr(vAcc,2)} offset:{LDS_RED if wp == 2 else LDS_PART}
    v_mov_b32 v{vT0}, 1
    """)
    stamp(8, 4)
    e(f"""
    s_mov_b64 exec, 1
    ds_add_u32 v{vZ}, v{vT0} offset:{LDS_CNT}
    s_mov_b64 exec, -1
    """)
    if max(qprio, p0) != p0:
        e(f"s_setprio {p0}")
    if not kq:
        for i in range(k0, 4):
            issue_load("K0", i)
            vq.add("K0")
        issue_end("K0")
    e(f"""
    s_branch L_pre{max(kq, 1)}
    L_noq:
    s_cmp_eq_u32 s{sW}, 0
    s_cbranch_scc1 L_ctl
    """)
    assert not dry
    if dry:
        for r in range(vH + 3, vH + 7):
            e(f"v_mov_b32 v{r}, 0")
        e("""
        s_mov_b64 exec, 0
        s_branch L_t2b
        """)
    else:
        e(f"s_setprio {p0}")
        if fp:
            e("s_waitcnt lgkmcnt(0)")
        e(f"s_branch L_pre{pre7}" if pre7 else "s_branch L_dry_ret")
    padspot("ctl")
    e("L_ctl:")
    vc = VM(e)
    if clr == 1 and not wqnoclr:
        clears("L_clr1")
        if not lay:
            e("L_clr1:")
    if clr == 2:
        for t in seq[:jctl]:
            issue(vc, t, None, True)
        clears("L_clr1")
        if not lay:
            e("L_clr1:")
    e(f"""
    v_lshlrev_b32 v{vX}, 3, v{vL}
    s_xor_b32 s{sB}, s{sLid}, {cx}
    s_lshl_b32 s{sB}, s{sB}, 7
    s_and_b32 s{sA}, s{sB}, 0x7c00
    s_lshr_b32 s{sFo}, s{sA}, 3
    s_add_u32 s{sFo}, s{sFo}, {WS_FL}
    """)
    if xq:
        assert wp == 2 and xl and clr == 1
        e(f"""
        s_mov_b32 s{sWo}, s{sA}
        s_mov_b32 s{sWo2}, 0
        """)
    if wp == 2:
        e(f"""
        s_lshl_b32 s{sB}, s{sB}, 3
        s_lshl_b32 s{sA}, s{sA}, 3
        s_add_u32 s{sB}, s{sB}, {WS_QP2}
        s_add_u32 s{sA}, s{sA}, {WS_QP2}
        s_add_u32 s{sMl}, s{sA}, 4096
        """)
    if clr == 0:
        e("s_waitcnt vmcnt(0)")
    stamp(2)
    stamp(7, 4)
    vc.add("x")
    if clr != 2:
        for t in seq[:jctl]:
            issue(vc, t, None, True)
    if xq:
        e(f"""
        s_lshl_b32 s{sT0}, s{sLid}, 7
        v_mov_b32 v{vT2}, s{sXc}
        s_waitcnt lgkmcnt(0)
        s_add_u32 s{sTag}, s{sTag}, {EPC}
        v_mov_b32 v{vT2+1}, s{sTag}
        s_mov_b64 exec, 1
        buffer_store_dwordx2 {vr(vT2,2)}, v{vZ}, {srd(WS_)}, s{sT0} offen sc1
        s_mov_b64 exec, -1
        """)
    e(f"""
    L_cnt:
    ds_read_b32 v{vT0}, v{vZ} offset:{LDS_CNT}
    s_waitcnt lgkmcnt(0)
    v_cmp_ne_u32 vcc, 6, v{vT0}
    s_cbranch_vccz L_cnt_ok
    {SPIN("L_cnt")}
    L_cnt_ok:
    {"" if wp == 2 else "s_mov_b64 exec, 0xffff"}
    """)
    stamp(8, 4)
    for i in range(6):
        e(f"ds_read_b64 {vr(vS+2*i,2)}, v{vX} offset:{LDS_RED+512*i if wp == 2 else LDS_PART+128*i}")
    e(f"""
    {"" if xq else f"s_add_u32 s{sTag}, s{sTag}, {EPC}"}
    s_waitcnt lgkmcnt(0)
    v_pk_add_f32 {vr(vS,2)}, {vr(vS,2)}, {vr(vS+2,2)}
    v_pk_add_f32 {vr(vS+4,2)}, {vr(vS+4,2)}, {vr(vS+6,2)}
    v_pk_add_f32 {vr(vS+8,2)}, {vr(vS+8,2)}, {vr(vS+10,2)}
    v_pk_add_f32 {vr(vS,2)}, {vr(vS,2)}, {vr(vS+4,2)}
    v_pk_add_f32 {vr(vS,2)}, {vr(vS,2)}, {vr(vS+8,2)}
    """)
    if wp == 2:
        e(f"""
        v_mov_b32 v{vS+3}, s{sTag}
        v_mov_b32 v{vS+2}, v{vS+1}
        v_mov_b32 v{vS+1}, s{sTag}
        s_mov_b32 s{sTag+1}, s{sTag}
        {f"v_lshlrev_b32 v{vX}, 7, v{vL}" if xq else ""}
        {"" if clr == 0 else f"s_waitcnt vmcnt({4*jctl+xq if clr == 1 else 0})"}
        {f"s_mov_b64 exec, {hex((1 << (8*wqs)) - 1)}" if wqs else ""}
        buffer_store_dwordx4 {vr(vS,4)}, v{vLin}, {srd(WS_)}, s{sB} offen{(" " + qs if qs else "") if xq else " sc1"}
        {"s_mov_b64 exec, -1" if wqs else ""}
        """)
    else:
        e(f"""
        v_cvt_pk_bf16_f32 v{vS}, v{vS}, v{vS+1}
        v_mov_b32 v{vS+1}, s{sTag}
        s_mov_b32 s{sTag+1}, s{sTag}
        {"" if clr == 0 else f"s_waitcnt vmcnt({4*jctl if clr == 1 else 0})"}
        buffer_store_dwordx2 {vr(vS,2)}, v{vX}, {srd(WS_)}, s{sB} offen sc1
        s_mov_b64 exec, -1
        """)
    stamp(12)
    stamp(9, 4)
    if wp == 2:
        pass
    elif seg == 64:
        e(f"v_mov_b32 v{vS+2}, v{vX}")
    elif seg == 32:
        e(f"""
        v_lshrrev_b32 v{vS+2}, 3, v{vL}
        v_lshlrev_b32 v{vS+2}, 5, v{vS+2}
        v_and_b32 v{vS+3}, 4, v{vL}
        v_lshl_or_b32 v{vS+2}, v{vS+3}, 6, v{vS+2}
        v_and_b32 v{vS+3}, 3, v{vL}
        v_lshl_or_b32 v{vS+2}, v{vS+3}, 3, v{vS+2}
        """)
    else:
        e(f"""
        v_lshrrev_b32 v{vS+2}, 3, v{vL}
        v_lshlrev_b32 v{vS+2}, 4, v{vS+2}
        v_and_b32 v{vS+3}, 6, v{vL}
        v_lshl_or_b32 v{vS+2}, v{vS+3}, 6, v{vS+2}
        v_and_b32 v{vS+3}, 1, v{vL}
        v_lshl_or_b32 v{vS+2}, v{vS+3}, 3, v{vS+2}
        """)
    for t in seq[jctl:jpoll]:
        issue(vc, t, uctl, True)
    if wp == 2:
        Q = RING + 16 * (NSLOT - 2)
        def gl(fl):
            if xq:
                e(f"""
                s_mov_b64 exec, 0xff
                buffer_load_dwordx2 {vr(vH+28,2)}, v{vX}, {srd(WS_)}, s{sWo} offen sc1
                s_mov_b64 exec, -1
                """)
            for j in range(wqg):
                e(f"buffer_load_dwordx4 {vr(Q+4*j,4)}, v{vLin}, {srd(WS_)}, s{sA if j < 4 else sMl} offen offset:{1024*(j&3)}{fl}")
        if qf != "sc1":
            gl(" " + qf.replace("_", " ") if qf else "")
            e("s_branch L_gather2")
        e("L_gather1:")
        gl(" sc1")
        e("L_gather2:")
        if xq:
            e(f"""
            s_waitcnt vmcnt({wqg})
            s_mov_b64 exec, 0xff
            v_cmp_ne_u32 vcc, s{sTag}, v{vH+29}
            v_cmp_ne_u32 {sp(sP0)}, s{sXc}, v{vH+28}
            s_mov_b64 exec, -1
            s_cbranch_vccnz L_again
            s_cmp_eq_u64 {sp(sP0)}, 0
            s_cbranch_scc1 L_chk
            s_cmp_lg_u32 s{sWo2}, 0
            s_cbranch_scc1 L_chk
            buffer_store_dwordx4 {vr(vS,4)}, v{vLin}, {srd(WS_)}, s{sB} offen sc1
            s_mov_b32 s{sWo2}, 1
            L_chk:
            """)
        e("s_waitcnt vmcnt(0)")
        if wqs:
            e("s_mov_b64 exec, 0xff")
        for j in range(wqg):
            if j == 0:
                e(f"v_max_u32 v{vT0}, v{Q+1}, v{Q+3}")
                e(f"v_min_u32 v{vT1}, v{Q+1}, v{Q+3}")
            else:
                e(f"v_max3_u32 v{vT0}, v{vT0}, v{Q+4*j+1}, v{Q+4*j+3}")
                e(f"v_min3_u32 v{vT1}, v{vT1}, v{Q+4*j+1}, v{Q+4*j+3}")
        e(f"""
        v_cmp_ne_u32 vcc, s{sTag}, v{vT0}
        v_cmp_ne_u32 {sp(sP0)}, s{sTag}, v{vT1}
        s_mov_b64 exec, -1
        s_or_b64 vcc, vcc, {sp(sP0)}
        s_cbranch_vccz L_gotq
        L_again:
        s_waitcnt vmcnt(0)
        {SPIN("L_gather1") if wqnoqw != 1 else ""}
        L_gotq:
        """)
        for h in range(2):
            for c in (0, 2):
                b = Q + 16 * h + c
                e(f"v_add_f32 v{b}, v{b}, v{b+4}")
                e(f"v_add_f32 v{b+8}, v{b+8}, v{b+12}")
        for h in range(2):
            for c in (0, 2):
                b = Q + 16 * h + c
                e(f"v_add_f32 v{b}, v{b}, v{b+8}")
        e(f"""
        v_lshlrev_b32 v{vS+2}, 2, v{vL}
        v_cvt_pk_bf16_f32 v{vPoll}, v{Q}, v{Q+2}
        v_cvt_pk_bf16_f32 v{vPoll+2}, v{Q+16}, v{Q+18}
        """)
    else:
        e(f"""
        L_gather1:
        buffer_load_dwordx4 {vr(vPoll,4)}, v{vLin}, {srd(WS_)}, s{sA} offen sc1
        s_waitcnt vmcnt(0)
        v_cmp_ne_u32 vcc, s{sTag}, v{vPoll+1}
        v_cmp_ne_u32 {sp(sP0)}, s{sTag}, v{vPoll+3}
        s_or_b64 vcc, vcc, {sp(sP0)}
        s_cbranch_vccz L_gotq
        {SPIN("L_gather1") if wqnoqw != 1 else ""}
        L_gotq:
        """)
    e(f"""
    v_mov_b32 v{vT0}, 1
    v_mov_b32 v{vT1}, s{sTag}
    ds_write2_b32 v{vS+2}, v{vPoll}, v{vPoll+2} offset0:0 offset1:{64 if wp == 2 else 1}
    s_and_b32 s{sT0}, s{sLid}, 0x7f
    s_and_b32 s{sT1}, s{sLid}, 7
    {"" if lay else f"s_cselect_b32 s{sT0}, 0x7f, s{sT0}"}
    {"" if lay else f"s_cmp_ge_u32 s{sT0}, 72"}
    s_waitcnt lgkmcnt(0)
    ds_write_b32 v{vZ}, v{vT0} offset:{LDS_CNT+4}
    s_cbranch_scc1 L_noep
    s_and_b32 s{sT1}, s{sLid}, 0x80
    s_lshl_b32 s{sT1}, s{sT1}, 4
    s_lshr_b32 s{sT0}, s{sT0}, 1
    s_add_u32 s{sT0}, s{sT0}, s{sT1}
    s_add_u32 s{sT0}, s{sT0}, {WS_FL}
    v_lshlrev_b32 v{vT2}, 7, v{vL}
    s_mov_b64 exec, {"0x1ff" if lay else "0xffff"}
    buffer_store_dword v{vT1}, v{vT2}, {srd(WS_)}, s{sT0} offen sc1
    s_mov_b64 exec, -1
    L_noep:
    """)
    if xl and not xq:
        e(f"""
        s_and_b32 s{sT0}, s{sLid}, 0xf8
        s_lshl_b32 s{sT0}, s{sT0}, 7
        s_add_u32 s{sT0}, s{sT0}, {WS_ML + 12}
        v_lshlrev_b32 v{vH+29}, 7, v{vL}
        s_mov_b64 exec, 0xff
        buffer_load_dword v{vH+28}, v{vH+29}, {srd(WS_)}, s{sT0} offen sc1
        s_mov_b64 exec, -1
        """)
    cp2 = p0 - sum(1 for x in steps if x < jpoll) if cprio2 < 0 else cprio2
    if prio and cp2 != 3:
        e(f"s_setprio {cp2}")
    vc.done = len(vc.ops)
    stamp(3)
    vc.add("fl")
    for t in seq[jpoll:npre]:
        issue(vc, t, uctl)
    e("s_branch L_readq")
    padspot("pre")
    e("L_dry_ret:")
    e("s_mov_b64 exec, -1")
    if not pre7:
        for i in range(4):
            issue_load("K0", i)
        issue_end("K0")
    vm = VM(e)
    vm.ops = ["K0"] * 4
    assert 4 * max(pre7, kq) <= upre
    for k in range(1, npre):
        e(f"L_pre{k}:")
        if k < min(max(kq, 1), pre7) :
            vm.ops += [seq[k]] * 4
            continue
        issue(vm, seq[k], upre)
    stamp(3)
    e(f"""
    L_qspin:
    ds_read_b32 v{vT0}, v{vZ} offset:{LDS_CNT+4}
    s_waitcnt lgkmcnt(0)
    v_cmp_eq_u32 vcc, 0, v{vT0}
    s_cbranch_vccz L_readq
    {SPIN("L_qspin") if not wqnoqw else ""}
    L_readq:
    v_bfe_u32 v{vT0}, v{vL}, 3, 1
    v_and_b32 v{vT1}, 48, v{vL}
    v_lshl_or_b32 v{vT0}, v{vT0}, 8, v{vT1}
    """)
    for i in range(4):
        e(f"ds_read_b128 {vr(vQ+4*i,4)}, v{vT0} offset:{LDS_Q+64*i}")
    vm.done = len(vm.ops) - max(len(vm.ops) - vm.done, min(len(vm.ops), len(vc.ops) - vc.done))
    stamp(4)
    e(f"""
    s_lshl_b32 s{sT0}, s{sW}, 10
    v_add_u32 v{vRed}, s{sT0}, v{vLin}
    s_lshl_b32 s{sT0}, s{sW}, 3
    v_lshrrev_b32 v{vMLw}, 2, v{vT0}
    v_and_b32 v{vMLw}, 64, v{vMLw}
    v_add_u32 v{vMLw}, s{sT0}, v{vMLw}
    """)
    if lay:
        e(f"v_lshlrev_b32 v{vH+25}, 2, v{vL}")
    if woat >= 0:
        e(wo_addr)
        e(t3_addr)
    e(f"""
    s_mov_b32 vcc_lo, 0x00ff00ff
    s_mov_b32 vcc_hi, 0xff00ff00
    s_waitcnt lgkmcnt(0)
    """)
    if wqnoqw:
        for r in range(vQ, vQ + 16):
            e(f"v_mov_b32 v{r}, 0")
    if wqnocomp:
        for r in list(range(vS, vS + 16)) + list(range(vD, vD + 4)) + [vMx, vAl, vLs, vLs + 1, vN0, vN1]:
            e(f"v_mov_b32 v{r}, 0")

    st = {"sreg": {}, "sfree": [0, 1, 2, 3]}

    def softmax(c):
        sreg = st["sreg"]
        s0 = vS + 4 * sreg[2 * c]
        s1 = vS + 4 * sreg[2 * c + 1]
        nn, no = (vN0, vN1) if c % 2 == 0 else (vN1, vN0)
        if c == 0:
            e(f"v_max3_f32 v{vT0}, v{s0}, v{s0+1}, v{s0+2}")
            e(f"v_max3_f32 v{vT0}, v{vT0}, v{s0+3}, v{s1}")
            e(f"v_max3_f32 v{vT0}, v{vT0}, v{s1+1}, v{s1+2}")
            e(f"v_max_f32 v{vMx}, v{vT0}, v{s1+3}")
        else:
            e(f"v_max3_f32 v{vT0}, v{s0}, v{s0+1}, v{s0+2}")
            e(f"v_max3_f32 v{vMx}, v{vMx}, v{s0+3}, v{vT0}")
            e(f"v_max3_f32 v{vT0}, v{s1}, v{s1+1}, v{s1+2}")
            e(f"v_max3_f32 v{vMx}, v{vMx}, v{s1+3}, v{vT0}")
        allreduce(vMx, vT0, "v_max_f32")
        e(f"v_mul_f32 v{nn}, 0xbe0293ee, v{vMx}")
        for b in (s0, s1):
            for r in range(4):
                e(f"v_fma_f32 v{b+r}, v{b+r}, s{sC}, v{nn}")
        if c > 0:
            e(f"v_sub_f32 v{vAl}, v{nn}, v{no}")
            e(f"v_exp_f32 v{vAl}, v{vAl}")
        for b in (s0, s1):
            for r in range(4):
                e(f"v_exp_f32 v{b+r}, v{b+r}")
        if c > 0:
            e(f"v_cndmask_b32_dpp v{vAD}, v{vAl}, v{vAl}, vcc row_ror:8 row_mask:0xf bank_mask:0xf")
        e(f"v_pk_add_f32 {vr(vA,2)}, {vr(s0,2)}, {vr(s0+2,2)}")
        e(f"v_pk_add_f32 {vr(vT2,2)}, {vr(s1,2)}, {vr(s1+2,2)}")
        if c == 0:
            e(f"v_pk_add_f32 {vr(vLs,2)}, {vr(vA,2)}, {vr(vT2,2)}")
        else:
            e(f"v_pk_add_f32 {vr(vT2,2)}, {vr(vA,2)}, {vr(vT2,2)}")
            e(f"v_fma_f32 v{vLs}, v{vLs}, v{vAl}, v{vT2}")
            e(f"v_fma_f32 v{vLs+1}, v{vLs+1}, v{vAl}, v{vT2+1}")
        for b in (s0, s1):
            for r in range(4):
                e(f"v_cvt_pk_bf16_f32 v{b+r}, v{b+r}, v{b+r}")
        if c == 3:
            e(f"v_add_f32 v{vLt}, v{vLs}, v{vLs+1}")
            allreduce(vLt, vT0, "v_add_f32")
            e(f"ds_write_b64 v{vMLw}, {vr(vN1,2)} offset:{LDS_ML}")

    def diag_mfma(dst, pregs, bregs, zero_first):
        n = len(pregs)

        def ands(i):
            for d in range(4):
                e(f"v_and_b32 v{vA+4*(i&1)+d}, v{pregs[i]}, v{vM+d}")
        ands(0)
        for i in range(n):
            if i + 1 < n:
                ands(i + 1)
            c = "0" if (zero_first and i == 0) else vr(dst, 4)
            e(f"v_mfma_f32_16x16x32_bf16 {vr(dst,4)}, {vr(vA+4*(i&1),4)}, {vr(bregs[i],4)}, {c}")

    def process(vm, t):
        sreg, sfree = st["sreg"], st["sfree"]
        n = int(t[1])
        base = RING + 16 * slot[t]
        if t[0] == "K":
            sreg[n] = sfree.pop(0)
            s = vS + 4 * sreg[n]
            vm.wait_tag(t)
            for i in range(4 if not wqnocomp else 0):
                c = "0" if i == 0 else vr(s, 4)
                e(f"v_mfma_f32_16x16x32_bf16 {vr(s,4)}, {vr(base+4*i,4)}, {vr(vQ+4*i,4)}, {c}")
            if n & 1 and (not wqnocomp or n == 7):
                softmax(n >> 1)
        else:
            s = vS + 4 * sreg[n]
            if n > 0 and n % 2 == 0:
                for r in range(4):
                    e(f"v_mul_f32 v{vD+r}, v{vAD}, v{vD+r}")
            vm.wait_tag(t)
            if n == 7:
                stamp(6)
            if not wqnocomp:
                diag_mfma(vD, [s + r for r in range(4)], [base + 4 * r for r in range(4)], n == 0)
            sfree.append(sreg[n])
        free.append(slot[t])

    def flags(ip):
        if noflag:
            return
        if lay:
            vF, vFo = vH + 24, vH + 25
            if ip == pf1:
                e(f"""
                s_cmp_lg_u32 s{sW}, 0
                s_cbranch_scc1 L_pf1
                s_cmp_ge_u32 s{sIdx}, 72
                s_cbranch_scc1 L_pf1
                s_mov_b64 exec, 0xffff
                buffer_load_dword v{vF}, v{vFo}, {srd(WS_)}, s{sFo} offen sc1
                s_mov_b64 exec, -1
                L_pf1:
                """)
                st["pf"] = len(vm.ops)
            if ip == pf2:
                e(f"""
                s_cmp_lg_u32 s{sW}, 0
                s_cbranch_scc1 L_pf3
                s_cmp_ge_u32 s{sIdx}, 72
                s_cbranch_scc1 L_pf3
                s_mov_b64 exec, 0xffff
                s_waitcnt vmcnt({len(vm.ops) - st["pf"]})
                L_pf2:
                v_cmp_ne_u32 {sp(sF)}, s{sTag}, v{vF}
                s_cmp_eq_u64 {sp(sF)}, 0
                s_cbranch_scc1 L_pf4
                buffer_load_dword v{vF}, v{vFo}, {srd(WS_)}, s{sFo} offen sc1
                s_waitcnt vmcnt(0)
                {SPIN("L_pf2")}
                L_pf4:
                s_mov_b64 exec, -1
                L_pf3:
                """)
            return
        if ip == pf1:
            e(f"""
            s_cmp_lg_u32 s{sW}, 0
            s_cbranch_scc1 L_pf1
            s_load_dwordx8 s[{sF}:{sF+7}], {sp(WS_)}, s{sFo} glc
            s_load_dword s{sF+8}, {sp(WS_)}, s{sFo} offset:32 glc
            L_pf1:
            """)
        if ip == pf2:
            e(f"""
            s_cmp_lg_u32 s{sW}, 0
            s_cbranch_scc1 L_pf3
            L_pf2:
            s_waitcnt lgkmcnt(0)
            s_xor_b64 {sp(sF)}, {sp(sF)}, {sp(sTag)}
            s_xor_b64 {sp(sF+2)}, {sp(sF+2)}, {sp(sTag)}
            s_xor_b64 {sp(sF+4)}, {sp(sF+4)}, {sp(sTag)}
            s_xor_b64 {sp(sF+6)}, {sp(sF+6)}, {sp(sTag)}
            s_xor_b32 s{sF+8}, s{sF+8}, s{sTag}
            s_or_b64 {sp(sF)}, {sp(sF)}, {sp(sF+2)}
            s_or_b64 {sp(sF+4)}, {sp(sF+4)}, {sp(sF+6)}
            s_or_b32 s{sF}, s{sF}, s{sF+8}
            s_or_b64 {sp(sF)}, {sp(sF)}, {sp(sF+4)}
            s_cbranch_scc0 L_pf3
            s_load_dwordx8 s[{sF}:{sF+7}], {sp(WS_)}, s{sFo} glc
            s_load_dword s{sF+8}, {sp(WS_)}, s{sFo} offset:32 glc
            {SPIN("L_pf2")}
            s_waitcnt lgkmcnt(0)
            L_pf3:
            """)

    assert 0 < pf1 < pf2 <= seq.index("K7") + 1
    ip, ii = 0, npre
    UWO = umain if uwo < 0 else (uwo if uwo else None)
    while ii < 16:
        k = ratio if (ii - ip) > la else 1
        for _ in range(k):
            process(vm, seq[ip])
            ip += 1
            flags(ip)
        padspot(f"m{ii}", True)
        if woat >= 0 and ii == woat:
            issue_wo(vm, UWO, 0, 8 if not wosplit else 4)
        if woat >= 0 and wosplit and ii == woat + wosplit:
            issue_wo(vm, UWO, 4, 8)
        issue(vm, seq[ii], umain)
        ii += 1
    if woat == 16 - wosplit and wopos == 0:
        issue_wo(vm, UWO, 4 if wosplit else 0, 8)
    if woat == 16 and wopos:
        for _ in range(wopos):
            process(vm, seq[ip])
            ip += 1
            flags(ip)
        issue_wo(vm, UWO, 0, 8)
    while seq.index("K7") >= ip:
        process(vm, seq[ip])
        ip += 1
        flags(ip)
    rest = seq[ip:]
    if woat < 0:
        wo_slots[:] = [free[0], free[1]]
    fs = [s for s in range(NSLOT) if s not in wo_slots]

    def finish(vm):
        save = (dict(st["sreg"]), list(st["sfree"]), list(free))
        for t in rest:
            process(vm, t)
        e(f"ds_write_b128 v{vRed}, {vr(vD,4)} offset:{LDS_RED}")
        st["sreg"], st["sfree"] = save[0], save[1]
        free[:] = save[2]

    Z = vH + 8

    X = vH + 8
    first_poll = f"""
    buffer_load_dwordx2 {vr(X,2)}, v{vPa}, {srd(WS_)}, s{sA} offen sc1
    buffer_load_dwordx2 {vr(X+2,2)}, v{vPa}, {srd(WS_)}, s{sA} offen offset:512 sc1
    buffer_load_dwordx2 {vr(X+4,2)}, v{vPb}, {srd(WS_)}, s{sMl} offen sc1
    buffer_load_dwordx2 {vr(X+6,2)}, v{vPb}, {srd(WS_)}, s{sMl} offen offset:512 sc1
    """
    if early:
        assert t3 and lay and woat >= 0 and asplit
    if asplit:
        e(f"""
        s_cmp_gt_u32 s{sW}, 3
        s_cbranch_scc1 L_B
        """)
        finish(vm.copy())
        if woat < 0:
            e(wo_addr)
            e(t3_addr)
        e(f"""
        s_cmp_eq_u32 s{sW}, 0
        s_waitcnt lgkmcnt(0)
        s_barrier
        s_cbranch_scc1 L_c3
        """)
        stamp(5)
        if woat < 0:
            issue_wo(vm.copy())
        if early:
            e(first_poll)
        e("s_branch L_bf3")
        padspot("B")
        e(f"""
        L_B:
        s_cmp_gt_u32 s{sW}, 5
        s_cbranch_scc1 L_B67
        """)
    else:
        e(f"""
        s_cmp_eq_u32 s{sW}, 0
        s_cbranch_scc1 L_c3a
        s_cmp_gt_u32 s{sW}, 5
        s_cbranch_scc1 L_B67
        """)
    if woat < 0:
        e(wo_addr)
    e(f"""
    s_waitcnt lgkmcnt(0)
    s_barrier
    """)
    stamp(5)
    vb = vm.copy()
    if woat < 0:
        issue_wo(vb)
        e(t3_addr)
    if early:
        e(first_poll)
        for _ in range(4):
            vb.add("poll")
    finish(vb)
    X = vH + 8
    F0, F1 = vH + 16, vH + 17
    D0, D1, E = vS, vS + 4, vD
    PB = vQ
    o_loads = f"""
    buffer_load_dwordx2 {vr(X,2)}, v{vPa}, {srd(WS_)}, s{sA} offen sc1
    buffer_load_dwordx2 {vr(X+2,2)}, v{vPa}, {srd(WS_)}, s{sA} offen offset:512 sc1
    """
    o_check = f"""
    v_max3_u32 v{vT0}, v{X}, v{X+1}, v{X+2}
    v_max_u32 v{vT0}, v{vT0}, v{X+3}
    v_cmp_eq_u32 vcc, -1, v{vT0}
    """
    e(f"""
    L_bf3:
    s_waitcnt lgkmcnt(0)
    s_barrier
    """)
    stamp(7)
    if wqnotail:
        e('s_cmp_eq_u32 s2, s2\ns_cbranch_scc1 L_fin')
    M0, M1 = sP0 + 2, sP0 + 4
    if b2:
        e("s_barrier")

    def o_repoll(k):
        e(f"""
        v_max_u32 v{vT0}, v{X}, v{X+1}
        v_max_u32 v{vT1}, v{X+2}, v{X+3}
        v_cmp_eq_u32 {sp(M0)}, -1, v{vT0}
        v_cmp_eq_u32 {sp(M1)}, -1, v{vT1}
        s_or_b64 exec, {sp(M0)}, {sp(M1)}
        s_cbranch_scc0 L_or{k}c
        s_mov_b64 exec, {sp(M0)}
        s_cbranch_execz L_or{k}a
        buffer_load_dwordx2 {vr(X,2)}, v{vPa}, {srd(WS_)}, s{sA} offen sc1
        L_or{k}a:
        s_mov_b64 exec, {sp(M1)}
        s_cbranch_execz L_or{k}b
        buffer_load_dwordx2 {vr(X+2,2)}, v{vPa}, {srd(WS_)}, s{sA} offen offset:512 sc1
        L_or{k}b:
        s_mov_b64 exec, -1
        """)

    if t3:
        M2, M3 = sP0 + 6, sF
        if not early:
            e(first_poll)
        e(f"""
        L_ml:
        s_waitcnt vmcnt(0)
        v_max_u32 v{vT0}, v{X+4}, v{X+5}
        v_max_u32 v{vT1}, v{X+6}, v{X+7}
        v_cmp_eq_u32 {sp(M2)}, -1, v{vT0}
        v_cmp_eq_u32 {sp(M3)}, -1, v{vT1}
        """)
        o_repoll(0)
        e(f"""
        L_or0c:
        s_or_b64 exec, {sp(M2)}, {sp(M3)}
        s_cbranch_scc0 L_ml_ok
        s_mov_b64 exec, {sp(M2)}
        s_cbranch_execz L_mla
        buffer_load_dwordx2 {vr(X+4,2)}, v{vPb}, {srd(WS_)}, s{sMl} offen sc1
        L_mla:
        s_mov_b64 exec, {sp(M3)}
        s_cbranch_execz L_mlb
        buffer_load_dwordx2 {vr(X+6,2)}, v{vPb}, {srd(WS_)}, s{sMl} offen offset:512 sc1
        L_mlb:
        s_mov_b64 exec, -1
        {SPIN("L_ml")}
        s_waitcnt vmcnt(0)
        L_ml_ok:
        s_mov_b64 exec, -1
        v_min_f32 v{vMx}, v{X+4}, v{X+6}
        """)
        allreduce(vMx, vT0, "v_min_f32")
        e(f"""
        v_sub_f32 v{F0}, v{vMx}, v{X+4}
        v_sub_f32 v{F1}, v{vMx}, v{X+6}
        v_exp_f32 v{F0}, v{F0}
        v_exp_f32 v{F1}, v{F1}
        v_mul_f32 v{vMx}, v{F0}, v{X+5}
        v_fmac_f32 v{vMx}, v{F1}, v{X+7}
        """)
        allreduce(vMx, vT0, "v_add_f32")
        e(f"""
        v_rcp_f32 v{vMx}, v{vMx}
        v_mul_f32 v{F0}, v{F0}, v{vMx}
        v_mul_f32 v{F1}, v{F1}, v{vMx}
        """)
    else:
        if sel:
            e(f"""
            L_t3b:
            s_cbranch_execz L_t3c
            {o_loads}
            L_ml:
            buffer_load_dwordx2 {vr(X+4,2)}, v{vPb}, {srd(WS_)}, s{sMl if lay else sA} offen offset:{0 if lay else 1024} sc1
            buffer_load_dwordx2 {vr(X+6,2)}, v{vPb}, {srd(WS_)}, s{sMl if lay else sA} offen offset:{512 if lay else 1056} sc1
            s_waitcnt vmcnt(0)
            """)
            o_repoll(0)
            e(f"""
            s_branch L_t3c
            L_or0c:
            s_mov_b64 exec, -1
            L_t3c:
            v_min_f32 v{vMx}, v{X+4}, v{X+6}
            """)
        else:
            e(f"""
            L_t3b:
            s_cbranch_execz L_t3c
            L_ml:
            buffer_load_dwordx2 {vr(X+4,2)}, v{vPb}, {srd(WS_)}, s{sA} offen offset:1024 sc1
            buffer_load_dwordx2 {vr(X+6,2)}, v{vPb}, {srd(WS_)}, s{sA} offen offset:1056 sc1
            {o_loads}
            s_waitcnt vmcnt(0)
            {o_check}
            s_mov_b64 {sp(sP0+2)}, vcc
            s_cbranch_vccz L_t3c
            {o_loads}
            L_t3c:
            v_min_f32 v{vMx}, v{X+4}, v{X+6}
            """)
        allreduce(vMx, vT0, "v_min_f32")
        e(f"""
        v_sub_f32 v{F0}, v{vMx}, v{X+4}
        v_sub_f32 v{F1}, v{vMx}, v{X+6}
        v_exp_f32 v{F0}, v{F0}
        v_exp_f32 v{F1}, v{F1}
        v_mul_f32 v{vMx}, v{F0}, v{X+5}
        v_fmac_f32 v{vMx}, v{F1}, v{X+7}
        """)
        allreduce(vMx, vT0, "v_add_f32")
        e(f"""
        v_cmp_u_f32 vcc, v{vMx}, v{vMx}
        s_cbranch_vccz L_ml_ok
        {"" if sel else "s_waitcnt vmcnt(0)"}
        {SPIN("L_ml")}
        L_ml_ok:
        v_rcp_f32 v{vMx}, v{vMx}
        v_mul_f32 v{F0}, v{F0}, v{vMx}
        v_mul_f32 v{F1}, v{F1}, v{vMx}
        """)
    stamp(8)
    if sel:
        e(f"""
        s_cbranch_execz L_t3e
        s_or_b64 {sp(M0)}, {sp(M0)}, {sp(M1)}
        s_cbranch_scc0 L_t3e
        L_h1:
        s_waitcnt vmcnt(0)
        """)
        o_repoll(1)
        e(f"""
        {SPIN("L_h1")}
        s_waitcnt vmcnt(0)
        L_or1c:
        s_mov_b64 exec, -1
        L_t3e:
        """)
    else:
        e(f"""
        s_cbranch_execz L_t3e
        s_cmp_eq_u64 {sp(sP0+2)}, 0
        s_cbranch_scc1 L_t3e
        L_h1:
        s_waitcnt vmcnt(0)
        {o_check}
        s_cbranch_vccz L_t3e
        {o_loads}
        {SPIN("L_h1")}
        s_waitcnt vmcnt(0)
        L_t3e:
        """)
    stamp(9)
    e(f"""
    v_mfma_f32_16x16x4_f32 {vr(D0,4)}, v{X}, v{F0}, 0
    v_mfma_f32_16x16x4_f32 {vr(D1,4)}, v{X+1}, v{F0}, 0
    v_mfma_f32_16x16x4_f32 {vr(D0,4)}, v{X+2}, v{F1}, {vr(D0,4)}
    v_mfma_f32_16x16x4_f32 {vr(D1,4)}, v{X+3}, v{F1}, {vr(D1,4)}
    """)
    for r in range(4):
        e(f"v_cvt_pk_bf16_f32 v{PB+2*r}, v{D0+r}, v{D0+r}")
    for r in range(4):
        e(f"v_cvt_pk_bf16_f32 v{PB+2*r+1}, v{D1+r}, v{D1+r}")
    diag_mfma(E, [PB + r for r in range(8)], [RING + 16 * wo_slots[r >> 2] + 4 * (r & 3) for r in range(8)], True)
    e(f"""
    s_cbranch_execz L_t4b
    s_mov_b64 exec, {sp(sP0)}
    buffer_store_dwordx4 {vr(E,4)}, v{vPc}, {srd(WS_)}, s{sB} offen sc1
    """)
    if t4bar:
        e("s_barrier")
    stamp(11)
    e(FIN)
    if not asplit:
        e(f"""
        L_c3a:
        v_mov_b32 v{vPd}, 0
        s_waitcnt lgkmcnt(0)
        s_barrier
        """)
    padspot("c3")
    e("L_c3:")
    stamp(5)
    e(f"""
    v_lshrrev_b32 v{vT0}, 5, v{vL}
    v_lshlrev_b32 v{vPb}, 6, v{vT0}
    """)
    if xl:
        e(f"""
        s_mov_b64 exec, 0xff
        v_cmp_ne_u32 {sp(sP0)}, s{sXc}, v{vH+28}
        s_mov_b64 exec, -1
        """)

    def hstore(txt, k):
        if not xl:
            e(txt + " sc1")
            return
        e(f"""
        s_cmp_eq_u64 {sp(sP0)}, 0
        s_cbranch_scc1 L_hs{k}a
        {txt} sc1
        s_branch L_hs{k}b
        L_hs{k}a:
        {txt}
        L_hs{k}b:
        """)
    for i in range(4):
        e(f"ds_read_b128 {vr(Z+4*i,4)}, v{vPb} offset:{LDS_ML+16*i}")
    e(f"""
    v_bfe_u32 v{vT1}, v{vL}, 2, 2
    v_lshl_or_b32 v{vT1}, v{vT0}, 2, v{vT1}
    v_lshlrev_b32 v{vPc}, 11, v{vT1}
    v_and_b32 v{vT1}, 3, v{vL}
    v_lshl_or_b32 v{vPa}, v{vT1}, {4 if lay else 5}, v{vPc}
    {f"v_lshlrev_b32 v{vPc}, 4, v{vT1}" if lay else ""}
    {f"v_lshl_or_b32 v{vPc}, v{vT0}, 6, v{vPc}" if lay else ""}
    v_and_b32 v{vT1}, 16, v{vL}
    {f"v_lshl_or_b32 v{vPa}, v{vT1}, 2, v{vPa}" if lay else f"v_or_b32 v{vPa}, v{vPa}, v{vT1}"}
    {f"s_lshl_b32 s{sMl}, s{sLid}, 7" if lay else ""}
    {f"s_add_u32 s{sMl}, s{sMl}, {WS_ML}" if lay else ""}
    s_and_b32 s{sA}, s{sLid}, 0xf8
    s_lshl_b32 s{sA}, s{sA}, 11
    s_add_u32 s{sA}, s{sA}, {WS_H1}
    s_lshl_b32 s{sT0}, s{sS}, 3
    s_add_u32 s{sB}, s{sA}, s{sT0}
    s_lshl_b32 s{sT0}, s{sS}, 7
    s_add_u32 s{sA}, s{sA}, s{sT0}
    s_waitcnt lgkmcnt(0)
    v_min3_f32 v{vT2}, v{Z}, v{Z+2}, v{Z+4}
    v_min3_f32 v{vT0}, v{Z+6}, v{Z+8}, v{Z+10}
    v_min3_f32 v{vT2}, v{vT2}, v{Z+12}, v{Z+14}
    v_min_f32 v{vT2}, v{vT2}, v{vT0}
    """)
    for w in range(8):
        e(f"v_sub_f32 v{Z+2*w}, v{vT2}, v{Z+2*w}")
    for w in range(8):
        e(f"v_exp_f32 v{Z+2*w}, v{Z+2*w}")
    e(f"v_mul_f32 v{vT2+1}, v{Z}, v{Z+1}")
    for w in range(1, 8):
        e(f"v_fmac_f32 v{vT2+1}, v{Z+2*w}, v{Z+2*w+1}")
    if lay:
        e(f"""
        v_mov_b32 v{vS}, v{vT2}
        v_mov_b32 v{vS+1}, v{vT2+1}
        v_mov_b32 v{vS+2}, v{vT2}
        v_mov_b32 v{vS+3}, v{vT2+1}
        s_mov_b32 exec_lo, 15
        s_mov_b32 exec_hi, 15
        """)
        hstore(f"buffer_store_dwordx4 {vr(vS,4)}, v{vPc}, {srd(WS_)}, s{sMl} offen", 0)
        e("s_mov_b64 exec, -1")
    else:
        e(f"""
        s_mov_b32 exec_lo, 0x1111
        s_mov_b32 exec_hi, 0x1111
        buffer_store_dwordx2 {vr(vT2,2)}, v{vPc}, {srd(WS_)}, s{sB} offen offset:1024 sc1
        s_mov_b64 exec, -1
        """)
    if not asplit:
        finish(vm.copy())
    Y = [RING + 16 * fs[-1 - (w >> 2)] + 4 * (w & 3) for w in range(8)]
    e(f"""
    s_waitcnt lgkmcnt(0)
    s_barrier
    """)
    stamp(7)
    if wqnotail:
        e('s_cmp_eq_u32 s2, s2\ns_cbranch_scc1 L_fin')
    e("L_t2b:")
    for w in range(8):
        e(f"ds_read_b128 {vr(Y[w],4)}, v{vLin} offset:{LDS_RED+1024*w}")
    for w in range(8):
        if w in (0, 2, 4, 6):
            e(f"s_waitcnt lgkmcnt({6-w})")
        for h in (0, 2):
            if w == 0:
                e(f"v_pk_mul_f32 {vr(vD+h,2)}, {vr(Y[0]+h,2)}, {vr(Z,2)} op_sel_hi:[1,0]")
            else:
                e(f"v_pk_fma_f32 {vr(vD+h,2)}, {vr(Y[w]+h,2)}, {vr(Z+2*w,2)}, {vr(vD+h,2)} op_sel_hi:[1,0,1]")
    if not t3:
        e("s_cbranch_execz L_t3b")
    hstore(f"buffer_store_dwordx4 {vr(vD,4)}, v{vPa}, {srd(WS_)}, s{sA} offen", 1)
    if b2:
        e("s_barrier")
    stamp(11)
    e(FIN)
    R = RING + 16 * fs[-1]
    padspot("B67")
    e(f"""
    L_B67:
    s_waitcnt lgkmcnt(0)
    s_barrier
    """)
    stamp(5)
    e(f"""
    v_lshrrev_b32 v{vT0}, 4, v{vL}
    v_and_b32 v{vT1}, 1, v{vL}
    v_lshlrev_b32 v{vT0}, 1, v{vT0}
    v_lshl_or_b32 v{vPd}, v{vT1}, 3, v{vT0}
    s_lshl_b32 s{sP0+2}, s{sLid}, 12
    s_add_u32 s{sP0+2}, s{sP0+2}, {WS_I2}
    s_lshr_b32 s{sP0+3}, s{sLid}, 7
    s_mul_i32 s{sP0+3}, s{sP0+3}, 1152
    s_lshl_b32 s{sT0}, s{sIdx}, 4
    s_add_u32 s{sP0+3}, s{sP0+3}, s{sT0}
    v_add_u32 v{vPd}, s{sP0+3}, v{vPd}
    s_and_b32 s{sEp}, s{sLid}, 0x80
    s_add_u32 s{sEp}, s{sEp}, {WS_EP}
    s_load_dword s{sTag}, {sp(WS_)}, s{sEp}
    v_mov_b32 v{vPc}, s{sEp}
    """)
    if lay:
        e(f"""
        v_lshrrev_b32 v{vT0}, 1, v{vL}
        v_mul_u32_u24 v{vPa}, 2304, v{vT0}
        v_lshl_or_b32 v{vPa}, v{vT1}, 6, v{vPa}
        s_and_b32 s{sT0}, s{sLid}, 0x80
        s_mul_i32 s{sT0}, s{sT0}, 2304
        s_add_u32 s{sT0}, s{sT0}, {WS_I2}
        s_and_b32 s{sT1}, s{sIdx}, 3
        s_lshl_b32 s{sT1}, s{sT1}, 4
        s_add_u32 s{sT0}, s{sT0}, s{sT1}
        s_lshr_b32 s{sT1}, s{sIdx}, 2
        s_lshl_b32 s{sT1}, s{sT1}, 7
        s_add_u32 s{sP0+2}, s{sT0}, s{sT1}
        s_add_u32 s{sP0+3}, s{sP0+2}, {73728}
        s_add_u32 s{sP0+4}, s{sP0+2}, {2*73728}
        s_add_u32 s{sP0+5}, s{sP0+2}, {3*73728}
        """)
    if lay == 2:
        e(f"""
        v_mul_u32_u24 v{vPa}, 2304, v{vT0}
        v_lshl_or_b32 v{vPa}, v{vT1}, 4, v{vPa}
        s_and_b32 s{sT0}, s{sLid}, 0x80
        s_mul_i32 s{sT0}, s{sT0}, 2304
        s_add_u32 s{sT0}, s{sT0}, {WS_I2}
        s_lshl_b32 s{sT1}, s{sIdx}, 5
        s_add_u32 s{sP0+2}, s{sT0}, s{sT1}
        s_add_u32 s{sP0+3}, s{sP0+2}, {73728}
        s_add_u32 s{sP0+4}, s{sP0+2}, {2*73728}
        s_add_u32 s{sP0+5}, s{sP0+2}, {3*73728}
        v_lshrrev_b32 v{vT0}, 4, v{vL}
        v_lshlrev_b32 v{vT0}, 1, v{vT0}
        v_lshl_or_b32 v{vPd}, v{vT1}, 4, v{vT0}
        s_lshr_b32 s{sT0}, s{sLid}, 7
        s_mul_i32 s{sT0}, s{sT0}, 1152
        s_and_b32 s{sT1}, s{sIdx}, 0x78
        s_lshl_b32 s{sT1}, s{sT1}, 4
        s_add_u32 s{sT0}, s{sT0}, s{sT1}
        s_and_b32 s{sT1}, s{sIdx}, 3
        s_lshl_b32 s{sT1}, s{sT1}, 5
        s_add_u32 s{sT0}, s{sT0}, s{sT1}
        s_and_b32 s{sT1}, s{sIdx}, 4
        s_lshl_b32 s{sT1}, s{sT1}, 1
        s_add_u32 s{sT0}, s{sT0}, s{sT1}
        v_add_u32 v{vPd}, s{sT0}, v{vPd}
        """)

    def t4_load(i):
        if lay:
            return f"buffer_load_dwordx4 {vr(R+4*i,4)}, v{vPa}, {srd(WS_)}, s{sP0+2+i} offen sc1"
        return f"buffer_load_dwordx4 {vr(R+4*i,4)}, v{vLin}, {srd(WS_)}, s{sP0+2} offen offset:{1024*i} sc1"
    finish(vm.copy())
    e(f"""
    s_waitcnt lgkmcnt(0)
    s_barrier
    """)
    stamp(7)
    if wqnotail:
        e('s_cmp_eq_u32 s2, s2\ns_cbranch_scc1 L_fin')
    e(f"""
    s_cmp_lg_u32 s{sW}, 6
    s_cbranch_scc1 L_fin
    s_cmp_ge_u32 s{sIdx}, 72
    s_cbranch_scc1 L_fin
    {"s_barrier" if b2 else ""}
    {"s_barrier" if t4bar else ""}
    L_t4b:
    s_cbranch_execz L_t4c
    {"" if sel else "L_h2:"}
    """)
    for i in range(4):
        e(t4_load(i))
    if sel:
        MM = [sF + 2 * i for i in range(4)]
        if p4:
            e("s_waitcnt vmcnt(0)")
        e("L_h2:")
        if not p4:
            e("s_waitcnt vmcnt(0)")
        for i in range(4):
            e(f"v_max3_u32 v{vA+i}, v{R+4*i}, v{R+4*i+1}, v{R+4*i+2}")
        for i in range(4):
            e(f"v_max_u32 v{vA+i}, v{vA+i}, v{R+4*i+3}")
        for i in range(4):
            e(f"v_cmp_eq_u32 {sp(MM[i])}, -1, v{vA+i}")
        e(f"""
        s_or_b64 vcc, {sp(MM[0])}, {sp(MM[1])}
        s_or_b64 exec, {sp(MM[2])}, {sp(MM[3])}
        s_or_b64 exec, exec, vcc
        s_cbranch_scc0 L_h2_got
        """)
        for i in range(4):
            e(f"""
            s_mov_b64 exec, {sp(MM[i])}
            s_cbranch_execz L_h2_{i}
            {t4_load(i)}
            L_h2_{i}:
            """)
        e(f"""
        s_mov_b64 exec, -1
        {f"s_waitcnt vmcnt({p4})" if p4 else ""}
        {SPIN("L_h2")}
        s_waitcnt vmcnt(0)
        L_h2_got:
        s_mov_b64 exec, -1
        """)
    else:
        e("s_waitcnt vmcnt(0)")
    e("L_t4c:")
    if p4:
        R0, R = R, vS
        for h in (0, 2):
            e(f"v_pk_add_f32 {vr(R+h,2)}, {vr(R0+h,2)}, {vr(R0+4+h,2)}")
        for h in (0, 2):
            e(f"v_pk_add_f32 {vr(R+4+h,2)}, {vr(R0+8+h,2)}, {vr(R0+12+h,2)}")
        for h in (0, 2):
            e(f"v_pk_add_f32 {vr(R+h,2)}, {vr(R+h,2)}, {vr(R+4+h,2)}")
    else:
        pk_sum(R, 4)
    e(f"""
    v_permlane32_swap_b32 v{R}, v{R+2}
    v_permlane32_swap_b32 v{R+1}, v{R+3}
    v_add_f32 v{R}, v{R}, v{R+2}
    v_add_f32 v{R+1}, v{R+1}, v{R+3}
    v_permlane16_swap_b32 v{R}, v{R+1}
    v_add_f32 v{R}, v{R}, v{R+1}
    v_add_f32_dpp v{R}, v{R}, v{R} row_ror:2 row_mask:0xf bank_mask:0xf
    v_add_f32_dpp v{R}, v{R}, v{R} row_ror:4 row_mask:0xf bank_mask:0xf
    v_add_f32_dpp v{R}, v{R}, v{R} row_ror:8 row_mask:0xf bank_mask:0xf
    """)
    if not sel:
        e(f"""
        v_cmp_u_f32 vcc, v{R}, v{R}
        s_cbranch_vccz L_h2_ok
        {SPIN("L_h2")}
        L_h2_ok:
        """)
    e(f"""
    v_cvt_pk_bf16_f32 v{R}, v{R}, v{R}
    """)
    stamp(9)
    if dry:
        e("s_cbranch_execz L_dry_ret")
    e(f"""
    s_mov_b32 exec_lo, 0x30003
    s_mov_b32 exec_hi, 0x30003
    global_store_short v{vPd}, v{R}, {sp(OUT_)}{" " + osc.replace("_", " ") if osc else ""}
    {"s_waitcnt vmcnt(1)" if p4 else ""}
    s_cmp_lg_u32 s{sIdx}, 0
    s_cbranch_scc1 L_fin
    s_add_u32 s{sTag}, s{sTag}, {EPC}
    v_mov_b32 v{R+1}, s{sTag}
    s_mov_b64 exec, 1
    global_store_dword v{vPc}, v{R+1}, {sp(WS_)}{" " + osc.replace("_", " ") if osc else ""}
    L_fin:
    """)
    if prof:
        e("s_waitcnt vmcnt(0)")
        stamp(10)
        e(f"""
        s_waitcnt lgkmcnt(0)
        s_mov_b64 exec, 1
        s_lshl_b32 s{sT0}, s{sLid}, 3
        s_add_u32 s{sT0}, s{sT0}, s{sW}
        s_lshl_b32 s{sT0}, s{sT0}, 6
        s_add_u32 s{sT0}, s{sT0}, {WS_PROF}
        v_mov_b32 v0, 0
        """)
        if pmode == 5:
            stamp(16, 5)
            e(f"s_lshl_b32 s{sT0}, s{sLid}, 3")
            e(f"s_add_u32 s{sT0}, s{sT0}, s{sW}")
            e(f"s_lshl_b32 s{sT0}, s{sT0}, 7")
            e(f"s_add_u32 s{sT0}, s{sT0}, {WS_PROF}")
            for k in range(16):
                e(f"v_mov_b32 v{8+k}, s{sProf+k}")
            for k in range(6):
                e(f"v_mov_b32 v{24+k}, s{sProf+16+2*k}")
            e(f"s_getreg_b32 s{sT1}, hwreg(HW_REG_XCC_ID)")
            e(f"v_mov_b32 v30, s{sT1}")
            e(f"s_getreg_b32 s{sT1}, hwreg(HW_REG_HW_ID)")
            e(f"v_mov_b32 v31, s{sT1}")
            for k in range(6):
                e(f"buffer_store_dwordx4 v[{8+4*k}:{11+4*k}], v0, {srd(WS_)}, s{sT0} offen offset:{16*k}")
        else:
          for k in range(14):
            e(f"v_mov_b32 v{8+k}, s{sProf+2*k}")
          e(f"s_getreg_b32 s{sT1}, hwreg(HW_REG_XCC_ID)")
          e(f"v_mov_b32 v22, s{sT1}")
          e(f"v_mov_b32 v23, s{sSpin}")
          for k in range(4):
            e(f"buffer_store_dwordx4 v[{8+4*k}:{11+4*k}], v0, {srd(WS_)}, s{sT0} offen offset:{16*k}")
    if pad:
        e(f"""
        s_waitcnt vmcnt(0) lgkmcnt(0)
        L_pad:
        s_memrealtime {sp(sProf+2)}
        s_waitcnt lgkmcnt(0)
        s_sub_u32 s{sT0}, s{sProf+2}, s{sProf}
        s_cmp_lt_u32 s{sT0}, {pad}
        s_cbranch_scc1 L_pad
        """)
    e("L_end:")
    e("s_endpgm")
    nsg = (sProf + 32 if pmode == 5 else sProf + 28) if (prof or pad) else sProf
    e.raw(f""".section .rodata,"a"
.p2align 6
.amdhsa_kernel {KNAME}
  .amdhsa_next_free_vgpr 256
  .amdhsa_next_free_sgpr {nsg}
  .amdhsa_accum_offset 256
  .amdhsa_group_segment_fixed_size 0
  .amdhsa_kernarg_size 104
  .amdhsa_user_sgpr_count 2
  .amdhsa_user_sgpr_kernarg_segment_ptr 1
  .amdhsa_system_sgpr_workgroup_id_x 1
.end_amdhsa_kernel""")
    return e.text()


if __name__ == "__main__":
    kw = {}
    for a in sys.argv[2:]:
        k, v = a.split("=")
        try:
            v = int(v, 0)
        except ValueError:
            pass
        kw[k] = v
    open(sys.argv[1], "w").write(gen(**kw))
```

```python
import sys
from emit import Emitter

KNAME = "concat_heads__gqa_block_cached__gqa_block_cached__decode_kernel"
HEADER = open("header.txt").read()

WS_QP, WS_EP, WS_FL, WS_H1, WS_I2, WS_PROF = 0x0, 0x10000, 0x20000, 0x40000, 0x100000, 0x200000
WS_ML = 0x30000
WS_QP2 = 0x1A0000
EPC = 0x9e3779b9
LDS_Q, LDS_PART, LDS_ML, LDS_CNT, LDS_RED, LDS_SIZE = 0, 512, 1280, 1408, 2048, 10240
LDS_F, LDS_OML, LDS_O = 1472, 1536, 10240

vL, vLin, vK, vX = 0, 1, 2, 3
vZ = 54
vM = 4
vQ = 8
vS = 24
vA = 40
vD = 48
vMx, vAl, vAD, vT0 = 52, 53, 54, 55
vLs = 56
vN0, vT1 = 58, 59
vN1, vLt = 60, 61
vT2 = 62
RING = 64
NSLOT = 10
vH = 224
sKa, sKvh, sS, sIdx, sLid, sW, sT0, sT1 = 3, 5, 6, 7, 8, 9, 10, 11
K_, V_, WQ_, WO_, WS_ = 12, 16, 20, 24, 28
OUT_, DBG_, sX = 32, 34, 36
sF = 60
sTag, sEp, sFo = 38, 58, 59
sC, sStep, sK, sV, sWq, sWo, sWo2, sSpin = 40, 41, 42, 43, 44, 45, 46, 47
sA, sB, sWm = 48, 4, 49
sP0 = 50
sMl = 69
sXc = 62
sProf = 70


def srd(b):
    return f"s[{b}:{b+3}]"


def sp(b):
    return f"s[{b}:{b+1}]"


def vr(b, n):
    return f"v[{b}:{b+n-1}]"


class VM:
    def __init__(self, e):
        self.e = e
        self.ops = []
        self.done = 0

    def add(self, tag):
        self.ops.append(tag)

    def wait_n(self, n):
        n = max(n, 0)
        if len(self.ops) - self.done > n:
            assert n <= 63
            self.e(f"s_waitcnt vmcnt({n})")
            self.done = len(self.ops) - n

    def wait_tag(self, tag):
        last = max(i for i, t in enumerate(self.ops) if t == tag)
        self.wait_n(len(self.ops) - 1 - last)

    def copy(self):
        v = VM(self.e)
        v.ops = list(self.ops)
        v.done = self.done
        return v


def gen(npre=6, upre=12, umain=12, uctl=8, la=4, ratio=2, jctl=1, jpoll=6, pr="10,14,16", woat=16, wosplit=0, wqnoqw=0, wqnocomp=0, wqnotail=0, wqnoclr=0, wqcol=0, ntw="nt", wp=2, xq=1, qf="nt", wqg=8, wqs=0, uwo=0, wopos=0, prend=3, pre7=0, kq=0, cup=0, wqk=0, fp=1, b2=0, hop="c3,B67", hopat=0, early_s="WS", qs="", clr=1, t4bar=1, lay=1, xl=1, idmap=0, t3=1, early=1, p4=0, p3=0, t4x=0, t4d=0, t4m=0, vc3=0, pw=0, pwe=0, pwo=0, pfo=0, pfq=0, pfk=0, pfc="sc1", pfw=7, pfm=0, osc="", t3c=0, uq=0, pf1=9, pf2=11, nt="nt", ntq="nt", lead=1, prof=False,
        spin=1 << 16, prio=True, pad=0, dry=False, pmode=1, asplit=True, qprio=0, cprio2=-1, rot=0, noflag=0, sx=0, wqp=-1, sel=1, cx=0, wqoff=0, wqsrc=24, wqstr=13, seg=64):
    e = Emitter()
    NT = (" " + nt) if nt else ""
    NTQ = (" " + ntq) if ntq else ""
    NTW = (" " + ntw) if ntw else ""
    if lead == 1:
        seq = ["K0", "K1"] + [x for n in range(6) for x in (f"V{n}", f"K{n+2}")] + ["V6", "V7"]
    elif lead == 2:
        seq = ["K0", "K1", "K2"] + [x for n in range(5) for x in (f"V{n}", f"K{n+3}")] + ["V5", "V6", "V7"]
    assert len(seq) == 16 and len(set(seq)) == 16
    free = list(range(NSLOT - 2 if woat >= 0 else NSLOT))
    slot = {}
    steps = [int(x) for x in str(pr).split(",") if x != ""]
    p0 = len(steps)
    assert p0 <= 3

    P5 = {0: 0, 1: 1, 3: 2, 5: 3, 7: 4, 10: 5}

    def stamp(k, kind=1):
        if prof and pmode == 5:
            if kind == 1 and k in P5:
                e(f"s_memrealtime {sp(sProf+16+2*P5[k])}")
            if kind == 5:
                if k > 0:
                    e("s_waitcnt lgkmcnt(0)")
                    e(f"s_mov_b32 s{sProf+k-1}, s{sProf+28+2*((k-1)&1)}")
                if k < 16:
                    e(f"s_memrealtime {sp(sProf+28+2*(k&1))}")
        elif prof and ((k == 0 and kind == 1) or (kind == pmode and kind != 5)):
            e(f"s_memrealtime {sp(sProf+2*k)}")

    FIN = "s_branch L_fin" if (prof or pad) else "s_endpgm"

    def issue_load(t, i):
        r = RING + 16 * slot[t] + 4 * i
        if t[0] == "K":
            e(f"buffer_load_dwordx4 {vr(r,4)}, v{vK}, {srd(K_)}, s{sK} offen offset:{64*i}{NT}")
        else:
            e(f"buffer_load_dwordx4 {vr(r,4)}, v{vLin}, {srd(V_)}, s{sV} offen offset:{1024*i}{NT}")

    def issue_end(t):
        if t[1] != "7":
            s = sK if t[0] == "K" else sV
            e(f"s_add_u32 s{s}, s{s}, s{sStep}")
        if seq.index(t) >= 3:
            stamp(seq.index(t) - 2, 2)
        if seq.index(t) <= 12:
            stamp(seq.index(t) + 1, 3)
        stamp(seq.index(t), 5)

    def issue(vm, t, u=None, ctl=False):
        if t not in slot:
            slot[t] = free.pop(0)
        if seq.index(t) in steps and not ctl:
            e(f"s_setprio {p0 - 1 - steps.index(seq.index(t))}")
        for i in range(4):
            if u is not None:
                vm.wait_n(u - 1)
            issue_load(t, i)
            vm.add(t)
        issue_end(t)

    def SPIN(lbl):
        return f"s_addk_i32 s{sSpin}, -1\ns_cmpk_gt_i32 s{sSpin}, 0\ns_cbranch_scc1 {lbl}"

    def pk_sum(base, n):
        step = 1
        while step < n:
            for i in range(0, n - step, 2 * step):
                for h in (0, 2):
                    a, b = base + 4 * i + h, base + 4 * (i + step) + h
                    e(f"v_pk_add_f32 {vr(a,2)}, {vr(a,2)}, {vr(b,2)}")
            step *= 2

    def allreduce(v, tmp, op):
        e(f"v_mov_b32 v{tmp}, v{v}")
        e(f"v_permlane16_swap_b32 v{v}, v{tmp}")
        e(f"{op} v{v}, v{v}, v{tmp}")
        e(f"v_mov_b32 v{tmp}, v{v}")
        e(f"v_permlane32_swap_b32 v{v}, v{tmp}")
        e(f"{op} v{v}, v{v}, v{tmp}")

    vRed, vMLw, vWo, vPa, vPb, vPc, vPd = vH, vH + 1, vH + 2, vH + 3, vH + 4, vH + 5, vH + 6
    vXr = vH + 24
    vPoll = vH + 24
    vXs = vS
    vAcc = vA

    wo_addr = f"""
    s_movk_i32 s{sT1}, 0x2400
    v_lshrrev_b32 v{vT1}, 4, v{vL}
    v_and_b32 v{vWo}, 0xff, v{vLin}
    v_mad_u32_u24 v{vWo}, v{vT1}, s{sT1}, v{vWo}
    s_lshl_b32 s{sT0}, s{sWm}, 4
    v_and_b32 v{vT1}, 15, v{vL}
    v_add_u32 v{vT1}, s{sT0}, v{vT1}
    v_cmp_gt_u32 vcc, 72, v{vT1}
    v_mov_b32 v{vT1}, 0x40000000
    s_mul_i32 s{sWo}, s{sIdx}, 0x9000
    s_lshl_b32 s{sT0}, s{sWm}, 8
    s_add_u32 s{sWo}, s{sWo}, s{sT0}
    v_cndmask_b32 v{vWo}, v{vT1}, v{vWo}, vcc
    s_add_u32 s{sWo2}, s{sWo}, 4608
    """
    if wqcol:
        wo_addr = f"""
        s_movk_i32 s{sT1}, 0x2400
        v_lshrrev_b32 v{vT1}, 4, v{vL}
        v_and_b32 v{vWo}, 0xff, v{vLin}
        v_mad_u32_u24 v{vWo}, v{vT1}, s{sT1}, v{vWo}
        v_and_b32 v{vT1}, 15, v{vL}
        v_cmp_gt_u32 vcc, 9, v{vT1}
        v_mov_b32 v{vT1}, 0x40000000
        s_mul_i32 s{sWo}, s{sKvh}, 0x48000
        s_mul_i32 s{sT0}, s{sW}, 0x9000
        s_add_u32 s{sWo}, s{sWo}, s{sT0}
        s_mul_i32 s{sT0}, s{sS}, 144
        s_add_u32 s{sWo}, s{sWo}, s{sT0}
        v_cndmask_b32 v{vWo}, v{vT1}, v{vWo}, vcc
        s_add_u32 s{sWo2}, s{sWo}, 4608
        """
    t3_addr1 = f"""
    v_lshrrev_b32 v{vT0}, 4, v{vL}
    v_lshlrev_b32 v{vPb}, 7, v{vT0}
    v_bfe_u32 v{vT1}, v{vL}, 2, 2
    v_lshlrev_b32 v{vPc}, 7, v{vT1}
    v_lshl_or_b32 v{vPc}, v{vT0}, 6, v{vPc}
    v_lshl_or_b32 v{vPa}, v{vT1}, 4, v{vPb}
    v_and_b32 v{vT1}, 3, v{vL}
    v_lshl_or_b32 v{vPc}, v{vT1}, 4, v{vPc}
    v_and_b32 v{vT1}, 1, v{vL}
    v_lshl_or_b32 v{vPa}, v{vT1}, 3, v{vPa}
    v_and_b32 v{vT1}, 2, v{vL}
    v_lshl_or_b32 v{vPa}, v{vT1}, 5, v{vPa}
    v_mov_b32 v{vPd}, 0
    s_lshl_b32 s{sA}, s{sLid}, 11
    s_add_u32 s{sA}, s{sA}, {WS_H1}
    s_mul_i32 s{sB}, s{sLid}, 2304
    s_lshl_b32 s{sT0}, s{sWm}, 9
    s_add_u32 s{sB}, s{sB}, s{sT0}
    s_add_u32 s{sB}, s{sB}, {WS_I2}
    s_and_b32 s{sMl}, s{sLid}, 0xf8
    s_lshl_b32 s{sMl}, s{sMl}, 7
    s_and_b32 s{sT0}, s{sLid}, 4
    s_lshl_b32 s{sT0}, s{sT0}, 4
    s_add_u32 s{sMl}, s{sMl}, s{sT0}
    s_add_u32 s{sMl}, s{sMl}, {WS_ML}
    s_cmp_eq_u32 s{sWm}, 4
    s_cselect_b32 s{sP0}, 0x00ff00ff, -1
    s_mov_b32 s{sP0+1}, 0
    """
    t3_addr = f"""
    v_and_b32 v{vPa}, 15, v{vL}
    v_lshrrev_b32 v{vT0}, 4, v{vL}
    v_lshlrev_b32 v{vPb}, 3, v{vT0}
    v_lshlrev_b32 v{vPc}, 12, v{vPa}
    v_lshl_or_b32 v{vPc}, v{vT0}, 4, v{vPc}
    v_lshlrev_b32 v{vPa}, 3, v{vPa}
    v_lshl_or_b32 v{vPa}, v{vT0}, 7, v{vPa}
    v_mov_b32 v{vPd}, 0
    s_lshl_b32 s{sA}, s{sLid}, 11
    s_add_u32 s{sA}, s{sA}, {WS_H1}
    s_and_b32 s{sB}, s{sLid}, 0x80
    s_lshl_b32 s{sB}, s{sB}, 12
    s_lshl_b32 s{sT0}, s{sWm}, 16
    s_add_u32 s{sB}, s{sB}, s{sT0}
    s_lshl_b32 s{sT0}, s{sIdx}, 5
    s_add_u32 s{sB}, s{sB}, s{sT0}
    s_add_u32 s{sB}, s{sB}, {WS_I2}
    s_cmp_eq_u32 s{sWm}, 4
    s_cselect_b32 s{sP0}, 0x00ff00ff, -1
    s_mov_b32 s{sP0+1}, 0
    """

    if lay:
        t3_addr = t3_addr1
    if lay == 2:
        t3_addr += f"""
        v_lshrrev_b32 v{vT0}, 4, v{vL}
        v_and_b32 v{vT1}, 7, v{vL}
        v_lshlrev_b32 v{vPc}, 4, v{vT1}
        v_lshl_or_b32 v{vPc}, v{vT0}, 7, v{vPc}
        v_and_b32 v{vT1}, 8, v{vL}
        v_lshl_or_b32 v{vPc}, v{vT1}, 5, v{vPc}
        """

    def issue_wo(vm, u=None, r0=0, r1=8):
        if 16 in steps and r0 == 0:
            assert woat == 16 and not wosplit
            e(f"s_setprio {p0 - 1 - steps.index(16)}")
        for r in range(r0, r1):
            reg = RING + 16 * wo_slots[r >> 2] + 4 * (r & 3)
            if u is not None:
                vm.wait_n(u - 1)
            e(f"buffer_load_dwordx4 {vr(reg,4)}, v{vWo}, {srd(WO_)}, s{sWo if r < 4 else sWo2} offen offset:{1152*(r&3)}{NTW}")
            vm.add("wo")
        if r1 == 8 and prend >= 0:
            e(f"s_setprio {prend}")
    wo_slots = [NSLOT - 2, NSLOT - 1]

    def consts():
        e(f"""
        s_and_b32 s{sS}, s{sLid}, 7
        s_lshr_b32 s{sKvh}, s{sIdx}, 3
        s_mov_b32 s{K_+2}, 0x2000000
        s_mov_b32 s{K_+3}, 0x20000
        s_mov_b32 s{V_+2}, 0x2000000
        s_mov_b32 s{V_+3}, 0x20000
        s_mov_b32 s{sStep}, 0x8000
        v_and_b32 v{vT1}, 3, v{vT1}
        v_and_b32 v{vK}, 48, v{vL}
        v_lshl_or_b32 v{vK}, v{vT0}, 10, v{vK}
        v_lshl_or_b32 v{vK}, v{vT1}, 8, v{vK}
        """)
        if rot == 0:
            e(f"s_mov_b32 s{sT0}, s{sW}")
        elif rot == 1:
            e(f"s_add_u32 s{sT0}, s{sW}, s{sIdx}")
            e(f"s_and_b32 s{sT0}, s{sT0}, 7")
        elif rot == 2:
            e(f"s_lshr_b32 s{sT0}, s{sIdx}, 3")
            e(f"s_add_u32 s{sT0}, s{sT0}, s{sW}")
            e(f"s_and_b32 s{sT0}, s{sT0}, 7")
        elif rot == 3:
            e(f"s_lshl_b32 s{sT0}, s{sIdx}, 2")
            e(f"s_xor_b32 s{sT0}, s{sT0}, s{sW}")
            e(f"s_and_b32 s{sT0}, s{sT0}, 7")
        e(f"""
        s_lshl_b32 s{sK}, s{sIdx}, 6
        s_add_u32 s{sK}, s{sK}, s{sT0}
        s_lshl_b32 s{sK}, s{sK}, 12
        s_mov_b32 s{sV}, s{sK}
        v_and_b32 v{vT0}, 1, v{vL}
        v_lshlrev_b32 v{vT0}, 4, v{vT0}
        v_mov_b32 v{vT1}, 0xffff
        v_lshlrev_b32 v{vT0}, v{vT0}, v{vT1}
        v_bfe_u32 v{vT1}, v{vL}, 1, 2
        v_lshlrev_b32_e64 v{vT1}, v{vT1}, 1
        """)
        for d in range(4):
            e(f"v_bfe_i32 v{vM+d}, v{vT1}, {d}, 1")
        for d in range(4):
            e(f"v_and_b32 v{vM+d}, v{vM+d}, v{vT0}")
        e(f"""
        s_mov_b32 s{sC}, 0x3e0293ee
        s_mov_b32 s{sSpin}, {spin}
        s_mov_b32 s{WO_+2}, 0x480000
        s_mov_b32 s{WO_+3}, 0x20000
        v_mov_b32 v{vZ}, 0
        """)
    e.raw(HEADER.rstrip())
    e.raw(f"; @launch grid=(256,1,1) block=(512,1,1) lds={LDS_SIZE + (1024 if pw else 0)}")
    e.raw('.amdgcn_target "amdgcn-amd-amdhsa--gfx950"')
    e.raw(".text")
    e.raw(f".globl {KNAME}")
    e.raw(".p2align 8")
    e.raw(f".type {KNAME},@function")
    e.raw(f"{KNAME}:")
    hops = [x for x in str(hop).split(",") if x]

    def padspot(name, live=False):
        if name not in hops:
            return
        if live:
            e(f"s_branch P_{name}_skip")
        e(f"P_{name}:\ns_branch L_hopret")
        if live:
            e(f"P_{name}_skip:")

    if fp:
        assert wp == 2 and not (pre7 or kq or cup or pad or sx or wqp >= 0) and clr == 1
        stamp(0)
        late = {"WS": f"s_load_dwordx2 {sp(WS_)}, s[0:1], 96",
                "K": f"s_load_dwordx2 {sp(K_)}, s[0:1], s{sKa} offset:8",
                "V": f"s_load_dwordx2 {sp(V_)}, s[0:1], s{sKa} offset:16",
                "WO": f"s_load_dwordx2 {sp(WO_)}, s[0:1], s{sKa} offset:32",
                "OUT": f"s_load_dwordx2 {sp(OUT_)}, s[0:1], 80"}
        e(f"""
        s_lshr_b32 s{sT0}, s2, 8
        s_cbranch_scc1 L_end
        s_bitcmp1_b32 s2, {7 if idmap else 2}
        s_cselect_b32 s{sKa}, 40, 0
        s_load_dwordx2 {sp(WQ_)}, s[0:1], s{sKa} offset:24
        s_load_dwordx2 {sp(sX)}, s[0:1], s{sKa} offset:0
        """)
        for k in [x for x in str(early_s).split(",") if x]:
            e(late.pop(k))
        e(f"""
        v_lshrrev_b32 v{vLin}, 6, v0
        v_and_b32 v{vL}, 63, v0
        v_readfirstlane_b32 s{sW}, v{vLin}
        s_lshr_b32 s{sLid}, s2, {0 if idmap else 3}
        v_lshrrev_b32 v{vA}, 4, v{vL}
        s_sub_u32 s{sWm}, s{sW}, 1
        s_cmp_ge_u32 s{sWm}, 6
        s_cbranch_scc1 L_rest
        s_and_b32 s{sT0}, s{sLid}, 3
        s_mul_i32 s{sT0}, s{sT0}, 6
        s_add_u32 s{sT0}, s{sT0}, s{sWm}
        s_mul_i32 s{sT0}, s{sT0}, 48
        """)
        if idmap:
            e(f"s_bfe_u32 s{sT1}, s2, 0x50002")
        else:
            e(f"""
            s_and_b32 s{sT1}, s2, 3
            s_lshr_b32 s{sWq}, s2, 5
            s_lshl3_add_u32 s{sT1}, s{sT1}, s{sWq}
            """)
        e(f"""
        s_lshl_b32 s{sT1}, s{sT1}, 8
        s_lshl_b32 s{sWq}, s{sT0}, 12
        s_add_u32 s{sWq}, s{sWq}, s{sT1}
        v_and_b32 v{vX}, 15, v{vL}
        v_mul_u32_u24 v{vA}, 3, v{vA}
        v_lshlrev_b32 v{vX}, 4, v{vX}
        v_lshl_add_u32 v{vT2}, v{vA}, 2, s{sT0}
        v_lshl_or_b32 v{vX}, v{vA}, 14, v{vX}
        s_mov_b32 s{WQ_+2}, 0x480000
        s_mov_b32 s{WQ_+3}, 0x20000
        s_setprio {max(qprio, p0)}
        s_waitcnt lgkmcnt(0)
        """)
        stamp(2, 4)
        e(f"global_load_dwordx3 {vr(vXr,3)}, v{vT2}, {sp(sX)}")
        for i in range(6):
            e(f"buffer_load_dwordx4 {vr(vH+4*i,4)}, v{vX}, {srd(WQ_)}, s{sWq} offen{NTQ}")
            if i < 5:
                e(f"s_addk_i32 s{sWq}, 0x2000")
        vq = VM(e)
        vq.add("x")
        for i in range(6):
            vq.add(f"w{i}")
        slot["K0"] = free.pop(0)
        e("L_rest:")
        for k in late:
            e(late[k])
        stamp(3, 4)
        if prof and pmode not in (4, 5, 6):
            for k in range(1, 14):
                e(f"s_mov_b32 s{sProf+2*k}, 0")
        if not idmap:
            e(f"""
            s_and_b32 s{sT0}, s2, 7
            s_lshl_b32 s{sT0}, s{sT0}, 5
            s_or_b32 s{sLid}, s{sLid}, s{sT0}
            """)
        e(f"""
        s_and_b32 s{sIdx}, s{sLid}, 0x7f
        s_mov_b32 s{WS_+2}, 0x400000
        s_mov_b32 s{WS_+3}, 0x20000
        v_lshlrev_b32 v{vLin}, 4, v{vL}
        v_and_b32 v{vT0}, 3, v{vL}
        v_lshrrev_b32 v{vT1}, 2, v{vL}
        s_cmp_lg_u32 s{sW}, 0
        s_cbranch_scc1 L_t0
        """)
    else:
        stamp(0)
        if prof and pmode not in (5, 6):
            for k in range(1, 14):
                e(f"s_mov_b32 s{sProf+2*k}, 0")
        if pad:
            e(f"s_memrealtime {sp(sProf)}")
        e(f"""
        s_lshr_b32 s{sT0}, s2, 8
        s_cbranch_scc1 L_end
        s_bitcmp1_b32 s2, {7 if idmap else 2}
        s_cselect_b32 s{sKa}, 40, 0
        """)
        stamp(1, 6)
        if wqk:
            e(f"s_load_dwordx2 {sp(WQ_)}, s[0:1], s{sKa} offset:{wqsrc}")
            e("s_waitcnt lgkmcnt(0)")
            stamp(7, 6)
        e(f"""
        s_load_dwordx2 {sp(WQ_)}, s[0:1], s{sKa} offset:{wqsrc}
        s_load_dwordx2 {sp(sX)}, s[0:1], s{sKa} offset:0
        s_load_dwordx2 {sp(WS_)}, s[0:1], 96
        s_load_dwordx2 {sp(K_)}, s[0:1], s{sKa} offset:8
        s_load_dwordx2 {sp(V_)}, s[0:1], s{sKa} offset:16
        s_load_dwordx2 {sp(WO_)}, s[0:1], s{sKa} offset:32
        s_load_dwordx2 {sp(OUT_)}, s[0:1], 80
        """)
        stamp(2, 6)
        e(f"""
        v_lshrrev_b32 v{vLin}, 6, v0
        v_and_b32 v{vL}, 63, v0
        v_readfirstlane_b32 s{sW}, v{vLin}
        s_and_b32 s{sT0}, s2, 7
        s_lshl_b32 s{sT0}, s{sT0}, 5
        s_lshr_b32 s{sLid}, s2, 3
        s_or_b32 s{sLid}, s{sLid}, s{sT0}
        {f"s_mov_b32 s{sLid}, s2" if idmap else (f"s_xor_b32 s{sLid}, s{sLid}, {sx}" if sx else "")}
        s_and_b32 s{sIdx}, s{sLid}, 0x7f
        """)
        stamp(3, 6)
        e(f"""
        s_mov_b32 s{WQ_+2}, 0x480000
        s_mov_b32 s{WQ_+3}, 0x20000
        s_mov_b32 s{WS_+2}, 0x400000
        s_mov_b32 s{WS_+3}, 0x20000
        v_lshlrev_b32 v{vLin}, 4, v{vL}
        v_and_b32 v{vT0}, 3, v{vL}
        v_lshrrev_b32 v{vT1}, 2, v{vL}
        v_mov_b32 v{vX}, 0
        """)
        if pre7 or kq or cup:
            assert wp
            consts()
        e(f"""
        s_sub_u32 s{sWm}, s{sW}, 1
        s_cbranch_scc1 L_clear
        s_cmp_eq_u32 s{sW}, 7
        s_cbranch_scc1 L_wait0
        """)
        stamp(4, 6)
        if wp:
            assert cx == 0 and seg == 64
            e(f"""
            s_and_b32 s{sT1}, s{sIdx}, 3
            s_mul_i32 s{sT0}, s{sWm}, 48
            s_mul_i32 s{sT1}, s{sT1}, 288
            v_lshrrev_b32 v{vA}, 4, v{vL}
            v_and_b32 v{vX}, 0xf0, v{vLin}
            s_add_u32 s{sT0}, s{sT0}, s{sT1}
            v_mul_u32_u24 v{vT2}, 0xc000, v{vA}
            v_mad_u32_u24 v{vA}, v{vA}, 12, s{sT0}
            s_lshl_b32 s{sWq}, s{sT0}, 12
            s_lshr_b32 s{sT1}, s{sIdx}, 2
            s_lshl_b32 s{sT1}, s{sT1}, 8
            v_add_u32 v{vX}, v{vX}, v{vT2}
            v_mov_b32 v{vT2}, v{vA}
            s_add_u32 s{sWq}, s{sWq}, s{sT1}
            """)
        else:
            e(f"""
            s_mul_i32 s{sT0}, s{sWm}, 0xc0
            v_mul_u32_u24 v{vX}, 0xc000, v{vT1}
            v_mul_u32_u24 v{vT2}, 12, v{vT1}
            v_lshl_or_b32 v{vX}, v{vT0}, 4, v{vX}
            v_add_u32 v{vT2}, s{sT0}, v{vT2}
            s_lshl_b32 s{sWq}, s{sT0}, 12
            s_xor_b32 s{sT1}, s{sIdx}, {cx}
            s_lshl_b32 s{sT1}, s{sT1}, 6
            s_add_u32 s{sWq}, s{sWq}, s{sT1}
            """)
        e(f"s_setprio {max(qprio, p0)}")
        wstep = 0x2000
        if seg == 32:
            e(f"""
            v_mul_u32_u24 v{vX}, 0xc000, v{vT1}
            v_and_b32 v{vA}, 1, v{vL}
            v_lshl_or_b32 v{vX}, v{vA}, 4, v{vX}
            v_and_b32 v{vA}, 2, v{vL}
            v_lshl_or_b32 v{vX}, v{vA}, 7, v{vX}
            s_lshl_b32 s{sWq}, s{sT0}, 12
            s_and_b32 s{sT1}, s{sIdx}, 0x78
            s_lshl_b32 s{sT1}, s{sT1}, 6
            s_add_u32 s{sWq}, s{sWq}, s{sT1}
            s_and_b32 s{sT1}, s{sIdx}, 7
            s_lshl_b32 s{sT1}, s{sT1}, 5
            s_add_u32 s{sWq}, s{sWq}, s{sT1}
            """)
        if seg == 16:
            e(f"""
            v_mul_u32_u24 v{vX}, 0xc000, v{vT1}
            v_lshl_or_b32 v{vX}, v{vT0}, 7, v{vX}
            s_lshl_b32 s{sWq}, s{sT0}, 12
            s_and_b32 s{sT1}, s{sIdx}, 0x78
            s_lshl_b32 s{sT1}, s{sT1}, 6
            s_add_u32 s{sWq}, s{sWq}, s{sT1}
            s_and_b32 s{sT1}, s{sIdx}, 7
            s_lshl_b32 s{sT1}, s{sT1}, 4
            s_add_u32 s{sWq}, s{sWq}, s{sT1}
            """)
        if wqoff:
            e(f"s_add_u32 s{sWq}, s{sWq}, {wqoff}")
        if wqstr != 13:
            wstep = wqstr
            e(f"""
            v_mul_u32_u24 v{vX}, {6*wqstr}, v{vT1}
            v_lshl_or_b32 v{vX}, v{vT0}, 4, v{vX}
            s_mul_i32 s{sWq}, s{sWm}, {96*wqstr}
            s_lshl_b32 s{sT1}, s{sIdx}, 6
            s_add_u32 s{sWq}, s{sWq}, s{sT1}
            """)
        if wqp >= 0:
            S = 64 << wqp
            rpl = 1024 // S
            wstep = rpl * 8192
            e(f"""
            v_lshrrev_b32 v{vX}, {2+wqp}, v{vL}
            v_lshlrev_b32 v{vX}, 13, v{vX}
            v_and_b32 v{vA}, {(4<<wqp)-1}, v{vL}
            v_lshl_or_b32 v{vX}, v{vA}, 4, v{vX}
            s_and_b32 s{sT0}, s{sIdx}, {(1<<wqp)-1}
            s_mul_i32 s{sT0}, s{sT0}, 6
            s_add_u32 s{sT0}, s{sT0}, s{sWm}
            s_mul_i32 s{sWq}, s{sT0}, {6*wstep}
            s_lshr_b32 s{sT0}, s{sIdx}, {wqp}
            s_mul_i32 s{sT0}, s{sT0}, {S}
            s_add_u32 s{sWq}, s{sWq}, s{sT0}
            """)
        stamp(1, 4)
        stamp(5, 6)
        e("s_waitcnt lgkmcnt(0)")
        stamp(2, 4)
        stamp(6, 6)
        e(f"global_load_dwordx3 {vr(vXr,3)}, v{vT2}, {sp(sX)}")
        for i in range(6):
            e(f"buffer_load_dwordx4 {vr(vH+4*i,4)}, v{vX}, {srd(WQ_)}, s{sWq} offen{NTQ}")
            if i < 5:
                e(f"s_add_u32 s{sWq}, s{sWq}, {wstep}" if wstep != 0x2000 else f"s_addk_i32 s{sWq}, 0x2000")
        vq = VM(e)
        vq.add("x")
        for i in range(6):
            vq.add(f"w{i}")
        slot["K0"] = free.pop(0)
        for t in seq[:kq]:
            issue(vq, t)
        stamp(3, 4)
        e("s_branch L_t0")
    e("L_clear:")
    if prio:
        e("s_setprio 3")
    def clears(lbl):
        if lay:
            e(f"""
            s_lshl_b32 s{sT1}, s{sLid}, 7
            s_add_u32 s{sT1}, s{sT1}, {WS_ML}
            buffer_store_dwordx4 {vr(vA,4)}, v{vLin}, {srd(WS_)}, s{sA} offen sc1
            buffer_store_dwordx4 {vr(vA,4)}, v{vLin}, {srd(WS_)}, s{sB} offen sc1
            buffer_store_dwordx4 {vr(vA,4)}, v{vLin}, {srd(WS_)}, s{sB} offen offset:1024 sc1
            s_mov_b64 exec, 0xffff
            buffer_store_dwordx4 {vr(vA,4)}, v{vLin}, {srd(WS_)}, s{sB} offen offset:2048 sc1
            s_mov_b64 exec, 0xff
            buffer_store_dwordx4 {vr(vA+4 if xl else vA,4)}, v{vLin}, {srd(WS_)}, s{sT1} offen sc1
            s_mov_b64 exec, -1
            """)
            return
        e(f"""
        s_mov_b64 exec, 15
        buffer_store_dwordx4 {vr(vA,4)}, v{vLin}, {srd(WS_)}, s{sA} offen offset:1024 sc1
        s_mov_b64 exec, -1
        s_cmp_ge_u32 s{sIdx}, 72
        buffer_store_dwordx4 {vr(vA,4)}, v{vLin}, {srd(WS_)}, s{sA} offen sc1
        s_cbranch_scc1 {lbl}
        buffer_store_dwordx4 {vr(vA,4)}, v{vLin}, {srd(WS_)}, s{sB} offen sc1
        buffer_store_dwordx4 {vr(vA,4)}, v{vLin}, {srd(WS_)}, s{sB} offen offset:1024 sc1
        buffer_store_dwordx4 {vr(vA,4)}, v{vLin}, {srd(WS_)}, s{sB} offen offset:2048 sc1
        buffer_store_dwordx4 {vr(vA,4)}, v{vLin}, {srd(WS_)}, s{sB} offen offset:3072 sc1
        """)
    e(f"""
    v_mov_b32 v{vA}, -1
    v_mov_b32 v{vA+1}, -1
    v_mov_b32 v{vA+2}, -1
    v_mov_b32 v{vA+3}, -1
    v_mov_b32 v{vA+4}, 0
    v_mov_b32 v{vA+5}, 0
    ds_write_b64 v{vA+4}, {vr(vA+4,2)} offset:{LDS_CNT}
    s_and_b32 s{sEp}, s{sLid}, 0x80
    s_add_u32 s{sEp}, s{sEp}, {WS_EP}
    s_lshl_b32 s{sA}, s{sLid}, 11
    s_add_u32 s{sA}, s{sA}, {WS_H1}
    {f"s_mul_i32 s{sB}, s{sLid}, 2304" if lay else f"s_lshl_b32 s{sB}, s{sLid}, 12"}
    s_add_u32 s{sB}, s{sB}, {WS_I2}
    s_waitcnt lgkmcnt(0)
    s_load_dword s{sTag}, {sp(WS_)}, s{sEp}
    """)
    if xl:
        assert lay
        e(f"""
        s_getreg_b32 s{sXc}, hwreg(HW_REG_XCC_ID, 0, 4)
        v_mov_b32 v{vA+4}, -1
        v_mov_b32 v{vA+5}, -1
        v_mov_b32 v{vA+6}, -1
        v_mov_b32 v{vA+7}, s{sXc}
        """)
    if clr == 0:
        if not wqnoclr:
            clears("L_t0")
            if lay:
                e("s_branch L_t0")
        else:
            e("s_cmp_eq_u32 s2, s2\ns_cbranch_scc1 L_t0")
    elif not fp:
        e("s_branch L_t0")
    if not fp:
        e(f"""
        L_wait0:
        s_waitcnt lgkmcnt(0)
        """)
    for t in seq[:pre7]:
        issue(VM(e), t)
    e(f"""
    L_t0:
    s_barrier
    """)
    stamp(1)
    stamp(4, 4)
    if not (pre7 or kq or cup):
        consts()
    e(f"""
    s_cmp_ge_u32 s{sWm}, 6
    s_cbranch_scc1 L_noq
    """)
    e(f"""
    v_and_b32 v{vT0}, {15 if wp == 2 else 3}, v{vL}
    v_lshrrev_b32 v{vT1}, 4, v{vL}
    v_lshlrev_b32 v{vT1}, 3, v{vT1}
    v_lshl_or_b32 v{vT0}, v{vT0}, 5, v{vT1}
    s_lshl_b32 s{sT0}, s{sWm}, {9 if wp == 2 else 7}
    v_add_u32 v{vX}, s{sT0}, v{vT0}
    """)
    stamp(5, 4)
    if hops:
        for k, name in enumerate(hops):
            e(f"s_cmp_eq_u32 s{sWm}, {k + hopat}\ns_cbranch_scc1 P_{name}")
        e("L_hopret:")
    if fp:
        e("s_waitcnt lgkmcnt(0)")
    vq.wait_tag("x")
    stamp(6, 4)
    for t in range(3):
        e(f"v_and_b32 v{vXs+4*t}, 0xffff, v{vXr+t}")
        e(f"v_lshlrev_b32 v{vXs+4*t+1}, 16, v{vXr+t}")
        e(f"v_lshrrev_b32 v{vXs+4*t+2}, 16, v{vXr+t}")
        e(f"v_and_b32 v{vXs+4*t+3}, 0xffff0000, v{vXr+t}")
    k0 = 0
    for i in range(6):
        vq.wait_tag(f"w{i}")
        if i == 5:
            stamp(2)
            stamp(7, 4)
        for c in range(8):
            w = vH + 4 * i + (c >> 1)
            x = vXs + 2 * i + (c & 1)
            acc = "0" if i == 0 else f"v{vAcc+c}"
            e(f"v_dot2_f32_bf16 v{vAcc+c}, v{w}, v{x}, {acc}")
        while k0 < 4 and (5 - i) + k0 < uq and not kq:
            issue_load("K0", k0)
            vq.add("K0")
            k0 += 1
    for c in range(4):
        e(f"v_permlane32_swap_b32 v{vAcc+c}, v{vAcc+c+4}")
    for c in range(4):
        e(f"v_add_f32 v{vAcc+c}, v{vAcc+c}, v{vAcc+c+4}")
    for c in range(2):
        e(f"v_permlane16_swap_b32 v{vAcc+c}, v{vAcc+c+2}")
    for c in range(2):
        e(f"v_add_f32 v{vAcc+c}, v{vAcc+c}, v{vAcc+c+2}")
    if wp == 0:
        for rot in (8, 4):
            for c in range(2):
                e(f"v_add_f32_dpp v{vAcc+c}, v{vAcc+c}, v{vAcc+c} row_ror:{rot} row_mask:0xf bank_mask:0xf")
        e(f"""
        s_mov_b32 exec_lo, 0x000f000f
        s_mov_b32 exec_hi, 0x000f000f
        """)
    e(f"""
    ds_write_b64 v{vX}, {vr(vAcc,2)} offset:{LDS_RED if wp == 2 else LDS_PART}
    v_mov_b32 v{vT0}, 1
    """)
    stamp(8, 4)
    e(f"""
    s_mov_b64 exec, 1
    ds_add_u32 v{vZ}, v{vT0} offset:{LDS_CNT}
    s_mov_b64 exec, -1
    """)
    if max(qprio, p0) != p0:
        e(f"s_setprio {p0}")
    if not kq:
        for i in range(k0, 4):
            issue_load("K0", i)
            vq.add("K0")
        issue_end("K0")
    e(f"""
    s_branch L_pre{max(kq, 1)}
    L_noq:
    s_cmp_eq_u32 s{sW}, 0
    s_cbranch_scc1 L_ctl
    """)
    assert not dry
    if dry:
        for r in range(vH + 3, vH + 7):
            e(f"v_mov_b32 v{r}, 0")
        e("""
        s_mov_b64 exec, 0
        s_branch L_t2b
        """)
    else:
        e(f"s_setprio {p0}")
        if fp:
            e("s_waitcnt lgkmcnt(0)")
        e(f"s_branch L_pre{pre7}" if pre7 else "s_branch L_dry_ret")
    padspot("ctl")
    e("L_ctl:")
    vc = VM(e)
    if clr == 1 and not wqnoclr:
        clears("L_clr1")
        if not lay:
            e("L_clr1:")
    if pfk == 1:
        assert clr == 1 and wp == 2
        e(f"""
        s_lshl_b32 s{sT0}, s{sLid}, 11
        s_add_u32 s{sT0}, s{sT0}, {WS_H1}
        buffer_load_dwordx4 {vr(vH+8,4)}, v{vLin}, {srd(WS_)}, s{sT0} offen {pfc.replace("_", " ").replace("none", "")}
        """)
    if clr == 2:
        for t in seq[:jctl]:
            issue(vc, t, None, True)
        clears("L_clr1")
        if not lay:
            e("L_clr1:")
    e(f"""
    v_lshlrev_b32 v{vX}, 3, v{vL}
    s_xor_b32 s{sB}, s{sLid}, {cx}
    s_lshl_b32 s{sB}, s{sB}, 7
    s_and_b32 s{sA}, s{sB}, 0x7c00
    s_lshr_b32 s{sFo}, s{sA}, 3
    s_add_u32 s{sFo}, s{sFo}, {WS_FL}
    """)
    if xq:
        assert wp == 2 and xl and clr == 1
        e(f"""
        s_mov_b32 s{sWo}, s{sA}
        s_mov_b32 s{sWo2}, 0
        """)
    if wp == 2:
        e(f"""
        s_lshl_b32 s{sB}, s{sB}, 3
        s_lshl_b32 s{sA}, s{sA}, 3
        s_add_u32 s{sB}, s{sB}, {WS_QP2}
        s_add_u32 s{sA}, s{sA}, {WS_QP2}
        s_add_u32 s{sMl}, s{sA}, 4096
        """)
    if clr == 0:
        e("s_waitcnt vmcnt(0)")
    stamp(2)
    stamp(7, 4)
    vc.add("x")
    if clr != 2:
        for t in seq[:jctl]:
            issue(vc, t, None, True)
    if xq:
        e(f"""
        s_lshl_b32 s{sT0}, s{sLid}, 7
        v_mov_b32 v{vT2}, s{sXc}
        s_waitcnt lgkmcnt(0)
        s_add_u32 s{sTag}, s{sTag}, {EPC}
        v_mov_b32 v{vT2+1}, s{sTag}
        s_mov_b64 exec, 1
        buffer_store_dwordx2 {vr(vT2,2)}, v{vZ}, {srd(WS_)}, s{sT0} offen sc1
        s_mov_b64 exec, -1
        """)
    e(f"""
    L_cnt:
    ds_read_b32 v{vT0}, v{vZ} offset:{LDS_CNT}
    s_waitcnt lgkmcnt(0)
    v_cmp_ne_u32 vcc, 6, v{vT0}
    s_cbranch_vccz L_cnt_ok
    {SPIN("L_cnt")}
    L_cnt_ok:
    {"" if wp == 2 else "s_mov_b64 exec, 0xffff"}
    """)
    stamp(8, 4)
    for i in range(6):
        e(f"ds_read_b64 {vr(vS+2*i,2)}, v{vX} offset:{LDS_RED+512*i if wp == 2 else LDS_PART+128*i}")
    e(f"""
    {"" if xq else f"s_add_u32 s{sTag}, s{sTag}, {EPC}"}
    s_waitcnt lgkmcnt(0)
    v_pk_add_f32 {vr(vS,2)}, {vr(vS,2)}, {vr(vS+2,2)}
    v_pk_add_f32 {vr(vS+4,2)}, {vr(vS+4,2)}, {vr(vS+6,2)}
    v_pk_add_f32 {vr(vS+8,2)}, {vr(vS+8,2)}, {vr(vS+10,2)}
    v_pk_add_f32 {vr(vS,2)}, {vr(vS,2)}, {vr(vS+4,2)}
    v_pk_add_f32 {vr(vS,2)}, {vr(vS,2)}, {vr(vS+8,2)}
    """)
    if wp == 2:
        e(f"""
        v_mov_b32 v{vS+3}, s{sTag}
        v_mov_b32 v{vS+2}, v{vS+1}
        v_mov_b32 v{vS+1}, s{sTag}
        s_mov_b32 s{sTag+1}, s{sTag}
        {f"v_lshlrev_b32 v{vX}, 7, v{vL}" if xq else ""}
        {"" if clr == 0 else f"s_waitcnt vmcnt({4*jctl+xq+(1 if pfk == 1 else 0) if clr == 1 else 0})"}
        {f"s_mov_b64 exec, {hex((1 << (8*wqs)) - 1)}" if wqs else ""}
        buffer_store_dwordx4 {vr(vS,4)}, v{vLin}, {srd(WS_)}, s{sB} offen{(" " + qs if qs else "") if xq else " sc1"}
        {"s_mov_b64 exec, -1" if wqs else ""}
        """)
    else:
        e(f"""
        v_cvt_pk_bf16_f32 v{vS}, v{vS}, v{vS+1}
        v_mov_b32 v{vS+1}, s{sTag}
        s_mov_b32 s{sTag+1}, s{sTag}
        {"" if clr == 0 else f"s_waitcnt vmcnt({4*jctl if clr == 1 else 0})"}
        buffer_store_dwordx2 {vr(vS,2)}, v{vX}, {srd(WS_)}, s{sB} offen sc1
        s_mov_b64 exec, -1
        """)
    stamp(12)
    stamp(9, 4)
    if pfk == 2:
        e(f"""
        s_lshl_b32 s{sT0}, s{sLid}, 11
        s_add_u32 s{sT0}, s{sT0}, {WS_H1}
        buffer_load_dwordx4 {vr(vH+8,4)}, v{vLin}, {srd(WS_)}, s{sT0} offen {pfc.replace("_", " ").replace("none", "")}
        """)
    if pfk:
        vc.add("pf")
    if wp == 2:
        pass
    elif seg == 64:
        e(f"v_mov_b32 v{vS+2}, v{vX}")
    elif seg == 32:
        e(f"""
        v_lshrrev_b32 v{vS+2}, 3, v{vL}
        v_lshlrev_b32 v{vS+2}, 5, v{vS+2}
        v_and_b32 v{vS+3}, 4, v{vL}
        v_lshl_or_b32 v{vS+2}, v{vS+3}, 6, v{vS+2}
        v_and_b32 v{vS+3}, 3, v{vL}
        v_lshl_or_b32 v{vS+2}, v{vS+3}, 3, v{vS+2}
        """)
    else:
        e(f"""
        v_lshrrev_b32 v{vS+2}, 3, v{vL}
        v_lshlrev_b32 v{vS+2}, 4, v{vS+2}
        v_and_b32 v{vS+3}, 6, v{vL}
        v_lshl_or_b32 v{vS+2}, v{vS+3}, 6, v{vS+2}
        v_and_b32 v{vS+3}, 1, v{vL}
        v_lshl_or_b32 v{vS+2}, v{vS+3}, 3, v{vS+2}
        """)
    for t in seq[jctl:jpoll]:
        issue(vc, t, uctl, True)
    if wp == 2:
        Q = RING + 16 * (NSLOT - 2)
        def gl(fl):
            if xq:
                e(f"""
                s_mov_b64 exec, 0xff
                buffer_load_dwordx2 {vr(vH+28,2)}, v{vX}, {srd(WS_)}, s{sWo} offen sc1
                s_mov_b64 exec, -1
                """)
            for j in range(wqg):
                e(f"buffer_load_dwordx4 {vr(Q+4*j,4)}, v{vLin}, {srd(WS_)}, s{sA if j < 4 else sMl} offen offset:{1024*(j&3)}{fl}")
        if qf != "sc1":
            gl(" " + qf.replace("_", " ") if qf else "")
            e("s_branch L_gather2")
        e("L_gather1:")
        gl(" sc1")
        e("L_gather2:")
        if xq:
            e(f"""
            s_waitcnt vmcnt({wqg})
            s_mov_b64 exec, 0xff
            v_cmp_ne_u32 vcc, s{sTag}, v{vH+29}
            v_cmp_ne_u32 {sp(sP0)}, s{sXc}, v{vH+28}
            s_mov_b64 exec, -1
            s_cbranch_vccnz L_again
            s_cmp_eq_u64 {sp(sP0)}, 0
            s_cbranch_scc1 L_chk
            s_cmp_lg_u32 s{sWo2}, 0
            s_cbranch_scc1 L_chk
            buffer_store_dwordx4 {vr(vS,4)}, v{vLin}, {srd(WS_)}, s{sB} offen sc1
            s_mov_b32 s{sWo2}, 1
            L_chk:
            """)
        e("s_waitcnt vmcnt(0)")
        if wqs:
            e("s_mov_b64 exec, 0xff")
        for j in range(wqg):
            if j == 0:
                e(f"v_max_u32 v{vT0}, v{Q+1}, v{Q+3}")
                e(f"v_min_u32 v{vT1}, v{Q+1}, v{Q+3}")
            else:
                e(f"v_max3_u32 v{vT0}, v{vT0}, v{Q+4*j+1}, v{Q+4*j+3}")
                e(f"v_min3_u32 v{vT1}, v{vT1}, v{Q+4*j+1}, v{Q+4*j+3}")
        e(f"""
        v_cmp_ne_u32 vcc, s{sTag}, v{vT0}
        v_cmp_ne_u32 {sp(sP0)}, s{sTag}, v{vT1}
        s_mov_b64 exec, -1
        s_or_b64 vcc, vcc, {sp(sP0)}
        s_cbranch_vccz L_gotq
        L_again:
        s_waitcnt vmcnt(0)
        {SPIN("L_gather1") if wqnoqw != 1 else ""}
        L_gotq:
        """)
        for h in range(2):
            for c in (0, 2):
                b = Q + 16 * h + c
                e(f"v_add_f32 v{b}, v{b}, v{b+4}")
                e(f"v_add_f32 v{b+8}, v{b+8}, v{b+12}")
        for h in range(2):
            for c in (0, 2):
                b = Q + 16 * h + c
                e(f"v_add_f32 v{b}, v{b}, v{b+8}")
        e(f"""
        v_lshlrev_b32 v{vS+2}, 2, v{vL}
        v_cvt_pk_bf16_f32 v{vPoll}, v{Q}, v{Q+2}
        v_cvt_pk_bf16_f32 v{vPoll+2}, v{Q+16}, v{Q+18}
        """)
    else:
        e(f"""
        L_gather1:
        buffer_load_dwordx4 {vr(vPoll,4)}, v{vLin}, {srd(WS_)}, s{sA} offen sc1
        s_waitcnt vmcnt(0)
        v_cmp_ne_u32 vcc, s{sTag}, v{vPoll+1}
        v_cmp_ne_u32 {sp(sP0)}, s{sTag}, v{vPoll+3}
        s_or_b64 vcc, vcc, {sp(sP0)}
        s_cbranch_vccz L_gotq
        {SPIN("L_gather1") if wqnoqw != 1 else ""}
        L_gotq:
        """)
    e(f"""
    v_mov_b32 v{vT0}, 1
    v_mov_b32 v{vT1}, s{sTag}
    ds_write2_b32 v{vS+2}, v{vPoll}, v{vPoll+2} offset0:0 offset1:{64 if wp == 2 else 1}
    s_and_b32 s{sT0}, s{sLid}, 0x7f
    s_and_b32 s{sT1}, s{sLid}, 7
    {"" if lay else f"s_cselect_b32 s{sT0}, 0x7f, s{sT0}"}
    {"" if lay else f"s_cmp_ge_u32 s{sT0}, 72"}
    s_waitcnt lgkmcnt(0)
    ds_write_b32 v{vZ}, v{vT0} offset:{LDS_CNT+4}
    s_cbranch_scc1 L_noep
    s_and_b32 s{sT1}, s{sLid}, 0x80
    s_lshl_b32 s{sT1}, s{sT1}, 4
    s_lshr_b32 s{sT0}, s{sT0}, 1
    s_add_u32 s{sT0}, s{sT0}, s{sT1}
    s_add_u32 s{sT0}, s{sT0}, {WS_FL}
    v_lshlrev_b32 v{vT2}, 7, v{vL}
    s_mov_b64 exec, {"0x1ff" if lay else "0xffff"}
    buffer_store_dword v{vT1}, v{vT2}, {srd(WS_)}, s{sT0} offen sc1
    s_mov_b64 exec, -1
    L_noep:
    """)
    if xl and not xq:
        e(f"""
        s_and_b32 s{sT0}, s{sLid}, 0xf8
        s_lshl_b32 s{sT0}, s{sT0}, 7
        s_add_u32 s{sT0}, s{sT0}, {WS_ML + 12}
        v_lshlrev_b32 v{vH+29}, 7, v{vL}
        s_mov_b64 exec, 0xff
        buffer_load_dword v{vH+28}, v{vH+29}, {srd(WS_)}, s{sT0} offen sc1
        s_mov_b64 exec, -1
        """)
    cp2 = p0 - sum(1 for x in steps if x < jpoll) if cprio2 < 0 else cprio2
    if prio and cp2 != 3:
        e(f"s_setprio {cp2}")
    vc.done = len(vc.ops)
    stamp(3)
    vc.add("fl")
    for t in seq[jpoll:npre]:
        issue(vc, t, uctl)
    e("s_branch L_readq")
    padspot("pre")
    e("L_dry_ret:")
    e("s_mov_b64 exec, -1")
    if not pre7:
        for i in range(4):
            issue_load("K0", i)
        issue_end("K0")
    vm = VM(e)
    vm.ops = ["K0"] * 4
    assert 4 * max(pre7, kq) <= upre
    for k in range(1, npre):
        e(f"L_pre{k}:")
        if k < min(max(kq, 1), pre7) :
            vm.ops += [seq[k]] * 4
            continue
        issue(vm, seq[k], upre)
    stamp(3)
    if pfq:
        e(f"""
        s_cmp_lg_u32 s{sW}, {pfw}
        s_cbranch_scc1 L_qspin
        s_lshl_b32 s{sT0}, s{sLid}, 11
        s_add_u32 s{sT0}, s{sT0}, {WS_H1}
        buffer_load_dwordx4 {vr(vH+8,4)}, v{vLin}, {srd(WS_)}, s{sT0} offen {pfc.replace("_", " ").replace("none", "")}
        """)
    e(f"""
    L_qspin:
    ds_read_b32 v{vT0}, v{vZ} offset:{LDS_CNT+4}
    s_waitcnt lgkmcnt(0)
    v_cmp_eq_u32 vcc, 0, v{vT0}
    s_cbranch_vccz L_readq
    {SPIN("L_qspin") if not wqnoqw else ""}
    L_readq:
    v_bfe_u32 v{vT0}, v{vL}, 3, 1
    v_and_b32 v{vT1}, 48, v{vL}
    v_lshl_or_b32 v{vT0}, v{vT0}, 8, v{vT1}
    """)
    for i in range(4):
        e(f"ds_read_b128 {vr(vQ+4*i,4)}, v{vT0} offset:{LDS_Q+64*i}")
    vm.done = len(vm.ops) - max(len(vm.ops) - vm.done, min(len(vm.ops), len(vc.ops) - vc.done))
    stamp(4)
    e(f"""
    s_lshl_b32 s{sT0}, s{sW}, 10
    v_add_u32 v{vRed}, s{sT0}, v{vLin}
    s_lshl_b32 s{sT0}, s{sW}, 3
    v_lshrrev_b32 v{vMLw}, 2, v{vT0}
    v_and_b32 v{vMLw}, 64, v{vMLw}
    v_add_u32 v{vMLw}, s{sT0}, v{vMLw}
    """)
    if lay:
        e(f"v_lshlrev_b32 v{vH+25}, 2, v{vL}")
    if woat >= 0:
        e(wo_addr)
        e(t3_addr)
    if t4x:
        assert woat >= 0 and not wqcol
        e(f"""
        s_and_b32 s{sT0}, s{sIdx}, 31
        s_lshr_b32 s{sIdx}, s{sIdx}, 5
        s_lshl2_add_u32 s{sIdx}, s{sT0}, s{sIdx}
        s_and_b32 s{sT0}, s{sLid}, 0x80
        s_or_b32 s{sT0}, s{sT0}, s{sIdx}
        s_and_b32 s{sT0}, s{sT0}, 0xf8
        s_lshl_b32 s{sFo}, s{sT0}, 4
        s_add_u32 s{sFo}, s{sFo}, {WS_FL}
        """)
    if pfo == 18:
        e(f"""
        s_cmp_eq_u32 s{sW}, {pfw}
        s_cselect_b32 s{sT0}, 8, 0
        v_cmp_gt_u32 vcc, s{sT0}, v{vL}
        v_lshlrev_b32 v{vH+7}, 7, v{vL}
        v_mov_b32 v{vT1}, 0x40000000
        v_cndmask_b32 v{vH+7}, v{vT1}, v{vH+7}, vcc
        """)
    e(f"""
    s_mov_b32 vcc_lo, 0x00ff00ff
    s_mov_b32 vcc_hi, 0xff00ff00
    s_waitcnt lgkmcnt(0)
    """)
    if wqnoqw:
        for r in range(vQ, vQ + 16):
            e(f"v_mov_b32 v{r}, 0")
    if wqnocomp:
        for r in list(range(vS, vS + 16)) + list(range(vD, vD + 4)) + [vMx, vAl, vLs, vLs + 1, vN0, vN1]:
            e(f"v_mov_b32 v{r}, 0")

    st = {"sreg": {}, "sfree": [0, 1, 2, 3]}

    def softmax(c):
        sreg = st["sreg"]
        s0 = vS + 4 * sreg[2 * c]
        s1 = vS + 4 * sreg[2 * c + 1]
        nn, no = (vN0, vN1) if c % 2 == 0 else (vN1, vN0)
        if c == 0:
            e(f"v_max3_f32 v{vT0}, v{s0}, v{s0+1}, v{s0+2}")
            e(f"v_max3_f32 v{vT0}, v{vT0}, v{s0+3}, v{s1}")
            e(f"v_max3_f32 v{vT0}, v{vT0}, v{s1+1}, v{s1+2}")
            e(f"v_max_f32 v{vMx}, v{vT0}, v{s1+3}")
        else:
            e(f"v_max3_f32 v{vT0}, v{s0}, v{s0+1}, v{s0+2}")
            e(f"v_max3_f32 v{vMx}, v{vMx}, v{s0+3}, v{vT0}")
            e(f"v_max3_f32 v{vT0}, v{s1}, v{s1+1}, v{s1+2}")
            e(f"v_max3_f32 v{vMx}, v{vMx}, v{s1+3}, v{vT0}")
        allreduce(vMx, vT0, "v_max_f32")
        e(f"v_mul_f32 v{nn}, 0xbe0293ee, v{vMx}")
        for b in (s0, s1):
            for r in range(4):
                e(f"v_fma_f32 v{b+r}, v{b+r}, s{sC}, v{nn}")
        if c > 0:
            e(f"v_sub_f32 v{vAl}, v{nn}, v{no}")
            e(f"v_exp_f32 v{vAl}, v{vAl}")
        for b in (s0, s1):
            for r in range(4):
                e(f"v_exp_f32 v{b+r}, v{b+r}")
        if c > 0:
            e(f"v_cndmask_b32_dpp v{vAD}, v{vAl}, v{vAl}, vcc row_ror:8 row_mask:0xf bank_mask:0xf")
        e(f"v_pk_add_f32 {vr(vA,2)}, {vr(s0,2)}, {vr(s0+2,2)}")
        e(f"v_pk_add_f32 {vr(vT2,2)}, {vr(s1,2)}, {vr(s1+2,2)}")
        if c == 0:
            e(f"v_pk_add_f32 {vr(vLs,2)}, {vr(vA,2)}, {vr(vT2,2)}")
        else:
            e(f"v_pk_add_f32 {vr(vT2,2)}, {vr(vA,2)}, {vr(vT2,2)}")
            e(f"v_fma_f32 v{vLs}, v{vLs}, v{vAl}, v{vT2}")
            e(f"v_fma_f32 v{vLs+1}, v{vLs+1}, v{vAl}, v{vT2+1}")
        for b in (s0, s1):
            for r in range(4):
                e(f"v_cvt_pk_bf16_f32 v{b+r}, v{b+r}, v{b+r}")
        if c == 3:
            e(f"v_add_f32 v{vLt}, v{vLs}, v{vLs+1}")
            allreduce(vLt, vT0, "v_add_f32")
            e(f"ds_write_b64 v{vMLw}, {vr(vN1,2)} offset:{LDS_ML}")

    def diag_mfma(dst, pregs, bregs, zero_first):
        n = len(pregs)

        def ands(i):
            for d in range(4):
                e(f"v_and_b32 v{vA+4*(i&1)+d}, v{pregs[i]}, v{vM+d}")
        ands(0)
        for i in range(n):
            if i + 1 < n:
                ands(i + 1)
            c = "0" if (zero_first and i == 0) else vr(dst, 4)
            e(f"v_mfma_f32_16x16x32_bf16 {vr(dst,4)}, {vr(vA+4*(i&1),4)}, {vr(bregs[i],4)}, {c}")

    def process(vm, t):
        sreg, sfree = st["sreg"], st["sfree"]
        n = int(t[1])
        base = RING + 16 * slot[t]
        if t[0] == "K":
            sreg[n] = sfree.pop(0)
            s = vS + 4 * sreg[n]
            vm.wait_tag(t)
            for i in range(4 if not wqnocomp else 0):
                c = "0" if i == 0 else vr(s, 4)
                e(f"v_mfma_f32_16x16x32_bf16 {vr(s,4)}, {vr(base+4*i,4)}, {vr(vQ+4*i,4)}, {c}")
            if n & 1 and (not wqnocomp or n == 7):
                softmax(n >> 1)
        else:
            s = vS + 4 * sreg[n]
            if n > 0 and n % 2 == 0:
                for r in range(4):
                    e(f"v_mul_f32 v{vD+r}, v{vAD}, v{vD+r}")
            vm.wait_tag(t)
            if n == 7:
                stamp(6)
            if not wqnocomp:
                diag_mfma(vD, [s + r for r in range(4)], [base + 4 * r for r in range(4)], n == 0)
            sfree.append(sreg[n])
        free.append(slot[t])

    def flags(ip):
        if noflag:
            return
        if lay:
            vF, vFo = vH + 24, vH + 25
            if ip == pf1:
                e(f"""
                s_cmp_lg_u32 s{sW}, 0
                s_cbranch_scc1 L_pf1
                s_cmp_ge_u32 s{sIdx}, 72
                s_cbranch_scc1 L_pf1
                s_mov_b64 exec, 0xffff
                buffer_load_dword v{vF}, v{vFo}, {srd(WS_)}, s{sFo} offen sc1
                s_mov_b64 exec, -1
                L_pf1:
                """)
                st["pf"] = len(vm.ops)
            if ip == pf2:
                e(f"""
                s_cmp_lg_u32 s{sW}, 0
                s_cbranch_scc1 L_pf3
                s_cmp_ge_u32 s{sIdx}, 72
                s_cbranch_scc1 L_pf3
                s_mov_b64 exec, 0xffff
                s_waitcnt vmcnt({len(vm.ops) - st["pf"]})
                L_pf2:
                v_cmp_ne_u32 {sp(sF)}, s{sTag}, v{vF}
                s_cmp_eq_u64 {sp(sF)}, 0
                s_cbranch_scc1 L_pf4
                buffer_load_dword v{vF}, v{vFo}, {srd(WS_)}, s{sFo} offen sc1
                s_waitcnt vmcnt(0)
                {SPIN("L_pf2")}
                L_pf4:
                s_mov_b64 exec, -1
                L_pf3:
                """)
            return
        if ip == pf1:
            e(f"""
            s_cmp_lg_u32 s{sW}, 0
            s_cbranch_scc1 L_pf1
            s_load_dwordx8 s[{sF}:{sF+7}], {sp(WS_)}, s{sFo} glc
            s_load_dword s{sF+8}, {sp(WS_)}, s{sFo} offset:32 glc
            L_pf1:
            """)
        if ip == pf2:
            e(f"""
            s_cmp_lg_u32 s{sW}, 0
            s_cbranch_scc1 L_pf3
            L_pf2:
            s_waitcnt lgkmcnt(0)
            s_xor_b64 {sp(sF)}, {sp(sF)}, {sp(sTag)}
            s_xor_b64 {sp(sF+2)}, {sp(sF+2)}, {sp(sTag)}
            s_xor_b64 {sp(sF+4)}, {sp(sF+4)}, {sp(sTag)}
            s_xor_b64 {sp(sF+6)}, {sp(sF+6)}, {sp(sTag)}
            s_xor_b32 s{sF+8}, s{sF+8}, s{sTag}
            s_or_b64 {sp(sF)}, {sp(sF)}, {sp(sF+2)}
            s_or_b64 {sp(sF+4)}, {sp(sF+4)}, {sp(sF+6)}
            s_or_b32 s{sF}, s{sF}, s{sF+8}
            s_or_b64 {sp(sF)}, {sp(sF)}, {sp(sF+4)}
            s_cbranch_scc0 L_pf3
            s_load_dwordx8 s[{sF}:{sF+7}], {sp(WS_)}, s{sFo} glc
            s_load_dword s{sF+8}, {sp(WS_)}, s{sFo} offset:32 glc
            {SPIN("L_pf2")}
            s_waitcnt lgkmcnt(0)
            L_pf3:
            """)

    assert 0 < pf1 < pf2 <= seq.index("K7") + 1
    ip, ii = 0, npre
    UWO = umain if uwo < 0 else (uwo if uwo else None)
    while ii < 16:
        k = ratio if (ii - ip) > la else 1
        for _ in range(k):
            process(vm, seq[ip])
            ip += 1
            flags(ip)
        padspot(f"m{ii}", True)
        if pfo and ii == pfo:
            e(f"""
            s_cmp_lg_u32 s{sW}, {pfw}
            s_cbranch_scc1 L_pfo
            buffer_load_dwordx4 {vr(vH+8,4)}, v{vLin}, {srd(WS_)}, s{sA} offen sc1
            {f"buffer_load_dwordx2 {vr(vH+12,2)}, v{vPb}, {srd(WS_)}, s{sMl} offen sc1" if pfm else ""}
            {f"buffer_load_dwordx2 {vr(vH+14,2)}, v{vPb}, {srd(WS_)}, s{sMl} offen offset:512 sc1" if pfm else ""}
            L_pfo:
            """)
        if woat >= 0 and ii == woat:
            issue_wo(vm, UWO, 0, 8 if not wosplit else 4)
        if woat >= 0 and wosplit and ii == woat + wosplit:
            issue_wo(vm, UWO, 4, 8)
        issue(vm, seq[ii], umain)
        ii += 1
    if woat == 16 - wosplit and wopos == 0:
        issue_wo(vm, UWO, 4 if wosplit else 0, 8)
        if pfo == 18:
            e(f"buffer_load_dword v{vH+26}, v{vH+7}, {srd(WS_)}, s{sA} offen {pfc.replace('_', ' ').replace('none', '')}")
            vm.add("wo")
        if pfo == 17:
            e(f"""
            s_cmp_lg_u32 s{sW}, {pfw}
            s_cbranch_scc1 L_pfo
            buffer_load_dwordx4 {vr(vH+8,4)}, v{vLin}, {srd(WS_)}, s{sA} offen {pfc.replace("_", " ").replace("none", "")}
            L_pfo:
            """)
    if woat == 16 and wopos:
        for _ in range(wopos):
            process(vm, seq[ip])
            ip += 1
            flags(ip)
        issue_wo(vm, UWO, 0, 8)
    while seq.index("K7") >= ip:
        process(vm, seq[ip])
        ip += 1
        flags(ip)
    rest = seq[ip:]
    if woat < 0:
        wo_slots[:] = [free[0], free[1]]
    fs = [s for s in range(NSLOT) if s not in wo_slots]

    def finish(vm):
        save = (dict(st["sreg"]), list(st["sfree"]), list(free))
        for t in rest:
            process(vm, t)
        e(f"ds_write_b128 v{vRed}, {vr(vD,4)} offset:{LDS_RED}")
        st["sreg"], st["sfree"] = save[0], save[1]
        free[:] = save[2]

    Z = vH + 8

    X = vH + 8
    first_poll = f"""
    buffer_load_dwordx2 {vr(X,2)}, v{vPa}, {srd(WS_)}, s{sA} offen sc1
    buffer_load_dwordx2 {vr(X+2,2)}, v{vPa}, {srd(WS_)}, s{sA} offen offset:512 sc1
    buffer_load_dwordx2 {vr(X+4,2)}, v{vPb}, {srd(WS_)}, s{sMl} offen sc1
    buffer_load_dwordx2 {vr(X+6,2)}, v{vPb}, {srd(WS_)}, s{sMl} offen offset:512 sc1
    """
    if early:
        assert t3 and lay and woat >= 0 and asplit
    if asplit:
        e(f"""
        s_cmp_gt_u32 s{sW}, 3
        s_cbranch_scc1 L_B
        """)
        finish(vm.copy())
        if woat < 0:
            e(wo_addr)
            e(t3_addr)
        e(f"""
        s_cmp_eq_u32 s{sW}, 0
        s_waitcnt lgkmcnt(0)
        s_barrier
        s_cbranch_scc1 L_c3
        """)
        stamp(5)
        if woat < 0:
            issue_wo(vm.copy())
        if early:
            e(first_poll)
        e("s_branch L_bf3")
        padspot("B")
        e(f"""
        L_B:
        s_cmp_gt_u32 s{sW}, 5
        s_cbranch_scc1 L_B67
        """)
    else:
        e(f"""
        s_cmp_eq_u32 s{sW}, 0
        s_cbranch_scc1 L_c3a
        s_cmp_gt_u32 s{sW}, 5
        s_cbranch_scc1 L_B67
        """)
    if woat < 0:
        e(wo_addr)
    e(f"""
    s_waitcnt lgkmcnt(0)
    s_barrier
    """)
    stamp(5)
    vb = vm.copy()
    if woat < 0:
        issue_wo(vb)
        e(t3_addr)
    if early:
        e(first_poll)
        for _ in range(4):
            vb.add("poll")
    finish(vb)
    X = vH + 8
    F0, F1 = vH + 16, vH + 17
    D0, D1, E = vS, vS + 4, vD
    PB = vQ
    o_loads = f"""
    buffer_load_dwordx2 {vr(X,2)}, v{vPa}, {srd(WS_)}, s{sA} offen sc1
    buffer_load_dwordx2 {vr(X+2,2)}, v{vPa}, {srd(WS_)}, s{sA} offen offset:512 sc1
    """
    o_check = f"""
    v_max3_u32 v{vT0}, v{X}, v{X+1}, v{X+2}
    v_max_u32 v{vT0}, v{vT0}, v{X+3}
    v_cmp_eq_u32 vcc, -1, v{vT0}
    """
    e(f"""
    L_bf3:
    s_waitcnt lgkmcnt(0)
    s_barrier
    """)
    stamp(7)
    if wqnotail:
        e('s_cmp_eq_u32 s2, s2\ns_cbranch_scc1 L_fin')
    M0, M1 = sP0 + 2, sP0 + 4
    if pw:
        assert sel and t3 and lay == 1 and not early and t4bar and asplit and xl
        if vc3:
            e(f"""
            v_and_b32 v{vT0}, 0x30, v{vL}
            v_and_b32 v{vT1}, 3, v{vL}
            v_lshl_or_b32 v{vT0}, v{vT1}, 2, v{vT0}
            v_and_b32 v{vT1}, 4, v{vL}
            v_lshl_or_b32 v{vT0}, v{vT1}, 4, v{vT0}
            v_and_b32 v{vT1}, 8, v{vL}
            v_lshl_or_b32 v{vT0}, v{vT1}, 6, v{vT0}
            v_add_u32 v{vT0}, {LDS_O}, v{vT0}
            v_lshlrev_b32 v{vT1}, 1, v{vT1}
            s_waitcnt vmcnt(0)
            """)
            stamp(8)
            e(f"""
            s_barrier
            ds_read2_b32 {vr(X,2)}, v{vT0} offset0:0 offset1:32
            ds_read_b128 {vr(X+4,4)}, v{vT1} offset:{LDS_F}
            ds_read2_b32 {vr(X+2,2)}, v{vT0} offset0:64 offset1:96
            s_waitcnt lgkmcnt(1)
            v_pk_mul_f32 {vr(X,2)}, {vr(X,2)}, {vr(X+4,2)}
            s_waitcnt lgkmcnt(0)
            """)
        else:
            e(f"""
            v_lshrrev_b32 v{vT0}, 5, v{vPb}
            v_add_u32 v{vT0}, {LDS_F}, v{vT0}
            s_waitcnt vmcnt(0)
            """)
            stamp(8)
            e(f"""
            s_barrier
            ds_read_b64 {vr(X,2)}, v{vPa} offset:{LDS_O}
            ds_read_b64 {vr(X+2,2)}, v{vPa} offset:{LDS_O+512}
            ds_read2_b32 {vr(F0,2)}, v{vT0} offset0:0 offset1:4
            s_waitcnt lgkmcnt(0)
            """)
    elif b2:
        e("s_barrier")

    def o_repoll(k):
        e(f"""
        v_max_u32 v{vT0}, v{X}, v{X+1}
        v_max_u32 v{vT1}, v{X+2}, v{X+3}
        v_cmp_eq_u32 {sp(M0)}, -1, v{vT0}
        v_cmp_eq_u32 {sp(M1)}, -1, v{vT1}
        s_or_b64 exec, {sp(M0)}, {sp(M1)}
        s_cbranch_scc0 L_or{k}c
        s_mov_b64 exec, {sp(M0)}
        s_cbranch_execz L_or{k}a
        buffer_load_dwordx2 {vr(X,2)}, v{vPa}, {srd(WS_)}, s{sA} offen sc1
        L_or{k}a:
        s_mov_b64 exec, {sp(M1)}
        s_cbranch_execz L_or{k}b
        buffer_load_dwordx2 {vr(X+2,2)}, v{vPa}, {srd(WS_)}, s{sA} offen offset:512 sc1
        L_or{k}b:
        s_mov_b64 exec, -1
        """)

    if pw:
        pass
    elif t3:
        M2, M3 = sP0 + 6, sF
        if not early:
            e(first_poll)
        if prof and pmode == 1:
            e("s_waitcnt vmcnt(4)")
            stamp(13)
            e("s_waitcnt vmcnt(0)")
            stamp(12)
        e(f"""
        L_ml:
        s_waitcnt vmcnt(0)
        v_max_u32 v{vT0}, v{X+4}, v{X+5}
        v_max_u32 v{vT1}, v{X+6}, v{X+7}
        v_cmp_eq_u32 {sp(M2)}, -1, v{vT0}
        v_cmp_eq_u32 {sp(M3)}, -1, v{vT1}
        """)
        o_repoll(0)
        e(f"""
        L_or0c:
        s_or_b64 exec, {sp(M2)}, {sp(M3)}
        s_cbranch_scc0 L_ml_ok
        s_mov_b64 exec, {sp(M2)}
        s_cbranch_execz L_mla
        buffer_load_dwordx2 {vr(X+4,2)}, v{vPb}, {srd(WS_)}, s{sMl} offen sc1
        L_mla:
        s_mov_b64 exec, {sp(M3)}
        s_cbranch_execz L_mlb
        buffer_load_dwordx2 {vr(X+6,2)}, v{vPb}, {srd(WS_)}, s{sMl} offen offset:512 sc1
        L_mlb:
        s_mov_b64 exec, -1
        {SPIN("L_ml")}
        s_waitcnt vmcnt(0)
        L_ml_ok:
        s_mov_b64 exec, -1
        v_min_f32 v{vMx}, v{X+4}, v{X+6}
        """)
        allreduce(vMx, vT0, "v_min_f32")
        e(f"""
        v_sub_f32 v{F0}, v{vMx}, v{X+4}
        v_sub_f32 v{F1}, v{vMx}, v{X+6}
        v_exp_f32 v{F0}, v{F0}
        v_exp_f32 v{F1}, v{F1}
        v_mul_f32 v{vMx}, v{F0}, v{X+5}
        v_fmac_f32 v{vMx}, v{F1}, v{X+7}
        """)
        allreduce(vMx, vT0, "v_add_f32")
        e(f"""
        v_rcp_f32 v{vMx}, v{vMx}
        v_mul_f32 v{F0}, v{F0}, v{vMx}
        v_mul_f32 v{F1}, v{F1}, v{vMx}
        """)
    else:
        if sel:
            e(f"""
            L_t3b:
            s_cbranch_execz L_t3c
            {o_loads}
            L_ml:
            buffer_load_dwordx2 {vr(X+4,2)}, v{vPb}, {srd(WS_)}, s{sMl if lay else sA} offen offset:{0 if lay else 1024} sc1
            buffer_load_dwordx2 {vr(X+6,2)}, v{vPb}, {srd(WS_)}, s{sMl if lay else sA} offen offset:{512 if lay else 1056} sc1
            s_waitcnt vmcnt(0)
            """)
            o_repoll(0)
            e(f"""
            s_branch L_t3c
            L_or0c:
            s_mov_b64 exec, -1
            L_t3c:
            v_min_f32 v{vMx}, v{X+4}, v{X+6}
            """)
        else:
            e(f"""
            L_t3b:
            s_cbranch_execz L_t3c
            L_ml:
            buffer_load_dwordx2 {vr(X+4,2)}, v{vPb}, {srd(WS_)}, s{sA} offen offset:1024 sc1
            buffer_load_dwordx2 {vr(X+6,2)}, v{vPb}, {srd(WS_)}, s{sA} offen offset:1056 sc1
            {o_loads}
            s_waitcnt vmcnt(0)
            {o_check}
            s_mov_b64 {sp(sP0+2)}, vcc
            s_cbranch_vccz L_t3c
            {o_loads}
            L_t3c:
            v_min_f32 v{vMx}, v{X+4}, v{X+6}
            """)
        allreduce(vMx, vT0, "v_min_f32")
        e(f"""
        v_sub_f32 v{F0}, v{vMx}, v{X+4}
        v_sub_f32 v{F1}, v{vMx}, v{X+6}
        v_exp_f32 v{F0}, v{F0}
        v_exp_f32 v{F1}, v{F1}
        v_mul_f32 v{vMx}, v{F0}, v{X+5}
        v_fmac_f32 v{vMx}, v{F1}, v{X+7}
        """)
        allreduce(vMx, vT0, "v_add_f32")
        e(f"""
        v_cmp_u_f32 vcc, v{vMx}, v{vMx}
        s_cbranch_vccz L_ml_ok
        {"" if sel else "s_waitcnt vmcnt(0)"}
        {SPIN("L_ml")}
        L_ml_ok:
        v_rcp_f32 v{vMx}, v{vMx}
        v_mul_f32 v{F0}, v{F0}, v{vMx}
        v_mul_f32 v{F1}, v{F1}, v{vMx}
        """)
    if not pw:
        stamp(8)
    if pw:
        pass
    elif sel:
        e(f"""
        s_cbranch_execz L_t3e
        s_or_b64 {sp(M0)}, {sp(M0)}, {sp(M1)}
        s_cbranch_scc0 L_t3e
        L_h1:
        s_waitcnt vmcnt(0)
        """)
        o_repoll(1)
        e(f"""
        {SPIN("L_h1")}
        s_waitcnt vmcnt(0)
        L_or1c:
        s_mov_b64 exec, -1
        L_t3e:
        """)
    else:
        e(f"""
        s_cbranch_execz L_t3e
        s_cmp_eq_u64 {sp(sP0+2)}, 0
        s_cbranch_scc1 L_t3e
        L_h1:
        s_waitcnt vmcnt(0)
        {o_check}
        s_cbranch_vccz L_t3e
        {o_loads}
        {SPIN("L_h1")}
        s_waitcnt vmcnt(0)
        L_t3e:
        """)
    stamp(9)
    if vc3:
        assert pw
        e(f"""
        v_pk_fma_f32 {vr(X,2)}, {vr(X+2,2)}, {vr(X+6,2)}, {vr(X,2)}
        v_add_f32 v{X}, v{X}, v{X+1}
        v_add_f32_dpp v{X}, v{X}, v{X} row_ror:8 row_mask:0xf bank_mask:0xf
        v_cvt_pk_bf16_f32 v{PB}, v{X}, v{X}
        """)
        stamp(12)
        AB = [vA, vA + 4, vS, vS + 4] if vc3 == 2 else [vA, vA + 4]
        def bands(i):
            for d in range(4):
                e(f"v_and_b32_dpp v{AB[i % len(AB)]+d}, v{PB}, v{vM+d} row_newbcast:{i} row_mask:0xf bank_mask:0xf")
        bands(0)
        for i in range(8):
            if i < 7:
                bands(i + 1)
            b = RING + 16 * wo_slots[i >> 2] + 4 * (i & 3)
            e(f"v_mfma_f32_16x16x32_bf16 {vr(E,4)}, {vr(AB[i % len(AB)],4)}, {vr(b,4)}, {'0' if i == 0 else vr(E,4)}")
    else:
        e(f"""
        v_mfma_f32_16x16x4_f32 {vr(D0,4)}, v{X}, v{F0}, 0
        v_mfma_f32_16x16x4_f32 {vr(D1,4)}, v{X+1}, v{F0}, 0
        v_mfma_f32_16x16x4_f32 {vr(D0,4)}, v{X+2}, v{F1}, {vr(D0,4)}
        v_mfma_f32_16x16x4_f32 {vr(D1,4)}, v{X+3}, v{F1}, {vr(D1,4)}
        """)
        for r in range(4):
            e(f"v_cvt_pk_bf16_f32 v{PB+2*r}, v{D0+r}, v{D0+r}")
        for r in range(4):
            e(f"v_cvt_pk_bf16_f32 v{PB+2*r+1}, v{D1+r}, v{D1+r}")
        if pw:
            stamp(12)
        diag_mfma(E, [PB + r for r in range(8)], [RING + 16 * wo_slots[r >> 2] + 4 * (r & 3) for r in range(8)], True)
    e(f"""
    s_cbranch_execz L_t4b
    s_mov_b64 exec, {sp(sP0)}
    buffer_store_dwordx4 {vr(E,4)}, v{vPc}, {srd(WS_)}, s{sB} offen sc1
    """)
    if pw:
        stamp(13)
    if t4m in (1, 2):
        e("s_waitcnt vmcnt(0)")
    if t4bar:
        e("s_barrier")
    stamp(11)
    e(FIN)
    if not asplit:
        e(f"""
        L_c3a:
        v_mov_b32 v{vPd}, 0
        s_waitcnt lgkmcnt(0)
        s_barrier
        """)
    padspot("c3")
    e("L_c3:")
    stamp(5)
    e(f"""
    v_lshrrev_b32 v{vT0}, 5, v{vL}
    v_lshlrev_b32 v{vPb}, 6, v{vT0}
    """)
    if xl:
        e(f"""
        s_mov_b64 exec, 0xff
        v_cmp_ne_u32 {sp(sP0)}, s{sXc}, v{vH+28}
        s_mov_b64 exec, -1
        """)

    def hstore(txt, k):
        if not xl:
            e(txt + " sc1")
            return
        e(f"""
        s_cmp_eq_u64 {sp(sP0)}, 0
        s_cbranch_scc1 L_hs{k}a
        {txt} sc1
        s_branch L_hs{k}b
        L_hs{k}a:
        {txt}
        L_hs{k}b:
        """)
    for i in range(4):
        e(f"ds_read_b128 {vr(Z+4*i,4)}, v{vPb} offset:{LDS_ML+16*i}")
    e(f"""
    v_bfe_u32 v{vT1}, v{vL}, 2, 2
    v_lshl_or_b32 v{vT1}, v{vT0}, 2, v{vT1}
    v_lshlrev_b32 v{vPc}, 11, v{vT1}
    {f"v_cmp_eq_u32 {sp(sP0+2)}, s{sS}, v{vT1}" if pw else ""}
    v_and_b32 v{vT1}, 3, v{vL}
    v_lshl_or_b32 v{vPa}, v{vT1}, {4 if lay else 5}, v{vPc}
    {f"v_lshlrev_b32 v{vPc}, 4, v{vT1}" if lay else ""}
    {f"v_lshl_or_b32 v{vPc}, v{vT0}, 6, v{vPc}" if lay else ""}
    v_and_b32 v{vT1}, 16, v{vL}
    {f"v_lshl_or_b32 v{vPa}, v{vT1}, 2, v{vPa}" if lay else f"v_or_b32 v{vPa}, v{vPa}, v{vT1}"}
    {f"s_lshl_b32 s{sMl}, s{sLid}, 7" if lay else ""}
    {f"s_add_u32 s{sMl}, s{sMl}, {WS_ML}" if lay else ""}
    s_and_b32 s{sA}, s{sLid}, 0xf8
    s_lshl_b32 s{sA}, s{sA}, 11
    s_add_u32 s{sA}, s{sA}, {WS_H1}
    s_lshl_b32 s{sT0}, s{sS}, 3
    s_add_u32 s{sB}, s{sA}, s{sT0}
    s_lshl_b32 s{sT0}, s{sS}, 7
    s_add_u32 s{sA}, s{sA}, s{sT0}
    s_waitcnt lgkmcnt(0)
    v_min3_f32 v{vT2}, v{Z}, v{Z+2}, v{Z+4}
    v_min3_f32 v{vT0}, v{Z+6}, v{Z+8}, v{Z+10}
    v_min3_f32 v{vT2}, v{vT2}, v{Z+12}, v{Z+14}
    v_min_f32 v{vT2}, v{vT2}, v{vT0}
    """)
    for w in range(8):
        e(f"v_sub_f32 v{Z+2*w}, v{vT2}, v{Z+2*w}")
    for w in range(8):
        e(f"v_exp_f32 v{Z+2*w}, v{Z+2*w}")
    e(f"v_mul_f32 v{vT2+1}, v{Z}, v{Z+1}")
    for w in range(1, 8):
        e(f"v_fmac_f32 v{vT2+1}, v{Z+2*w}, v{Z+2*w+1}")
    if lay:
        e(f"""
        v_mov_b32 v{vS}, v{vT2}
        v_mov_b32 v{vS+1}, v{vT2+1}
        v_mov_b32 v{vS+2}, v{vT2}
        v_mov_b32 v{vS+3}, v{vT2+1}
        s_mov_b32 exec_lo, 15
        s_mov_b32 exec_hi, 15
        """)
        hstore(f"buffer_store_dwordx4 {vr(vS,4)}, v{vPc}, {srd(WS_)}, s{sMl} offen", 0)
        if pw and pwo:
            e(f"ds_write_b128 v{vPc}, {vr(vS,4)} offset:{LDS_OML}")
        e("s_mov_b64 exec, -1")
        if pw:
            e(f"""
            s_lshl_b32 s{sT0}, s{sS}, 7
            v_and_b32 v{vH+26}, 0x7f, v{vPa}
            v_or_b32 v{vH+26}, s{sT0}, v{vH+26}
            """)
    else:
        e(f"""
        s_mov_b32 exec_lo, 0x1111
        s_mov_b32 exec_hi, 0x1111
        buffer_store_dwordx2 {vr(vT2,2)}, v{vPc}, {srd(WS_)}, s{sB} offen offset:1024 sc1
        s_mov_b64 exec, -1
        """)
    if not asplit:
        finish(vm.copy())
    Y = [RING + 16 * fs[-1 - (w >> 2)] + 4 * (w & 3) for w in range(8)]
    e(f"""
    s_waitcnt lgkmcnt(0)
    s_barrier
    """)
    stamp(7)
    if wqnotail:
        e('s_cmp_eq_u32 s2, s2\ns_cbranch_scc1 L_fin')
    e("L_t2b:")
    for w in range(8):
        e(f"ds_read_b128 {vr(Y[w],4)}, v{vLin} offset:{LDS_RED+1024*w}")
    for w in range(8):
        if w in (0, 2, 4, 6):
            e(f"s_waitcnt lgkmcnt({6-w})")
        for h in (0, 2):
            if w == 0:
                e(f"v_pk_mul_f32 {vr(vD+h,2)}, {vr(Y[0]+h,2)}, {vr(Z,2)} op_sel_hi:[1,0]")
            else:
                e(f"v_pk_fma_f32 {vr(vD+h,2)}, {vr(Y[w]+h,2)}, {vr(Z+2*w,2)}, {vr(vD+h,2)} op_sel_hi:[1,0,1]")
    if not t3:
        e("s_cbranch_execz L_t3b")
    hstore(f"buffer_store_dwordx4 {vr(vD,4)}, v{vPa}, {srd(WS_)}, s{sA} offen", 1)
    if pw:
        stamp(11)
        e(f"""
        s_mov_b64 exec, {sp(sP0+2)}
        ds_write_b128 v{vH+26}, {vr(vD,4)} offset:{LDS_O}
        s_waitcnt lgkmcnt(0)
        s_barrier
        {"s_barrier" if prof else ""}
        """)
    elif b2:
        e("s_barrier")
    if not pw:
        stamp(11)
    e(FIN)
    R = RING + 16 * fs[-1]
    padspot("B67")
    e(f"""
    L_B67:
    s_waitcnt lgkmcnt(0)
    s_barrier
    """)
    stamp(5)
    e(f"""
    v_lshrrev_b32 v{vT0}, 4, v{vL}
    v_and_b32 v{vT1}, 1, v{vL}
    v_lshlrev_b32 v{vT0}, 1, v{vT0}
    v_lshl_or_b32 v{vPd}, v{vT1}, 3, v{vT0}
    s_lshl_b32 s{sP0+2}, s{sLid}, 12
    s_add_u32 s{sP0+2}, s{sP0+2}, {WS_I2}
    s_lshr_b32 s{sP0+3}, s{sLid}, 7
    s_mul_i32 s{sP0+3}, s{sP0+3}, 1152
    s_lshl_b32 s{sT0}, s{sIdx}, 4
    s_add_u32 s{sP0+3}, s{sP0+3}, s{sT0}
    v_add_u32 v{vPd}, s{sP0+3}, v{vPd}
    s_and_b32 s{sEp}, s{sLid}, 0x80
    s_add_u32 s{sEp}, s{sEp}, {WS_EP}
    s_load_dword s{sTag}, {sp(WS_)}, s{sEp}
    v_mov_b32 v{vPc}, s{sEp}
    """)
    if lay:
        e(f"""
        v_lshrrev_b32 v{vT0}, 1, v{vL}
        v_mul_u32_u24 v{vPa}, 2304, v{vT0}
        v_lshl_or_b32 v{vPa}, v{vT1}, 6, v{vPa}
        s_and_b32 s{sT0}, s{sLid}, 0x80
        s_mul_i32 s{sT0}, s{sT0}, 2304
        s_add_u32 s{sT0}, s{sT0}, {WS_I2}
        s_and_b32 s{sT1}, s{sIdx}, 3
        s_lshl_b32 s{sT1}, s{sT1}, 4
        s_add_u32 s{sT0}, s{sT0}, s{sT1}
        s_lshr_b32 s{sT1}, s{sIdx}, 2
        s_lshl_b32 s{sT1}, s{sT1}, 7
        s_add_u32 s{sP0+2}, s{sT0}, s{sT1}
        s_add_u32 s{sP0+3}, s{sP0+2}, {73728}
        s_add_u32 s{sP0+4}, s{sP0+2}, {2*73728}
        s_add_u32 s{sP0+5}, s{sP0+2}, {3*73728}
        """)
    if lay == 2:
        e(f"""
        v_mul_u32_u24 v{vPa}, 2304, v{vT0}
        v_lshl_or_b32 v{vPa}, v{vT1}, 4, v{vPa}
        s_and_b32 s{sT0}, s{sLid}, 0x80
        s_mul_i32 s{sT0}, s{sT0}, 2304
        s_add_u32 s{sT0}, s{sT0}, {WS_I2}
        s_lshl_b32 s{sT1}, s{sIdx}, 5
        s_add_u32 s{sP0+2}, s{sT0}, s{sT1}
        s_add_u32 s{sP0+3}, s{sP0+2}, {73728}
        s_add_u32 s{sP0+4}, s{sP0+2}, {2*73728}
        s_add_u32 s{sP0+5}, s{sP0+2}, {3*73728}
        v_lshrrev_b32 v{vT0}, 4, v{vL}
        v_lshlrev_b32 v{vT0}, 1, v{vT0}
        v_lshl_or_b32 v{vPd}, v{vT1}, 4, v{vT0}
        s_lshr_b32 s{sT0}, s{sLid}, 7
        s_mul_i32 s{sT0}, s{sT0}, 1152
        s_and_b32 s{sT1}, s{sIdx}, 0x78
        s_lshl_b32 s{sT1}, s{sT1}, 4
        s_add_u32 s{sT0}, s{sT0}, s{sT1}
        s_and_b32 s{sT1}, s{sIdx}, 3
        s_lshl_b32 s{sT1}, s{sT1}, 5
        s_add_u32 s{sT0}, s{sT0}, s{sT1}
        s_and_b32 s{sT1}, s{sIdx}, 4
        s_lshl_b32 s{sT1}, s{sT1}, 1
        s_add_u32 s{sT0}, s{sT0}, s{sT1}
        v_add_u32 v{vPd}, s{sT0}, v{vPd}
        """)

    def t4_load(i):
        if lay:
            return f"buffer_load_dwordx4 {vr(R+4*i,4)}, v{vPa}, {srd(WS_)}, s{sP0+2+i} offen sc1"
        return f"buffer_load_dwordx4 {vr(R+4*i,4)}, v{vLin}, {srd(WS_)}, s{sP0+2} offen offset:{1024*i} sc1"
    if pw:
        PM = sF
        e(f"""
        s_lshl_b32 s{sT0}, s{sS}, 3
        s_lshl_b64 {sp(PM)}, 0xff, s{sT0}
        s_not_b64 {sp(PM)}, {sp(PM)}
        v_and_b32 v{vT0}, 7, v{vL}
        v_lshlrev_b32 v{vPb}, 7, v{vT0}
        v_lshlrev_b32 v{vH+26}, 2, v{vT0}
        s_and_b32 s{sT0}, s{sLid}, 4
        s_lshl_b32 s{sT0}, s{sT0}, 4
        v_mov_b32 v{vH+27}, s{sT0}
        v_cmp_ne_u32 {sp(sF+2)}, s{sS}, v{vT0}
        """)
    v67 = vm.copy()
    if pw and pwe:
        assert pwo
        e(f"""
        s_cmp_eq_u32 s{sW}, 6
        s_cbranch_scc1 L_e6
        s_mov_b64 exec, {sp(PM)}
        buffer_load_dwordx4 {vr(vH+12,4)}, v{vLin}, {srd(WS_)}, s{sA} offen sc1
        s_branch L_e7
        L_e6:
        s_mov_b64 exec, {sp(sF+2)}
        buffer_load_dwordx2 {vr(vH+8,2)}, v{vPb}, {srd(WS_)}, s{sMl} offen sc1
        L_e7:
        s_mov_b64 exec, -1
        """)
        v67.add("poll")
    finish(v67)
    e(f"""
    s_waitcnt lgkmcnt(0)
    s_barrier
    """)
    stamp(7)
    if wqnotail:
        e('s_cmp_eq_u32 s2, s2\ns_cbranch_scc1 L_fin')
    if pw:
        PR = [(vH + 12 if (pwe and k == 0) else R + 4 * k) for k in range(pw)]
        pl = lambda k: f"buffer_load_dwordx4 {vr(PR[k],4)}, v{vLin}, {srd(WS_)}, s{sA} offen sc1"
        e(f"""
        s_cmp_eq_u32 s{sW}, 6
        s_cbranch_scc1 L_w6
        s_mov_b64 exec, {sp(PM)}
        """)
        for k in range(1 if pwe else 0, pw):
            e(pl(k))
        e("L_pw:")
        for k in range(pw):
            e(f"""
            s_waitcnt vmcnt({pw-1})
            v_max3_u32 v{vT0}, v{PR[k]}, v{PR[k]+1}, v{PR[k]+2}
            v_max_u32 v{vT0}, v{vT0}, v{PR[k]+3}
            v_cmp_ne_u32 vcc, -1, v{vT0}
            s_cbranch_vccz L_pw{k}
            s_mov_b64 exec, vcc
            ds_write_b128 v{vLin}, {vr(PR[k],4)} offset:{LDS_O}
            s_andn2_b64 {sp(PM)}, {sp(PM)}, vcc
            s_cbranch_scc0 L_pwd
            s_mov_b64 exec, {sp(PM)}
            L_pw{k}:
            {pl(k)}
            """)
        e(f"""
        {SPIN("L_pw")}
        L_pwd:
        s_waitcnt lgkmcnt(0)
        """)
        stamp(9)
        e(f"""
        s_barrier
        {"s_barrier" if prof else ""}
        s_waitcnt vmcnt(0)
        {FIN}
        """)
        padspot("w6")
        e("L_w6:")
        XM = vH + 8
        if pwo:
            e(f"""
            s_not_b64 exec, {sp(sF+2)}
            ds_read_b64 {vr(XM,2)}, v{vH+27} offset:{LDS_OML}
            s_mov_b64 exec, {sp(sF+2)}
            {"s_branch L_ml6w" if pwe else ""}
            L_ml6:
            """)
        else:
            e("L_ml6:")
        e(f"""
        buffer_load_dwordx2 {vr(XM,2)}, v{vPb}, {srd(WS_)}, s{sMl} offen sc1
        L_ml6w:
        s_waitcnt vmcnt(0)
        v_max_u32 v{vT0}, v{XM}, v{XM+1}
        v_cmp_eq_u32 vcc, -1, v{vT0}
        s_cbranch_vccz L_ml6ok
        {SPIN("L_ml6")}
        L_ml6ok:
        s_mov_b64 exec, -1
        {"s_waitcnt lgkmcnt(0)" if pwo else ""}
        v_min_f32_dpp v{vT0}, v{XM}, v{XM} row_ror:4 row_mask:0xf bank_mask:0xf
        v_min_f32_dpp v{vT0}, v{vT0}, v{vT0} row_ror:2 row_mask:0xf bank_mask:0xf
        v_min_f32_dpp v{vT0}, v{vT0}, v{vT0} row_ror:1 row_mask:0xf bank_mask:0xf
        v_sub_f32 v{vT0}, v{vT0}, v{XM}
        v_exp_f32 v{XM}, v{vT0}
        v_mul_f32 v{XM+1}, v{XM}, v{XM+1}
        v_add_f32_dpp v{vT0}, v{XM+1}, v{XM+1} row_ror:4 row_mask:0xf bank_mask:0xf
        v_add_f32_dpp v{vT0}, v{vT0}, v{vT0} row_ror:2 row_mask:0xf bank_mask:0xf
        v_add_f32_dpp v{vT0}, v{vT0}, v{vT0} row_ror:1 row_mask:0xf bank_mask:0xf
        v_rcp_f32 v{vT0}, v{vT0}
        s_mov_b64 exec, 0xff
        v_mul_f32 v{XM}, v{XM}, v{vT0}
        ds_write_b32 v{vH+26}, v{XM} offset:{LDS_F}
        s_waitcnt lgkmcnt(0)
        s_mov_b64 exec, -1
        """)
        stamp(8)
        e("s_barrier")
    e(f"""
    {"s_barrier" if b2 and not pw else ""}
    {"s_barrier" if pw and prof and t4m < 2 else ""}
    {"" if t4d else f"s_cmp_lg_u32 s{sW}, 6"}
    {"" if t4d else "s_cbranch_scc1 L_fin"}
    s_cmp_ge_u32 s{sIdx}, 72
    s_cbranch_scc1 L_fin
    {"s_barrier" if t4bar and not (pw and prof) and t4m < 2 else ""}
    L_t4b:
    s_cbranch_execz L_t4c
    {"" if sel else "L_h2:"}
    """)
    for i in range(4):
        e(t4_load(i))
    if t4m >= 2:
        assert pw
        e("s_barrier")
    if sel:
        MM = [sF + 2 * i for i in range(4)]
        if p4:
            e("s_waitcnt vmcnt(0)")
        e("L_h2:")
        if not p4:
            e("s_waitcnt vmcnt(0)")
        for i in range(4):
            e(f"v_max3_u32 v{vA+i}, v{R+4*i}, v{R+4*i+1}, v{R+4*i+2}")
        for i in range(4):
            e(f"v_max_u32 v{vA+i}, v{vA+i}, v{R+4*i+3}")
        for i in range(4):
            e(f"v_cmp_eq_u32 {sp(MM[i])}, -1, v{vA+i}")
        e(f"""
        s_or_b64 vcc, {sp(MM[0])}, {sp(MM[1])}
        s_or_b64 exec, {sp(MM[2])}, {sp(MM[3])}
        s_or_b64 exec, exec, vcc
        s_cbranch_scc0 L_h2_got
        """)
        for i in range(4):
            e(f"""
            s_mov_b64 exec, {sp(MM[i])}
            s_cbranch_execz L_h2_{i}
            {t4_load(i)}
            L_h2_{i}:
            """)
        e(f"""
        s_mov_b64 exec, -1
        {f"s_waitcnt vmcnt({p4})" if p4 else ""}
        {SPIN("L_h2")}
        s_waitcnt vmcnt(0)
        L_h2_got:
        s_mov_b64 exec, -1
        """)
    else:
        e("s_waitcnt vmcnt(0)")
    e("L_t4c:")
    if p4:
        R0, R = R, vS
        for h in (0, 2):
            e(f"v_pk_add_f32 {vr(R+h,2)}, {vr(R0+h,2)}, {vr(R0+4+h,2)}")
        for h in (0, 2):
            e(f"v_pk_add_f32 {vr(R+4+h,2)}, {vr(R0+8+h,2)}, {vr(R0+12+h,2)}")
        for h in (0, 2):
            e(f"v_pk_add_f32 {vr(R+h,2)}, {vr(R+h,2)}, {vr(R+4+h,2)}")
    else:
        pk_sum(R, 4)
    e(f"""
    v_permlane32_swap_b32 v{R}, v{R+2}
    v_permlane32_swap_b32 v{R+1}, v{R+3}
    v_add_f32 v{R}, v{R}, v{R+2}
    v_add_f32 v{R+1}, v{R+1}, v{R+3}
    v_permlane16_swap_b32 v{R}, v{R+1}
    v_add_f32 v{R}, v{R}, v{R+1}
    v_add_f32_dpp v{R}, v{R}, v{R} row_ror:2 row_mask:0xf bank_mask:0xf
    v_add_f32_dpp v{R}, v{R}, v{R} row_ror:4 row_mask:0xf bank_mask:0xf
    v_add_f32_dpp v{R}, v{R}, v{R} row_ror:8 row_mask:0xf bank_mask:0xf
    """)
    if not sel:
        e(f"""
        v_cmp_u_f32 vcc, v{R}, v{R}
        s_cbranch_vccz L_h2_ok
        {SPIN("L_h2")}
        L_h2_ok:
        """)
    e(f"""
    v_cvt_pk_bf16_f32 v{R}, v{R}, v{R}
    """)
    stamp(9)
    if dry:
        e("s_cbranch_execz L_dry_ret")
    e(f"""
    s_mov_b32 exec_lo, 0x30003
    s_mov_b32 exec_hi, 0x30003
    global_store_short v{vPd}, v{R}, {sp(OUT_)}{" " + osc.replace("_", " ") if osc else ""}
    {"s_waitcnt vmcnt(1)" if p4 else ""}
    s_cmp_lg_u32 s{sIdx}, 0
    s_cbranch_scc1 L_fin
    s_add_u32 s{sTag}, s{sTag}, {EPC}
    v_mov_b32 v{R+1}, s{sTag}
    s_mov_b64 exec, 1
    global_store_dword v{vPc}, v{R+1}, {sp(WS_)}{" " + osc.replace("_", " ") if osc else ""}
    L_fin:
    """)
    if prof:
        e("s_waitcnt vmcnt(0)")
        stamp(10)
        e(f"""
        s_waitcnt lgkmcnt(0)
        s_mov_b64 exec, 1
        s_lshl_b32 s{sT0}, s{sLid}, 3
        s_add_u32 s{sT0}, s{sT0}, s{sW}
        s_lshl_b32 s{sT0}, s{sT0}, 6
        s_add_u32 s{sT0}, s{sT0}, {WS_PROF}
        v_mov_b32 v0, 0
        """)
        if pmode == 5:
            stamp(16, 5)
            e(f"s_lshl_b32 s{sT0}, s{sLid}, 3")
            e(f"s_add_u32 s{sT0}, s{sT0}, s{sW}")
            e(f"s_lshl_b32 s{sT0}, s{sT0}, 7")
            e(f"s_add_u32 s{sT0}, s{sT0}, {WS_PROF}")
            for k in range(16):
                e(f"v_mov_b32 v{8+k}, s{sProf+k}")
            for k in range(6):
                e(f"v_mov_b32 v{24+k}, s{sProf+16+2*k}")
            e(f"s_getreg_b32 s{sT1}, hwreg(HW_REG_XCC_ID)")
            e(f"v_mov_b32 v30, s{sT1}")
            e(f"s_getreg_b32 s{sT1}, hwreg(HW_REG_HW_ID)")
            e(f"v_mov_b32 v31, s{sT1}")
            for k in range(6):
                e(f"buffer_store_dwordx4 v[{8+4*k}:{11+4*k}], v0, {srd(WS_)}, s{sT0} offen offset:{16*k}")
        else:
          for k in range(14):
            e(f"v_mov_b32 v{8+k}, s{sProf+2*k}")
          e(f"s_getreg_b32 s{sT1}, hwreg(HW_REG_XCC_ID)")
          e(f"v_mov_b32 v22, s{sT1}")
          e(f"v_mov_b32 v23, s{sSpin}")
          for k in range(4):
            e(f"buffer_store_dwordx4 v[{8+4*k}:{11+4*k}], v0, {srd(WS_)}, s{sT0} offen offset:{16*k}")
    if pad:
        e(f"""
        s_waitcnt vmcnt(0) lgkmcnt(0)
        L_pad:
        s_memrealtime {sp(sProf+2)}
        s_waitcnt lgkmcnt(0)
        s_sub_u32 s{sT0}, s{sProf+2}, s{sProf}
        s_cmp_lt_u32 s{sT0}, {pad}
        s_cbranch_scc1 L_pad
        """)
    e("L_end:")
    e("s_endpgm")
    nsg = (sProf + 32 if pmode == 5 else sProf + 28) if (prof or pad) else sProf
    e.raw(f""".section .rodata,"a"
.p2align 6
.amdhsa_kernel {KNAME}
  .amdhsa_next_free_vgpr 256
  .amdhsa_next_free_sgpr {nsg}
  .amdhsa_accum_offset 256
  .amdhsa_group_segment_fixed_size 0
  .amdhsa_kernarg_size 104
  .amdhsa_user_sgpr_count 2
  .amdhsa_user_sgpr_kernarg_segment_ptr 1
  .amdhsa_system_sgpr_workgroup_id_x 1
.end_amdhsa_kernel""")
    return e.text()


if __name__ == "__main__":
    kw = {}
    for a in sys.argv[2:]:
        k, v = a.split("=")
        try:
            v = int(v, 0)
        except ValueError:
            pass
        kw[k] = v
    open(sys.argv[1], "w").write(gen(**kw))
```

```python
import sys
from emit import Emitter

KNAME = "concat_heads__gqa_block_cached__gqa_block_cached__decode_kernel"
HEADER = open("header.txt").read()

WS_QP, WS_EP, WS_FL, WS_H1, WS_I2, WS_PROF = 0x0, 0x10000, 0x20000, 0x40000, 0x100000, 0x200000
WS_ML = 0x30000
WS_QP2 = 0x1A0000
EPC = 0x9e3779b9
LDS_Q, LDS_PART, LDS_ML, LDS_CNT, LDS_RED, LDS_SIZE = 0, 512, 1280, 1408, 2048, 10240
LDS_F, LDS_OML, LDS_O = 1472, 1536, 10240

vL, vLin, vK, vX = 0, 1, 2, 3
vZ = 54
vM = 4
vQ = 8
vS = 24
vA = 40
vD = 48
vMx, vAl, vAD, vT0 = 52, 53, 54, 55
vLs = 56
vN0, vT1 = 58, 59
vN1, vLt = 60, 61
vT2 = 62
RING = 64
NSLOT = 10
vH = 224
sKa, sKvh, sS, sIdx, sLid, sW, sT0, sT1 = 3, 5, 6, 7, 8, 9, 10, 11
K_, V_, WQ_, WO_, WS_ = 12, 16, 20, 24, 28
OUT_, DBG_, sX = 32, 34, 36
sF = 60
sTag, sEp, sFo = 38, 58, 59
sC, sStep, sK, sV, sWq, sWo, sWo2, sSpin = 40, 41, 42, 43, 44, 45, 46, 47
sA, sB, sWm = 48, 4, 49
sP0 = 50
sMl = 69
sXc = 62
sProf = 70


def srd(b):
    return f"s[{b}:{b+3}]"


def sp(b):
    return f"s[{b}:{b+1}]"


def vr(b, n):
    return f"v[{b}:{b+n-1}]"


class VM:
    def __init__(self, e):
        self.e = e
        self.ops = []
        self.done = 0

    def add(self, tag):
        self.ops.append(tag)

    def wait_n(self, n):
        n = max(n, 0)
        if len(self.ops) - self.done > n:
            assert n <= 63
            self.e(f"s_waitcnt vmcnt({n})")
            self.done = len(self.ops) - n

    def wait_tag(self, tag):
        last = max(i for i, t in enumerate(self.ops) if t == tag)
        self.wait_n(len(self.ops) - 1 - last)

    def copy(self):
        v = VM(self.e)
        v.ops = list(self.ops)
        v.done = self.done
        return v


def gen(npre=6, upre=12, umain=12, uctl=8, la=4, ratio=2, jctl=1, jpoll=6, pr="10,14,16", woat=16, wosplit=0, wqnoqw=0, wqnocomp=0, wqnotail=0, wqnoclr=0, wqcol=0, ntw="nt", wp=2, xq=1, qf="nt", wqg=8, wqs=0, uwo=12, wopos=2, prend=3, pre7=0, kq=0, cup=0, wqk=0, fp=1, b2=0, hop="c3,B67,w6", rep=0, wqt4=0, nb1=1, fine="7", rs=1, wo2=8, wo3=0, hopat=0, early_s="WS", qs="", clr=1, t4bar=1, lay=1, xl=1, idmap=0, t3=1, early=0, p4=0, p3=0, t4x=0, t4d=0, t4m=1, vc3=1, pw=2, pwe=0, pwo=1, hs1="", pfo=0, pfq=0, pfk=0, pfc="sc1", pfw=7, pfm=0, osc="", t3c=0, uq=0, pf1=9, pf2=11, nt="nt", ntq="nt", lead=1, prof=False,
        spin=1 << 16, prio=True, pad=0, dry=False, pmode=1, asplit=True, qprio=0, cprio2=-1, rot=0, noflag=0, sx=0, wqp=-1, sel=1, cx=0, wqoff=0, wqsrc=24, wqstr=13, seg=64):
    e = Emitter()
    NT = (" " + nt) if nt else ""
    NTQ = (" " + ntq) if ntq else ""
    NTW = (" " + ntw) if ntw else ""
    if lead == 1:
        seq = ["K0", "K1"] + [x for n in range(6) for x in (f"V{n}", f"K{n+2}")] + ["V6", "V7"]
    elif lead == 2:
        seq = ["K0", "K1", "K2"] + [x for n in range(5) for x in (f"V{n}", f"K{n+3}")] + ["V5", "V6", "V7"]
    assert len(seq) == 16 and len(set(seq)) == 16
    free = list(range(NSLOT - 2 if woat >= 0 else NSLOT))
    slot = {}
    steps = [int(x) for x in str(pr).split(",") if x != ""]
    p0 = len(steps)
    assert p0 <= 3

    P5 = {0: 0, 1: 1, 3: 2, 5: 3, 7: 4, 10: 5}

    def stamp(k, kind=1):
        if prof and pmode == 5:
            if kind == 1 and k in P5:
                e(f"s_memrealtime {sp(sProf+16+2*P5[k])}")
            if kind == 5:
                if k > 0:
                    e("s_waitcnt lgkmcnt(0)")
                    e(f"s_mov_b32 s{sProf+k-1}, s{sProf+28+2*((k-1)&1)}")
                if k < 16:
                    e(f"s_memrealtime {sp(sProf+28+2*(k&1))}")
        elif prof and ((k == 0 and kind == 1) or (kind == pmode and kind != 5)):
            e(f"s_memrealtime {sp(sProf+2*k)}")

    FIN = "s_branch L_fin" if (prof or pad) else "s_endpgm"

    def issue_load(t, i):
        r = RING + 16 * slot[t] + 4 * i
        if t[0] == "K":
            e(f"buffer_load_dwordx4 {vr(r,4)}, v{vK}, {srd(K_)}, s{sK} offen offset:{64*i}{NT}")
        else:
            e(f"buffer_load_dwordx4 {vr(r,4)}, v{vLin}, {srd(V_)}, s{sV} offen offset:{1024*i}{NT}")

    def issue_end(t):
        if t[1] != "7":
            s = sK if t[0] == "K" else sV
            e(f"s_add_u32 s{s}, s{s}, s{sStep}")
        if seq.index(t) >= 3:
            stamp(seq.index(t) - 2, 2)
        if seq.index(t) <= 12:
            stamp(seq.index(t) + 1, 3)
        stamp(seq.index(t), 5)

    def issue(vm, t, u=None, ctl=False):
        if t not in slot:
            slot[t] = free.pop(0)
        if seq.index(t) in steps and not ctl:
            e(f"s_setprio {p0 - 1 - steps.index(seq.index(t))}")
        for i in range(4):
            if u is not None:
                vm.wait_n(u - 1)
            issue_load(t, i)
            vm.add(t)
        issue_end(t)

    def SPIN(lbl):
        return f"s_addk_i32 s{sSpin}, -1\ns_cmpk_gt_i32 s{sSpin}, 0\ns_cbranch_scc1 {lbl}"

    def pk_sum(base, n):
        step = 1
        while step < n:
            for i in range(0, n - step, 2 * step):
                for h in (0, 2):
                    a, b = base + 4 * i + h, base + 4 * (i + step) + h
                    e(f"v_pk_add_f32 {vr(a,2)}, {vr(a,2)}, {vr(b,2)}")
            step *= 2

    def allreduce(v, tmp, op):
        e(f"v_mov_b32 v{tmp}, v{v}")
        e(f"v_permlane16_swap_b32 v{v}, v{tmp}")
        e(f"{op} v{v}, v{v}, v{tmp}")
        e(f"v_mov_b32 v{tmp}, v{v}")
        e(f"v_permlane32_swap_b32 v{v}, v{tmp}")
        e(f"{op} v{v}, v{v}, v{tmp}")

    vRed, vMLw, vWo, vPa, vPb, vPc, vPd = vH, vH + 1, vH + 2, vH + 3, vH + 4, vH + 5, vH + 6
    vXr = vH + 24
    vPoll = vH + 24
    vXs = vS
    vAcc = vA

    wo_addr = f"""
    s_movk_i32 s{sT1}, 0x2400
    v_lshrrev_b32 v{vT1}, 4, v{vL}
    v_and_b32 v{vWo}, 0xff, v{vLin}
    v_mad_u32_u24 v{vWo}, v{vT1}, s{sT1}, v{vWo}
    s_lshl_b32 s{sT0}, s{sWm}, 4
    v_and_b32 v{vT1}, 15, v{vL}
    v_add_u32 v{vT1}, s{sT0}, v{vT1}
    v_cmp_gt_u32 vcc, 72, v{vT1}
    v_mov_b32 v{vT1}, 0x40000000
    s_mul_i32 s{sWo}, s{sIdx}, 0x9000
    s_lshl_b32 s{sT0}, s{sWm}, 8
    s_add_u32 s{sWo}, s{sWo}, s{sT0}
    v_cndmask_b32 v{vWo}, v{vT1}, v{vWo}, vcc
    s_add_u32 s{sWo2}, s{sWo}, 4608
    """
    if wqcol:
        wo_addr = f"""
        s_movk_i32 s{sT1}, 0x2400
        v_lshrrev_b32 v{vT1}, 4, v{vL}
        v_and_b32 v{vWo}, 0xff, v{vLin}
        v_mad_u32_u24 v{vWo}, v{vT1}, s{sT1}, v{vWo}
        v_and_b32 v{vT1}, 15, v{vL}
        v_cmp_gt_u32 vcc, 9, v{vT1}
        v_mov_b32 v{vT1}, 0x40000000
        s_mul_i32 s{sWo}, s{sKvh}, 0x48000
        s_mul_i32 s{sT0}, s{sW}, 0x9000
        s_add_u32 s{sWo}, s{sWo}, s{sT0}
        s_mul_i32 s{sT0}, s{sS}, 144
        s_add_u32 s{sWo}, s{sWo}, s{sT0}
        v_cndmask_b32 v{vWo}, v{vT1}, v{vWo}, vcc
        s_add_u32 s{sWo2}, s{sWo}, 4608
        """
    t3_addr1 = f"""
    v_lshrrev_b32 v{vT0}, 4, v{vL}
    v_lshlrev_b32 v{vPb}, 7, v{vT0}
    v_bfe_u32 v{vT1}, v{vL}, 2, 2
    v_lshlrev_b32 v{vPc}, 7, v{vT1}
    v_lshl_or_b32 v{vPc}, v{vT0}, 6, v{vPc}
    v_lshl_or_b32 v{vPa}, v{vT1}, 4, v{vPb}
    v_and_b32 v{vT1}, 3, v{vL}
    v_lshl_or_b32 v{vPc}, v{vT1}, 4, v{vPc}
    v_and_b32 v{vT1}, 1, v{vL}
    v_lshl_or_b32 v{vPa}, v{vT1}, 3, v{vPa}
    v_and_b32 v{vT1}, 2, v{vL}
    v_lshl_or_b32 v{vPa}, v{vT1}, 5, v{vPa}
    v_mov_b32 v{vPd}, 0
    s_lshl_b32 s{sA}, s{sLid}, 11
    s_add_u32 s{sA}, s{sA}, {WS_H1}
    s_mul_i32 s{sB}, s{sLid}, 2304
    s_lshl_b32 s{sT0}, s{sWm}, 9
    s_add_u32 s{sB}, s{sB}, s{sT0}
    s_add_u32 s{sB}, s{sB}, {WS_I2}
    s_and_b32 s{sMl}, s{sLid}, 0xf8
    s_lshl_b32 s{sMl}, s{sMl}, 7
    s_and_b32 s{sT0}, s{sLid}, 4
    s_lshl_b32 s{sT0}, s{sT0}, 4
    s_add_u32 s{sMl}, s{sMl}, s{sT0}
    s_add_u32 s{sMl}, s{sMl}, {WS_ML}
    s_cmp_eq_u32 s{sWm}, 4
    s_cselect_b32 s{sP0}, 0x00ff00ff, -1
    s_mov_b32 s{sP0+1}, 0
    """
    t3_addr = f"""
    v_and_b32 v{vPa}, 15, v{vL}
    v_lshrrev_b32 v{vT0}, 4, v{vL}
    v_lshlrev_b32 v{vPb}, 3, v{vT0}
    v_lshlrev_b32 v{vPc}, 12, v{vPa}
    v_lshl_or_b32 v{vPc}, v{vT0}, 4, v{vPc}
    v_lshlrev_b32 v{vPa}, 3, v{vPa}
    v_lshl_or_b32 v{vPa}, v{vT0}, 7, v{vPa}
    v_mov_b32 v{vPd}, 0
    s_lshl_b32 s{sA}, s{sLid}, 11
    s_add_u32 s{sA}, s{sA}, {WS_H1}
    s_and_b32 s{sB}, s{sLid}, 0x80
    s_lshl_b32 s{sB}, s{sB}, 12
    s_lshl_b32 s{sT0}, s{sWm}, 16
    s_add_u32 s{sB}, s{sB}, s{sT0}
    s_lshl_b32 s{sT0}, s{sIdx}, 5
    s_add_u32 s{sB}, s{sB}, s{sT0}
    s_add_u32 s{sB}, s{sB}, {WS_I2}
    s_cmp_eq_u32 s{sWm}, 4
    s_cselect_b32 s{sP0}, 0x00ff00ff, -1
    s_mov_b32 s{sP0+1}, 0
    """

    if lay:
        t3_addr = t3_addr1
    if lay == 2:
        t3_addr += f"""
        v_lshrrev_b32 v{vT0}, 4, v{vL}
        v_and_b32 v{vT1}, 7, v{vL}
        v_lshlrev_b32 v{vPc}, 4, v{vT1}
        v_lshl_or_b32 v{vPc}, v{vT0}, 7, v{vPc}
        v_and_b32 v{vT1}, 8, v{vL}
        v_lshl_or_b32 v{vPc}, v{vT1}, 5, v{vPc}
        """

    def issue_wo(vm, u=None, r0=0, r1=8):
        if 16 in steps and r0 == 0:
            assert woat == 16 and not wosplit
            e(f"s_setprio {p0 - 1 - steps.index(16)}")
        for r in range(r0, r1):
            reg = RING + 16 * wo_slots[r >> 2] + 4 * (r & 3)
            if u is not None:
                vm.wait_n(u - 1)
            e(f"buffer_load_dwordx4 {vr(reg,4)}, v{vWo}, {srd(WO_)}, s{sWo if r < 4 else sWo2} offen offset:{1152*(r&3)}{NTW}")
            vm.add("wo")
        if (r1 == 8 or wo2) and prend >= 0:
            e(f"s_setprio {prend}")
    wo_slots = [NSLOT - 2, NSLOT - 1]

    def consts():
        e(f"""
        s_and_b32 s{sS}, s{sLid}, 7
        s_lshr_b32 s{sKvh}, s{sIdx}, 3
        s_mov_b32 s{K_+2}, 0x2000000
        s_mov_b32 s{K_+3}, 0x20000
        s_mov_b32 s{V_+2}, 0x2000000
        s_mov_b32 s{V_+3}, 0x20000
        s_mov_b32 s{sStep}, 0x8000
        v_and_b32 v{vT1}, 3, v{vT1}
        v_and_b32 v{vK}, 48, v{vL}
        v_lshl_or_b32 v{vK}, v{vT0}, 10, v{vK}
        v_lshl_or_b32 v{vK}, v{vT1}, 8, v{vK}
        """)
        if rot == 0:
            e(f"s_mov_b32 s{sT0}, s{sW}")
        elif rot == 1:
            e(f"s_add_u32 s{sT0}, s{sW}, s{sIdx}")
            e(f"s_and_b32 s{sT0}, s{sT0}, 7")
        elif rot == 2:
            e(f"s_lshr_b32 s{sT0}, s{sIdx}, 3")
            e(f"s_add_u32 s{sT0}, s{sT0}, s{sW}")
            e(f"s_and_b32 s{sT0}, s{sT0}, 7")
        elif rot == 3:
            e(f"s_lshl_b32 s{sT0}, s{sIdx}, 2")
            e(f"s_xor_b32 s{sT0}, s{sT0}, s{sW}")
            e(f"s_and_b32 s{sT0}, s{sT0}, 7")
        e(f"""
        s_lshl_b32 s{sK}, s{sIdx}, 6
        s_add_u32 s{sK}, s{sK}, s{sT0}
        s_lshl_b32 s{sK}, s{sK}, 12
        s_mov_b32 s{sV}, s{sK}
        v_and_b32 v{vT0}, 1, v{vL}
        v_lshlrev_b32 v{vT0}, 4, v{vT0}
        v_mov_b32 v{vT1}, 0xffff
        v_lshlrev_b32 v{vT0}, v{vT0}, v{vT1}
        v_bfe_u32 v{vT1}, v{vL}, 1, 2
        v_lshlrev_b32_e64 v{vT1}, v{vT1}, 1
        """)
        for d in range(4):
            e(f"v_bfe_i32 v{vM+d}, v{vT1}, {d}, 1")
        for d in range(4):
            e(f"v_and_b32 v{vM+d}, v{vM+d}, v{vT0}")
        e(f"""
        s_mov_b32 s{sC}, 0x3e0293ee
        s_mov_b32 s{sSpin}, {spin}
        s_mov_b32 s{WO_+2}, 0x480000
        s_mov_b32 s{WO_+3}, 0x20000
        v_mov_b32 v{vZ}, 0
        """)
    e.raw(HEADER.rstrip())
    e.raw(f"; @launch grid=(256,1,1) block=(512,1,1) lds={LDS_SIZE + (1024 if pw else 0)}")
    e.raw('.amdgcn_target "amdgcn-amd-amdhsa--gfx950"')
    e.raw(".text")
    e.raw(f".globl {KNAME}")
    e.raw(".p2align 8")
    e.raw(f".type {KNAME},@function")
    e.raw(f"{KNAME}:")
    hops = [x for x in str(hop).split(",") if x]

    def padspot(name, live=False):
        if name not in hops:
            return
        if live:
            e(f"s_branch P_{name}_skip")
        e(f"P_{name}:\ns_branch L_hopret")
        if live:
            e(f"P_{name}_skip:")

    if fp:
        assert wp == 2 and not (pre7 or kq or cup or pad or sx or wqp >= 0) and clr == 1
        stamp(0)
        late = {"WS": f"s_load_dwordx2 {sp(WS_)}, s[0:1], 96",
                "K": f"s_load_dwordx2 {sp(K_)}, s[0:1], s{sKa} offset:8",
                "V": f"s_load_dwordx2 {sp(V_)}, s[0:1], s{sKa} offset:16",
                "WO": f"s_load_dwordx2 {sp(WO_)}, s[0:1], s{sKa} offset:32",
                "OUT": f"s_load_dwordx2 {sp(OUT_)}, s[0:1], 80"}
        e(f"""
        s_lshr_b32 s{sT0}, s2, 8
        s_cbranch_scc1 L_end
        s_bitcmp1_b32 s2, {7 if idmap else 2}
        s_cselect_b32 s{sKa}, 40, 0
        s_load_dwordx2 {sp(WQ_)}, s[0:1], s{sKa} offset:24
        s_load_dwordx2 {sp(sX)}, s[0:1], s{sKa} offset:0
        """)
        for k in [x for x in str(early_s).split(",") if x]:
            e(late.pop(k))
        e(f"""
        v_lshrrev_b32 v{vLin}, 6, v0
        v_and_b32 v{vL}, 63, v0
        v_readfirstlane_b32 s{sW}, v{vLin}
        s_lshr_b32 s{sLid}, s2, {0 if idmap else 3}
        v_lshrrev_b32 v{vA}, 4, v{vL}
        s_sub_u32 s{sWm}, s{sW}, 1
        s_cmp_ge_u32 s{sWm}, 6
        s_cbranch_scc1 L_rest
        s_and_b32 s{sT0}, s{sLid}, 3
        s_mul_i32 s{sT0}, s{sT0}, 6
        s_add_u32 s{sT0}, s{sT0}, s{sWm}
        s_mul_i32 s{sT0}, s{sT0}, 48
        """)
        if idmap:
            e(f"s_bfe_u32 s{sT1}, s2, 0x50002")
        else:
            e(f"""
            s_and_b32 s{sT1}, s2, 3
            s_lshr_b32 s{sWq}, s2, 5
            s_lshl3_add_u32 s{sT1}, s{sT1}, s{sWq}
            """)
        e(f"""
        s_lshl_b32 s{sT1}, s{sT1}, 8
        s_lshl_b32 s{sWq}, s{sT0}, 12
        s_add_u32 s{sWq}, s{sWq}, s{sT1}
        v_and_b32 v{vX}, 15, v{vL}
        v_mul_u32_u24 v{vA}, 3, v{vA}
        v_lshlrev_b32 v{vX}, 4, v{vX}
        v_lshl_add_u32 v{vT2}, v{vA}, 2, s{sT0}
        v_lshl_or_b32 v{vX}, v{vA}, 14, v{vX}
        s_mov_b32 s{WQ_+2}, 0x480000
        s_mov_b32 s{WQ_+3}, 0x20000
        s_setprio {max(qprio, p0)}
        s_waitcnt lgkmcnt(0)
        """)
        stamp(2, 4)
        e(f"global_load_dwordx3 {vr(vXr,3)}, v{vT2}, {sp(sX)}")
        for i in range(6):
            e(f"buffer_load_dwordx4 {vr(vH+4*i,4)}, v{vX}, {srd(WQ_)}, s{sWq} offen{NTQ}")
            if i < 5:
                e(f"s_addk_i32 s{sWq}, 0x2000")
        vq = VM(e)
        vq.add("x")
        for i in range(6):
            vq.add(f"w{i}")
        slot["K0"] = free.pop(0)
        e("L_rest:")
        for k in late:
            e(late[k])
        stamp(3, 4)
        if prof and pmode not in (4, 5, 6):
            for k in range(1, 14):
                e(f"s_mov_b32 s{sProf+2*k}, 0")
        if not idmap:
            e(f"""
            s_and_b32 s{sT0}, s2, 7
            s_lshl_b32 s{sT0}, s{sT0}, 5
            s_or_b32 s{sLid}, s{sLid}, s{sT0}
            """)
        e(f"""
        s_and_b32 s{sIdx}, s{sLid}, 0x7f
        s_mov_b32 s{WS_+2}, 0x400000
        s_mov_b32 s{WS_+3}, 0x20000
        v_lshlrev_b32 v{vLin}, 4, v{vL}
        v_and_b32 v{vT0}, 3, v{vL}
        v_lshrrev_b32 v{vT1}, 2, v{vL}
        s_cmp_lg_u32 s{sW}, 0
        s_cbranch_scc1 L_t0
        """)
    else:
        stamp(0)
        if prof and pmode not in (5, 6):
            for k in range(1, 14):
                e(f"s_mov_b32 s{sProf+2*k}, 0")
        if pad:
            e(f"s_memrealtime {sp(sProf)}")
        e(f"""
        s_lshr_b32 s{sT0}, s2, 8
        s_cbranch_scc1 L_end
        s_bitcmp1_b32 s2, {7 if idmap else 2}
        s_cselect_b32 s{sKa}, 40, 0
        """)
        stamp(1, 6)
        if wqk:
            e(f"s_load_dwordx2 {sp(WQ_)}, s[0:1], s{sKa} offset:{wqsrc}")
            e("s_waitcnt lgkmcnt(0)")
            stamp(7, 6)
        e(f"""
        s_load_dwordx2 {sp(WQ_)}, s[0:1], s{sKa} offset:{wqsrc}
        s_load_dwordx2 {sp(sX)}, s[0:1], s{sKa} offset:0
        s_load_dwordx2 {sp(WS_)}, s[0:1], 96
        s_load_dwordx2 {sp(K_)}, s[0:1], s{sKa} offset:8
        s_load_dwordx2 {sp(V_)}, s[0:1], s{sKa} offset:16
        s_load_dwordx2 {sp(WO_)}, s[0:1], s{sKa} offset:32
        s_load_dwordx2 {sp(OUT_)}, s[0:1], 80
        """)
        stamp(2, 6)
        e(f"""
        v_lshrrev_b32 v{vLin}, 6, v0
        v_and_b32 v{vL}, 63, v0
        v_readfirstlane_b32 s{sW}, v{vLin}
        s_and_b32 s{sT0}, s2, 7
        s_lshl_b32 s{sT0}, s{sT0}, 5
        s_lshr_b32 s{sLid}, s2, 3
        s_or_b32 s{sLid}, s{sLid}, s{sT0}
        {f"s_mov_b32 s{sLid}, s2" if idmap else (f"s_xor_b32 s{sLid}, s{sLid}, {sx}" if sx else "")}
        s_and_b32 s{sIdx}, s{sLid}, 0x7f
        """)
        stamp(3, 6)
        e(f"""
        s_mov_b32 s{WQ_+2}, 0x480000
        s_mov_b32 s{WQ_+3}, 0x20000
        s_mov_b32 s{WS_+2}, 0x400000
        s_mov_b32 s{WS_+3}, 0x20000
        v_lshlrev_b32 v{vLin}, 4, v{vL}
        v_and_b32 v{vT0}, 3, v{vL}
        v_lshrrev_b32 v{vT1}, 2, v{vL}
        v_mov_b32 v{vX}, 0
        """)
        if pre7 or kq or cup:
            assert wp
            consts()
        e(f"""
        s_sub_u32 s{sWm}, s{sW}, 1
        s_cbranch_scc1 L_clear
        s_cmp_eq_u32 s{sW}, 7
        s_cbranch_scc1 L_wait0
        """)
        stamp(4, 6)
        if wp:
            assert cx == 0 and seg == 64
            e(f"""
            s_and_b32 s{sT1}, s{sIdx}, 3
            s_mul_i32 s{sT0}, s{sWm}, 48
            s_mul_i32 s{sT1}, s{sT1}, 288
            v_lshrrev_b32 v{vA}, 4, v{vL}
            v_and_b32 v{vX}, 0xf0, v{vLin}
            s_add_u32 s{sT0}, s{sT0}, s{sT1}
            v_mul_u32_u24 v{vT2}, 0xc000, v{vA}
            v_mad_u32_u24 v{vA}, v{vA}, 12, s{sT0}
            s_lshl_b32 s{sWq}, s{sT0}, 12
            s_lshr_b32 s{sT1}, s{sIdx}, 2
            s_lshl_b32 s{sT1}, s{sT1}, 8
            v_add_u32 v{vX}, v{vX}, v{vT2}
            v_mov_b32 v{vT2}, v{vA}
            s_add_u32 s{sWq}, s{sWq}, s{sT1}
            """)
        else:
            e(f"""
            s_mul_i32 s{sT0}, s{sWm}, 0xc0
            v_mul_u32_u24 v{vX}, 0xc000, v{vT1}
            v_mul_u32_u24 v{vT2}, 12, v{vT1}
            v_lshl_or_b32 v{vX}, v{vT0}, 4, v{vX}
            v_add_u32 v{vT2}, s{sT0}, v{vT2}
            s_lshl_b32 s{sWq}, s{sT0}, 12
            s_xor_b32 s{sT1}, s{sIdx}, {cx}
            s_lshl_b32 s{sT1}, s{sT1}, 6
            s_add_u32 s{sWq}, s{sWq}, s{sT1}
            """)
        e(f"s_setprio {max(qprio, p0)}")
        wstep = 0x2000
        if seg == 32:
            e(f"""
            v_mul_u32_u24 v{vX}, 0xc000, v{vT1}
            v_and_b32 v{vA}, 1, v{vL}
            v_lshl_or_b32 v{vX}, v{vA}, 4, v{vX}
            v_and_b32 v{vA}, 2, v{vL}
            v_lshl_or_b32 v{vX}, v{vA}, 7, v{vX}
            s_lshl_b32 s{sWq}, s{sT0}, 12
            s_and_b32 s{sT1}, s{sIdx}, 0x78
            s_lshl_b32 s{sT1}, s{sT1}, 6
            s_add_u32 s{sWq}, s{sWq}, s{sT1}
            s_and_b32 s{sT1}, s{sIdx}, 7
            s_lshl_b32 s{sT1}, s{sT1}, 5
            s_add_u32 s{sWq}, s{sWq}, s{sT1}
            """)
        if seg == 16:
            e(f"""
            v_mul_u32_u24 v{vX}, 0xc000, v{vT1}
            v_lshl_or_b32 v{vX}, v{vT0}, 7, v{vX}
            s_lshl_b32 s{sWq}, s{sT0}, 12
            s_and_b32 s{sT1}, s{sIdx}, 0x78
            s_lshl_b32 s{sT1}, s{sT1}, 6
            s_add_u32 s{sWq}, s{sWq}, s{sT1}
            s_and_b32 s{sT1}, s{sIdx}, 7
            s_lshl_b32 s{sT1}, s{sT1}, 4
            s_add_u32 s{sWq}, s{sWq}, s{sT1}
            """)
        if wqoff:
            e(f"s_add_u32 s{sWq}, s{sWq}, {wqoff}")
        if wqstr != 13:
            wstep = wqstr
            e(f"""
            v_mul_u32_u24 v{vX}, {6*wqstr}, v{vT1}
            v_lshl_or_b32 v{vX}, v{vT0}, 4, v{vX}
            s_mul_i32 s{sWq}, s{sWm}, {96*wqstr}
            s_lshl_b32 s{sT1}, s{sIdx}, 6
            s_add_u32 s{sWq}, s{sWq}, s{sT1}
            """)
        if wqp >= 0:
            S = 64 << wqp
            rpl = 1024 // S
            wstep = rpl * 8192
            e(f"""
            v_lshrrev_b32 v{vX}, {2+wqp}, v{vL}
            v_lshlrev_b32 v{vX}, 13, v{vX}
            v_and_b32 v{vA}, {(4<<wqp)-1}, v{vL}
            v_lshl_or_b32 v{vX}, v{vA}, 4, v{vX}
            s_and_b32 s{sT0}, s{sIdx}, {(1<<wqp)-1}
            s_mul_i32 s{sT0}, s{sT0}, 6
            s_add_u32 s{sT0}, s{sT0}, s{sWm}
            s_mul_i32 s{sWq}, s{sT0}, {6*wstep}
            s_lshr_b32 s{sT0}, s{sIdx}, {wqp}
            s_mul_i32 s{sT0}, s{sT0}, {S}
            s_add_u32 s{sWq}, s{sWq}, s{sT0}
            """)
        stamp(1, 4)
        stamp(5, 6)
        e("s_waitcnt lgkmcnt(0)")
        stamp(2, 4)
        stamp(6, 6)
        e(f"global_load_dwordx3 {vr(vXr,3)}, v{vT2}, {sp(sX)}")
        for i in range(6):
            e(f"buffer_load_dwordx4 {vr(vH+4*i,4)}, v{vX}, {srd(WQ_)}, s{sWq} offen{NTQ}")
            if i < 5:
                e(f"s_add_u32 s{sWq}, s{sWq}, {wstep}" if wstep != 0x2000 else f"s_addk_i32 s{sWq}, 0x2000")
        vq = VM(e)
        vq.add("x")
        for i in range(6):
            vq.add(f"w{i}")
        slot["K0"] = free.pop(0)
        for t in seq[:kq]:
            issue(vq, t)
        stamp(3, 4)
        e("s_branch L_t0")
    e("L_clear:")
    if prio:
        e("s_setprio 3")
    def clears(lbl):
        if lay:
            e(f"""
            s_lshl_b32 s{sT1}, s{sLid}, 7
            s_add_u32 s{sT1}, s{sT1}, {WS_ML}
            buffer_store_dwordx4 {vr(vA,4)}, v{vLin}, {srd(WS_)}, s{sA} offen sc1
            buffer_store_dwordx4 {vr(vA,4)}, v{vLin}, {srd(WS_)}, s{sB} offen sc1
            buffer_store_dwordx4 {vr(vA,4)}, v{vLin}, {srd(WS_)}, s{sB} offen offset:1024 sc1
            s_mov_b64 exec, 0xffff
            buffer_store_dwordx4 {vr(vA,4)}, v{vLin}, {srd(WS_)}, s{sB} offen offset:2048 sc1
            s_mov_b64 exec, 0xff
            buffer_store_dwordx4 {vr(vA+4 if xl else vA,4)}, v{vLin}, {srd(WS_)}, s{sT1} offen sc1
            s_mov_b64 exec, -1
            """)
            return
        e(f"""
        s_mov_b64 exec, 15
        buffer_store_dwordx4 {vr(vA,4)}, v{vLin}, {srd(WS_)}, s{sA} offen offset:1024 sc1
        s_mov_b64 exec, -1
        s_cmp_ge_u32 s{sIdx}, 72
        buffer_store_dwordx4 {vr(vA,4)}, v{vLin}, {srd(WS_)}, s{sA} offen sc1
        s_cbranch_scc1 {lbl}
        buffer_store_dwordx4 {vr(vA,4)}, v{vLin}, {srd(WS_)}, s{sB} offen sc1
        buffer_store_dwordx4 {vr(vA,4)}, v{vLin}, {srd(WS_)}, s{sB} offen offset:1024 sc1
        buffer_store_dwordx4 {vr(vA,4)}, v{vLin}, {srd(WS_)}, s{sB} offen offset:2048 sc1
        buffer_store_dwordx4 {vr(vA,4)}, v{vLin}, {srd(WS_)}, s{sB} offen offset:3072 sc1
        """)
    e(f"""
    v_mov_b32 v{vA}, -1
    v_mov_b32 v{vA+1}, -1
    v_mov_b32 v{vA+2}, -1
    v_mov_b32 v{vA+3}, -1
    v_mov_b32 v{vA+4}, 0
    v_mov_b32 v{vA+5}, 0
    ds_write_b64 v{vA+4}, {vr(vA+4,2)} offset:{LDS_CNT}
    {"s_mov_b64 exec, 0xff" if nb1 else ""}
    {f"ds_write_b128 v{vLin}, {vr(vA,4)} offset:{LDS_ML}" if nb1 else ""}
    {"s_mov_b64 exec, -1" if nb1 else ""}
    s_and_b32 s{sEp}, s{sLid}, 0x80
    s_add_u32 s{sEp}, s{sEp}, {WS_EP}
    s_lshl_b32 s{sA}, s{sLid}, 11
    s_add_u32 s{sA}, s{sA}, {WS_H1}
    {f"s_mul_i32 s{sB}, s{sLid}, 2304" if lay else f"s_lshl_b32 s{sB}, s{sLid}, 12"}
    s_add_u32 s{sB}, s{sB}, {WS_I2}
    s_waitcnt lgkmcnt(0)
    s_load_dword s{sTag}, {sp(WS_)}, s{sEp}
    """)
    if xl:
        assert lay
        e(f"""
        s_getreg_b32 s{sXc}, hwreg(HW_REG_XCC_ID, 0, 4)
        v_mov_b32 v{vA+4}, -1
        v_mov_b32 v{vA+5}, -1
        v_mov_b32 v{vA+6}, -1
        v_mov_b32 v{vA+7}, s{sXc}
        """)
    if clr == 0:
        if not wqnoclr:
            clears("L_t0")
            if lay:
                e("s_branch L_t0")
        else:
            e("s_cmp_eq_u32 s2, s2\ns_cbranch_scc1 L_t0")
    elif not fp:
        e("s_branch L_t0")
    if not fp:
        e(f"""
        L_wait0:
        s_waitcnt lgkmcnt(0)
        """)
    for t in seq[:pre7]:
        issue(VM(e), t)
    e(f"""
    L_t0:
    s_barrier
    """)
    stamp(1)
    stamp(4, 4)
    if not (pre7 or kq or cup):
        consts()
    e(f"""
    s_cmp_ge_u32 s{sWm}, 6
    s_cbranch_scc1 L_noq
    """)
    e(f"""
    v_and_b32 v{vT0}, {15 if wp == 2 else 3}, v{vL}
    v_lshrrev_b32 v{vT1}, 4, v{vL}
    v_lshlrev_b32 v{vT1}, 3, v{vT1}
    v_lshl_or_b32 v{vT0}, v{vT0}, 5, v{vT1}
    s_lshl_b32 s{sT0}, s{sWm}, {9 if wp == 2 else 7}
    v_add_u32 v{vX}, s{sT0}, v{vT0}
    """)
    stamp(5, 4)
    if hops:
        for k, name in enumerate(hops):
            e(f"s_cmp_eq_u32 s{sWm}, {k + hopat}\ns_cbranch_scc1 P_{name}")
        e("L_hopret:")
    if fp:
        e("s_waitcnt lgkmcnt(0)")
    vq.wait_tag("x")
    stamp(6, 4)
    for t in range(3):
        e(f"v_and_b32 v{vXs+4*t}, 0xffff, v{vXr+t}")
        e(f"v_lshlrev_b32 v{vXs+4*t+1}, 16, v{vXr+t}")
        e(f"v_lshrrev_b32 v{vXs+4*t+2}, 16, v{vXr+t}")
        e(f"v_and_b32 v{vXs+4*t+3}, 0xffff0000, v{vXr+t}")
    k0 = 0
    for i in range(6):
        vq.wait_tag(f"w{i}")
        if i == 5:
            stamp(2)
            stamp(7, 4)
        for c in range(8):
            w = vH + 4 * i + (c >> 1)
            x = vXs + 2 * i + (c & 1)
            acc = "0" if i == 0 else f"v{vAcc+c}"
            e(f"v_dot2_f32_bf16 v{vAcc+c}, v{w}, v{x}, {acc}")
        while k0 < 4 and (5 - i) + k0 < uq and not kq:
            issue_load("K0", k0)
            vq.add("K0")
            k0 += 1
    for c in range(4):
        e(f"v_permlane32_swap_b32 v{vAcc+c}, v{vAcc+c+4}")
    for c in range(4):
        e(f"v_add_f32 v{vAcc+c}, v{vAcc+c}, v{vAcc+c+4}")
    for c in range(2):
        e(f"v_permlane16_swap_b32 v{vAcc+c}, v{vAcc+c+2}")
    for c in range(2):
        e(f"v_add_f32 v{vAcc+c}, v{vAcc+c}, v{vAcc+c+2}")
    if wp == 0:
        for rot in (8, 4):
            for c in range(2):
                e(f"v_add_f32_dpp v{vAcc+c}, v{vAcc+c}, v{vAcc+c} row_ror:{rot} row_mask:0xf bank_mask:0xf")
        e(f"""
        s_mov_b32 exec_lo, 0x000f000f
        s_mov_b32 exec_hi, 0x000f000f
        """)
    e(f"""
    ds_write_b64 v{vX}, {vr(vAcc,2)} offset:{LDS_RED if wp == 2 else LDS_PART}
    v_mov_b32 v{vT0}, 1
    """)
    stamp(8, 4)
    e(f"""
    s_mov_b64 exec, 1
    ds_add_u32 v{vZ}, v{vT0} offset:{LDS_CNT}
    s_mov_b64 exec, -1
    """)
    if max(qprio, p0) != p0:
        e(f"s_setprio {p0}")
    if not kq:
        for i in range(k0, 4):
            issue_load("K0", i)
            vq.add("K0")
        issue_end("K0")
    e(f"""
    s_branch L_pre{max(kq, 1)}
    L_noq:
    s_cmp_eq_u32 s{sW}, 0
    s_cbranch_scc1 L_ctl
    """)
    assert not dry
    if dry:
        for r in range(vH + 3, vH + 7):
            e(f"v_mov_b32 v{r}, 0")
        e("""
        s_mov_b64 exec, 0
        s_branch L_t2b
        """)
    else:
        e(f"s_setprio {p0}")
        if fp:
            e("s_waitcnt lgkmcnt(0)")
        e(f"s_branch L_pre{pre7}" if pre7 else "s_branch L_dry_ret")
    padspot("ctl")
    e("L_ctl:")
    vc = VM(e)
    if clr == 1 and not wqnoclr:
        clears("L_clr1")
        if not lay:
            e("L_clr1:")
    if pfk == 1:
        assert clr == 1 and wp == 2
        e(f"""
        s_lshl_b32 s{sT0}, s{sLid}, 11
        s_add_u32 s{sT0}, s{sT0}, {WS_H1}
        buffer_load_dwordx4 {vr(vH+8,4)}, v{vLin}, {srd(WS_)}, s{sT0} offen {pfc.replace("_", " ").replace("none", "")}
        """)
    if clr == 2:
        for t in seq[:jctl]:
            issue(vc, t, None, True)
        clears("L_clr1")
        if not lay:
            e("L_clr1:")
    e(f"""
    v_lshlrev_b32 v{vX}, 3, v{vL}
    s_xor_b32 s{sB}, s{sLid}, {cx}
    s_lshl_b32 s{sB}, s{sB}, 7
    s_and_b32 s{sA}, s{sB}, 0x7c00
    s_lshr_b32 s{sFo}, s{sA}, 3
    s_add_u32 s{sFo}, s{sFo}, {WS_FL}
    """)
    if xq:
        assert wp == 2 and xl and clr == 1
        e(f"""
        s_mov_b32 s{sWo}, s{sA}
        s_mov_b32 s{sWo2}, 0
        """)
    if wp == 2:
        e(f"""
        s_lshl_b32 s{sB}, s{sB}, 3
        s_lshl_b32 s{sA}, s{sA}, 3
        s_add_u32 s{sB}, s{sB}, {WS_QP2}
        s_add_u32 s{sA}, s{sA}, {WS_QP2}
        s_add_u32 s{sMl}, s{sA}, 4096
        """)
    if clr == 0:
        e("s_waitcnt vmcnt(0)")
    stamp(2)
    stamp(7, 4)
    vc.add("x")
    if clr != 2:
        for t in seq[:jctl]:
            issue(vc, t, None, True)
    if xq:
        e(f"""
        s_lshl_b32 s{sT0}, s{sLid}, 7
        v_mov_b32 v{vT2}, s{sXc}
        s_waitcnt lgkmcnt(0)
        s_add_u32 s{sTag}, s{sTag}, {EPC}
        v_mov_b32 v{vT2+1}, s{sTag}
        s_mov_b64 exec, 1
        buffer_store_dwordx2 {vr(vT2,2)}, v{vZ}, {srd(WS_)}, s{sT0} offen sc1
        s_mov_b64 exec, -1
        """)
    e(f"""
    L_cnt:
    ds_read_b32 v{vT0}, v{vZ} offset:{LDS_CNT}
    s_waitcnt lgkmcnt(0)
    v_cmp_ne_u32 vcc, 6, v{vT0}
    s_cbranch_vccz L_cnt_ok
    {SPIN("L_cnt")}
    L_cnt_ok:
    {"" if wp == 2 else "s_mov_b64 exec, 0xffff"}
    """)
    stamp(8, 4)
    for i in range(6):
        e(f"ds_read_b64 {vr(vS+2*i,2)}, v{vX} offset:{LDS_RED+512*i if wp == 2 else LDS_PART+128*i}")
    e(f"""
    {"" if xq else f"s_add_u32 s{sTag}, s{sTag}, {EPC}"}
    s_waitcnt lgkmcnt(0)
    v_pk_add_f32 {vr(vS,2)}, {vr(vS,2)}, {vr(vS+2,2)}
    v_pk_add_f32 {vr(vS+4,2)}, {vr(vS+4,2)}, {vr(vS+6,2)}
    v_pk_add_f32 {vr(vS+8,2)}, {vr(vS+8,2)}, {vr(vS+10,2)}
    v_pk_add_f32 {vr(vS,2)}, {vr(vS,2)}, {vr(vS+4,2)}
    v_pk_add_f32 {vr(vS,2)}, {vr(vS,2)}, {vr(vS+8,2)}
    """)
    if wp == 2:
        e(f"""
        v_mov_b32 v{vS+3}, s{sTag}
        v_mov_b32 v{vS+2}, v{vS+1}
        v_mov_b32 v{vS+1}, s{sTag}
        s_mov_b32 s{sTag+1}, s{sTag}
        {f"v_lshlrev_b32 v{vX}, 7, v{vL}" if xq else ""}
        {"" if clr == 0 else f"s_waitcnt vmcnt({4*jctl+xq+(1 if pfk == 1 else 0) if clr == 1 else 0})"}
        {f"s_mov_b64 exec, {hex((1 << (8*wqs)) - 1)}" if wqs else ""}
        buffer_store_dwordx4 {vr(vS,4)}, v{vLin}, {srd(WS_)}, s{sB} offen{(" " + qs if qs else "") if xq else " sc1"}
        {"s_mov_b64 exec, -1" if wqs else ""}
        """)
    else:
        e(f"""
        v_cvt_pk_bf16_f32 v{vS}, v{vS}, v{vS+1}
        v_mov_b32 v{vS+1}, s{sTag}
        s_mov_b32 s{sTag+1}, s{sTag}
        {"" if clr == 0 else f"s_waitcnt vmcnt({4*jctl if clr == 1 else 0})"}
        buffer_store_dwordx2 {vr(vS,2)}, v{vX}, {srd(WS_)}, s{sB} offen sc1
        s_mov_b64 exec, -1
        """)
    stamp(12)
    stamp(9, 4)
    if pfk == 2:
        e(f"""
        s_lshl_b32 s{sT0}, s{sLid}, 11
        s_add_u32 s{sT0}, s{sT0}, {WS_H1}
        buffer_load_dwordx4 {vr(vH+8,4)}, v{vLin}, {srd(WS_)}, s{sT0} offen {pfc.replace("_", " ").replace("none", "")}
        """)
    if pfk:
        vc.add("pf")
    if wp == 2:
        pass
    elif seg == 64:
        e(f"v_mov_b32 v{vS+2}, v{vX}")
    elif seg == 32:
        e(f"""
        v_lshrrev_b32 v{vS+2}, 3, v{vL}
        v_lshlrev_b32 v{vS+2}, 5, v{vS+2}
        v_and_b32 v{vS+3}, 4, v{vL}
        v_lshl_or_b32 v{vS+2}, v{vS+3}, 6, v{vS+2}
        v_and_b32 v{vS+3}, 3, v{vL}
        v_lshl_or_b32 v{vS+2}, v{vS+3}, 3, v{vS+2}
        """)
    else:
        e(f"""
        v_lshrrev_b32 v{vS+2}, 3, v{vL}
        v_lshlrev_b32 v{vS+2}, 4, v{vS+2}
        v_and_b32 v{vS+3}, 6, v{vL}
        v_lshl_or_b32 v{vS+2}, v{vS+3}, 6, v{vS+2}
        v_and_b32 v{vS+3}, 1, v{vL}
        v_lshl_or_b32 v{vS+2}, v{vS+3}, 3, v{vS+2}
        """)
    for t in seq[jctl:jpoll]:
        issue(vc, t, uctl, True)
    if wp == 2:
        Q = RING + 16 * (NSLOT - 2)
        def gl(fl):
            if xq:
                e(f"""
                s_mov_b64 exec, 0xff
                buffer_load_dwordx2 {vr(vH+28,2)}, v{vX}, {srd(WS_)}, s{sWo} offen sc1
                s_mov_b64 exec, -1
                """)
            for j in range(wqg):
                e(f"buffer_load_dwordx4 {vr(Q+4*j,4)}, v{vLin}, {srd(WS_)}, s{sA if j < 4 else sMl} offen offset:{1024*(j&3)}{fl}")
        if qf != "sc1":
            gl(" " + qf.replace("_", " ") if qf else "")
            e("s_branch L_gather2")
        e("L_gather1:")
        gl(" sc1")
        e("L_gather2:")
        if xq:
            e(f"""
            s_waitcnt vmcnt({wqg})
            s_mov_b64 exec, 0xff
            v_cmp_ne_u32 vcc, s{sTag}, v{vH+29}
            v_cmp_ne_u32 {sp(sP0)}, s{sXc}, v{vH+28}
            s_mov_b64 exec, -1
            s_cbranch_vccnz L_again
            {"" if rep == 1 else f"s_cmp_eq_u64 {sp(sP0)}, 0"}
            {"" if rep == 1 else "s_cbranch_scc1 L_chk"}
            s_cmp_lg_u32 s{sWo2}, 0
            s_cbranch_scc1 L_chk
            buffer_store_dwordx4 {vr(vS,4)}, v{vLin}, {srd(WS_)}, s{sB} offen sc1
            s_mov_b32 s{sWo2}, 1
            L_chk:
            """)
        e("s_waitcnt vmcnt(0)")
        if wqs:
            e("s_mov_b64 exec, 0xff")
        for j in range(wqg):
            if j == 0:
                e(f"v_max_u32 v{vT0}, v{Q+1}, v{Q+3}")
                e(f"v_min_u32 v{vT1}, v{Q+1}, v{Q+3}")
            else:
                e(f"v_max3_u32 v{vT0}, v{vT0}, v{Q+4*j+1}, v{Q+4*j+3}")
                e(f"v_min3_u32 v{vT1}, v{vT1}, v{Q+4*j+1}, v{Q+4*j+3}")
        e(f"""
        v_cmp_ne_u32 vcc, s{sTag}, v{vT0}
        v_cmp_ne_u32 {sp(sP0)}, s{sTag}, v{vT1}
        s_mov_b64 exec, -1
        s_or_b64 vcc, vcc, {sp(sP0)}
        s_cbranch_vccz L_gotq
        L_again:
        s_waitcnt vmcnt(0)
        {SPIN("L_gather1") if wqnoqw != 1 else ""}
        L_gotq:
        """)
        if rep == 2:
            e(f"buffer_store_dwordx4 {vr(vS,4)}, v{vLin}, {srd(WS_)}, s{sB} offen sc1")
        for h in range(2):
            for c in (0, 2):
                b = Q + 16 * h + c
                e(f"v_add_f32 v{b}, v{b}, v{b+4}")
                e(f"v_add_f32 v{b+8}, v{b+8}, v{b+12}")
        for h in range(2):
            for c in (0, 2):
                b = Q + 16 * h + c
                e(f"v_add_f32 v{b}, v{b}, v{b+8}")
        e(f"""
        v_lshlrev_b32 v{vS+2}, 2, v{vL}
        v_cvt_pk_bf16_f32 v{vPoll}, v{Q}, v{Q+2}
        v_cvt_pk_bf16_f32 v{vPoll+2}, v{Q+16}, v{Q+18}
        """)
    else:
        e(f"""
        L_gather1:
        buffer_load_dwordx4 {vr(vPoll,4)}, v{vLin}, {srd(WS_)}, s{sA} offen sc1
        s_waitcnt vmcnt(0)
        v_cmp_ne_u32 vcc, s{sTag}, v{vPoll+1}
        v_cmp_ne_u32 {sp(sP0)}, s{sTag}, v{vPoll+3}
        s_or_b64 vcc, vcc, {sp(sP0)}
        s_cbranch_vccz L_gotq
        {SPIN("L_gather1") if wqnoqw != 1 else ""}
        L_gotq:
        """)
    e(f"""
    v_mov_b32 v{vT0}, 1
    v_mov_b32 v{vT1}, s{sTag}
    ds_write2_b32 v{vS+2}, v{vPoll}, v{vPoll+2} offset0:0 offset1:{64 if wp == 2 else 1}
    s_and_b32 s{sT0}, s{sLid}, 0x7f
    s_and_b32 s{sT1}, s{sLid}, 7
    {"" if lay else f"s_cselect_b32 s{sT0}, 0x7f, s{sT0}"}
    {"" if lay else f"s_cmp_ge_u32 s{sT0}, 72"}
    s_waitcnt lgkmcnt(0)
    ds_write_b32 v{vZ}, v{vT0} offset:{LDS_CNT+4}
    s_cbranch_scc1 L_noep
    s_and_b32 s{sT1}, s{sLid}, 0x80
    s_lshl_b32 s{sT1}, s{sT1}, 4
    s_lshr_b32 s{sT0}, s{sT0}, 1
    s_add_u32 s{sT0}, s{sT0}, s{sT1}
    s_add_u32 s{sT0}, s{sT0}, {WS_FL}
    v_lshlrev_b32 v{vT2}, 7, v{vL}
    s_mov_b64 exec, {"0x1ff" if lay else "0xffff"}
    buffer_store_dword v{vT1}, v{vT2}, {srd(WS_)}, s{sT0} offen sc1
    s_mov_b64 exec, -1
    L_noep:
    """)
    if xl and not xq:
        e(f"""
        s_and_b32 s{sT0}, s{sLid}, 0xf8
        s_lshl_b32 s{sT0}, s{sT0}, 7
        s_add_u32 s{sT0}, s{sT0}, {WS_ML + 12}
        v_lshlrev_b32 v{vH+29}, 7, v{vL}
        s_mov_b64 exec, 0xff
        buffer_load_dword v{vH+28}, v{vH+29}, {srd(WS_)}, s{sT0} offen sc1
        s_mov_b64 exec, -1
        """)
    cp2 = p0 - sum(1 for x in steps if x < jpoll) if cprio2 < 0 else cprio2
    if prio and cp2 != 3:
        e(f"s_setprio {cp2}")
    vc.done = len(vc.ops)
    stamp(3)
    vc.add("fl")
    for t in seq[jpoll:npre]:
        issue(vc, t, uctl)
    e("s_branch L_readq")
    padspot("pre")
    e("L_dry_ret:")
    e("s_mov_b64 exec, -1")
    if not pre7:
        for i in range(4):
            issue_load("K0", i)
        issue_end("K0")
    vm = VM(e)
    vm.ops = ["K0"] * 4
    assert 4 * max(pre7, kq) <= upre
    for k in range(1, npre):
        e(f"L_pre{k}:")
        if k < min(max(kq, 1), pre7) :
            vm.ops += [seq[k]] * 4
            continue
        issue(vm, seq[k], upre)
    stamp(3)
    if pfq:
        e(f"""
        s_cmp_lg_u32 s{sW}, {pfw}
        s_cbranch_scc1 L_qspin
        s_lshl_b32 s{sT0}, s{sLid}, 11
        s_add_u32 s{sT0}, s{sT0}, {WS_H1}
        buffer_load_dwordx4 {vr(vH+8,4)}, v{vLin}, {srd(WS_)}, s{sT0} offen {pfc.replace("_", " ").replace("none", "")}
        """)
    e(f"""
    L_qspin:
    ds_read_b32 v{vT0}, v{vZ} offset:{LDS_CNT+4}
    s_waitcnt lgkmcnt(0)
    v_cmp_eq_u32 vcc, 0, v{vT0}
    s_cbranch_vccz L_readq
    {SPIN("L_qspin") if not wqnoqw else ""}
    L_readq:
    v_bfe_u32 v{vT0}, v{vL}, 3, 1
    v_and_b32 v{vT1}, 48, v{vL}
    v_lshl_or_b32 v{vT0}, v{vT0}, 8, v{vT1}
    """)
    for i in range(4):
        e(f"ds_read_b128 {vr(vQ+4*i,4)}, v{vT0} offset:{LDS_Q+64*i}")
    vm.done = len(vm.ops) - max(len(vm.ops) - vm.done, min(len(vm.ops), len(vc.ops) - vc.done))
    stamp(4)
    e(f"""
    s_lshl_b32 s{sT0}, s{sW}, 10
    v_add_u32 v{vRed}, s{sT0}, v{vLin}
    s_lshl_b32 s{sT0}, s{sW}, 3
    v_lshrrev_b32 v{vMLw}, 2, v{vT0}
    v_and_b32 v{vMLw}, 64, v{vMLw}
    v_add_u32 v{vMLw}, s{sT0}, v{vMLw}
    """)
    if lay:
        e(f"v_lshlrev_b32 v{vH+25}, 2, v{vL}")
    if rs:
        assert nb1 and woat >= 0
        e(f"""
        s_add_u32 s{sWm}, s{sW}, 5
        s_and_b32 s{sWm}, s{sWm}, 7
        """)
    if woat >= 0:
        e(wo_addr)
        e(t3_addr)
    if t4x:
        assert woat >= 0 and not wqcol
        e(f"""
        s_and_b32 s{sT0}, s{sIdx}, 31
        s_lshr_b32 s{sIdx}, s{sIdx}, 5
        s_lshl2_add_u32 s{sIdx}, s{sT0}, s{sIdx}
        s_and_b32 s{sT0}, s{sLid}, 0x80
        s_or_b32 s{sT0}, s{sT0}, s{sIdx}
        s_and_b32 s{sT0}, s{sT0}, 0xf8
        s_lshl_b32 s{sFo}, s{sT0}, 4
        s_add_u32 s{sFo}, s{sFo}, {WS_FL}
        """)
    if pfo == 18:
        e(f"""
        s_cmp_eq_u32 s{sW}, {pfw}
        s_cselect_b32 s{sT0}, 8, 0
        v_cmp_gt_u32 vcc, s{sT0}, v{vL}
        v_lshlrev_b32 v{vH+7}, 7, v{vL}
        v_mov_b32 v{vT1}, 0x40000000
        v_cndmask_b32 v{vH+7}, v{vT1}, v{vH+7}, vcc
        """)
    e(f"""
    s_mov_b32 vcc_lo, 0x00ff00ff
    s_mov_b32 vcc_hi, 0xff00ff00
    s_waitcnt lgkmcnt(0)
    """)
    if wqnoqw:
        for r in range(vQ, vQ + 16):
            e(f"v_mov_b32 v{r}, 0")
    if wqnocomp:
        for r in list(range(vS, vS + 16)) + list(range(vD, vD + 4)) + [vMx, vAl, vLs, vLs + 1, vN0, vN1]:
            e(f"v_mov_b32 v{r}, 0")

    st = {"sreg": {}, "sfree": [0, 1, 2, 3]}

    def softmax(c):
        sreg = st["sreg"]
        s0 = vS + 4 * sreg[2 * c]
        s1 = vS + 4 * sreg[2 * c + 1]
        nn, no = (vN0, vN1) if c % 2 == 0 else (vN1, vN0)
        if c == 0:
            e(f"v_max3_f32 v{vT0}, v{s0}, v{s0+1}, v{s0+2}")
            e(f"v_max3_f32 v{vT0}, v{vT0}, v{s0+3}, v{s1}")
            e(f"v_max3_f32 v{vT0}, v{vT0}, v{s1+1}, v{s1+2}")
            e(f"v_max_f32 v{vMx}, v{vT0}, v{s1+3}")
        else:
            e(f"v_max3_f32 v{vT0}, v{s0}, v{s0+1}, v{s0+2}")
            e(f"v_max3_f32 v{vMx}, v{vMx}, v{s0+3}, v{vT0}")
            e(f"v_max3_f32 v{vT0}, v{s1}, v{s1+1}, v{s1+2}")
            e(f"v_max3_f32 v{vMx}, v{vMx}, v{s1+3}, v{vT0}")
        allreduce(vMx, vT0, "v_max_f32")
        e(f"v_mul_f32 v{nn}, 0xbe0293ee, v{vMx}")
        for b in (s0, s1):
            for r in range(4):
                e(f"v_fma_f32 v{b+r}, v{b+r}, s{sC}, v{nn}")
        if c > 0:
            e(f"v_sub_f32 v{vAl}, v{nn}, v{no}")
            e(f"v_exp_f32 v{vAl}, v{vAl}")
        for b in (s0, s1):
            for r in range(4):
                e(f"v_exp_f32 v{b+r}, v{b+r}")
        if c > 0:
            e(f"v_cndmask_b32_dpp v{vAD}, v{vAl}, v{vAl}, vcc row_ror:8 row_mask:0xf bank_mask:0xf")
        e(f"v_pk_add_f32 {vr(vA,2)}, {vr(s0,2)}, {vr(s0+2,2)}")
        e(f"v_pk_add_f32 {vr(vT2,2)}, {vr(s1,2)}, {vr(s1+2,2)}")
        if c == 0:
            e(f"v_pk_add_f32 {vr(vLs,2)}, {vr(vA,2)}, {vr(vT2,2)}")
        else:
            e(f"v_pk_add_f32 {vr(vT2,2)}, {vr(vA,2)}, {vr(vT2,2)}")
            e(f"v_fma_f32 v{vLs}, v{vLs}, v{vAl}, v{vT2}")
            e(f"v_fma_f32 v{vLs+1}, v{vLs+1}, v{vAl}, v{vT2+1}")
        for b in (s0, s1):
            for r in range(4):
                e(f"v_cvt_pk_bf16_f32 v{b+r}, v{b+r}, v{b+r}")
        if c == 3:
            e(f"v_add_f32 v{vLt}, v{vLs}, v{vLs+1}")
            allreduce(vLt, vT0, "v_add_f32")
            e(f"ds_write_b64 v{vMLw}, {vr(vN1,2)} offset:{LDS_ML}")

    def diag_mfma(dst, pregs, bregs, zero_first):
        n = len(pregs)

        def ands(i):
            for d in range(4):
                e(f"v_and_b32 v{vA+4*(i&1)+d}, v{pregs[i]}, v{vM+d}")
        ands(0)
        for i in range(n):
            if i + 1 < n:
                ands(i + 1)
            c = "0" if (zero_first and i == 0) else vr(dst, 4)
            e(f"v_mfma_f32_16x16x32_bf16 {vr(dst,4)}, {vr(vA+4*(i&1),4)}, {vr(bregs[i],4)}, {c}")

    def process(vm, t):
        sreg, sfree = st["sreg"], st["sfree"]
        n = int(t[1])
        base = RING + 16 * slot[t]
        if t[0] == "K":
            sreg[n] = sfree.pop(0)
            s = vS + 4 * sreg[n]
            vm.wait_tag(t)
            for i in range(4 if not wqnocomp else 0):
                c = "0" if i == 0 else vr(s, 4)
                e(f"v_mfma_f32_16x16x32_bf16 {vr(s,4)}, {vr(base+4*i,4)}, {vr(vQ+4*i,4)}, {c}")
            if n & 1 and (not wqnocomp or n == 7):
                softmax(n >> 1)
        else:
            s = vS + 4 * sreg[n]
            if n > 0 and n % 2 == 0:
                for r in range(4):
                    e(f"v_mul_f32 v{vD+r}, v{vAD}, v{vD+r}")
            if str(n) in str(fine) and not wqnocomp:
                last = max(i for i, x in enumerate(vm.ops) if x == t)
                def ands(i):
                    for d in range(4):
                        e(f"v_and_b32 v{vA+4*(i&1)+d}, v{s+i}, v{vM+d}")
                ands(0)
                ands(1)
                for i in range(4):
                    vm.wait_n(len(vm.ops) - 1 - (last - 3 + i))
                    if i == 3 and n == 7:
                        stamp(6)
                    e(f"v_mfma_f32_16x16x32_bf16 {vr(vD,4)}, {vr(vA+4*(i&1),4)}, {vr(base+4*i,4)}, {vr(vD,4)}")
                    if i < 2:
                        ands(i + 2)
            else:
                vm.wait_tag(t)
                if n == 7:
                    stamp(6)
                if not wqnocomp:
                    diag_mfma(vD, [s + r for r in range(4)], [base + 4 * r for r in range(4)], n == 0)
            sfree.append(sreg[n])
        free.append(slot[t])

    def flags(ip):
        if noflag:
            return
        if lay:
            vF, vFo = vH + 24, vH + 25
            if ip == pf1:
                e(f"""
                s_cmp_lg_u32 s{sW}, 0
                s_cbranch_scc1 L_pf1
                s_cmp_ge_u32 s{sIdx}, 72
                s_cbranch_scc1 L_pf1
                s_mov_b64 exec, 0xffff
                buffer_load_dword v{vF}, v{vFo}, {srd(WS_)}, s{sFo} offen sc1
                s_mov_b64 exec, -1
                L_pf1:
                """)
                st["pf"] = len(vm.ops)
            if ip == pf2:
                e(f"""
                s_cmp_lg_u32 s{sW}, 0
                s_cbranch_scc1 L_pf3
                s_cmp_ge_u32 s{sIdx}, 72
                s_cbranch_scc1 L_pf3
                s_mov_b64 exec, 0xffff
                s_waitcnt vmcnt({len(vm.ops) - st["pf"]})
                L_pf2:
                v_cmp_ne_u32 {sp(sF)}, s{sTag}, v{vF}
                s_cmp_eq_u64 {sp(sF)}, 0
                s_cbranch_scc1 L_pf4
                buffer_load_dword v{vF}, v{vFo}, {srd(WS_)}, s{sFo} offen sc1
                s_waitcnt vmcnt(0)
                {SPIN("L_pf2")}
                L_pf4:
                s_mov_b64 exec, -1
                L_pf3:
                """)
            return
        if ip == pf1:
            e(f"""
            s_cmp_lg_u32 s{sW}, 0
            s_cbranch_scc1 L_pf1
            s_load_dwordx8 s[{sF}:{sF+7}], {sp(WS_)}, s{sFo} glc
            s_load_dword s{sF+8}, {sp(WS_)}, s{sFo} offset:32 glc
            L_pf1:
            """)
        if ip == pf2:
            e(f"""
            s_cmp_lg_u32 s{sW}, 0
            s_cbranch_scc1 L_pf3
            L_pf2:
            s_waitcnt lgkmcnt(0)
            s_xor_b64 {sp(sF)}, {sp(sF)}, {sp(sTag)}
            s_xor_b64 {sp(sF+2)}, {sp(sF+2)}, {sp(sTag)}
            s_xor_b64 {sp(sF+4)}, {sp(sF+4)}, {sp(sTag)}
            s_xor_b64 {sp(sF+6)}, {sp(sF+6)}, {sp(sTag)}
            s_xor_b32 s{sF+8}, s{sF+8}, s{sTag}
            s_or_b64 {sp(sF)}, {sp(sF)}, {sp(sF+2)}
            s_or_b64 {sp(sF+4)}, {sp(sF+4)}, {sp(sF+6)}
            s_or_b32 s{sF}, s{sF}, s{sF+8}
            s_or_b64 {sp(sF)}, {sp(sF)}, {sp(sF+4)}
            s_cbranch_scc0 L_pf3
            s_load_dwordx8 s[{sF}:{sF+7}], {sp(WS_)}, s{sFo} glc
            s_load_dword s{sF+8}, {sp(WS_)}, s{sFo} offset:32 glc
            {SPIN("L_pf2")}
            s_waitcnt lgkmcnt(0)
            L_pf3:
            """)

    assert 0 < pf1 < pf2 <= seq.index("K7") + 1
    ip, ii = 0, npre
    UWO = umain if uwo < 0 else (uwo if uwo else None)
    while ii < 16:
        k = ratio if (ii - ip) > la else 1
        for _ in range(k):
            process(vm, seq[ip])
            ip += 1
            flags(ip)
        padspot(f"m{ii}", True)
        if pfo and ii == pfo:
            e(f"""
            s_cmp_lg_u32 s{sW}, {pfw}
            s_cbranch_scc1 L_pfo
            buffer_load_dwordx4 {vr(vH+8,4)}, v{vLin}, {srd(WS_)}, s{sA} offen sc1
            {f"buffer_load_dwordx2 {vr(vH+12,2)}, v{vPb}, {srd(WS_)}, s{sMl} offen sc1" if pfm else ""}
            {f"buffer_load_dwordx2 {vr(vH+14,2)}, v{vPb}, {srd(WS_)}, s{sMl} offen offset:512 sc1" if pfm else ""}
            L_pfo:
            """)
        if woat >= 0 and ii == woat:
            issue_wo(vm, UWO, 0, 8 if not wosplit else 4)
        if woat >= 0 and wosplit and ii == woat + wosplit:
            issue_wo(vm, UWO, 4, 8)
        issue(vm, seq[ii], umain)
        ii += 1
    if woat == 16 - wosplit and wopos == 0:
        issue_wo(vm, UWO, 4 if wosplit else 0, 8)
        if pfo == 18:
            e(f"buffer_load_dword v{vH+26}, v{vH+7}, {srd(WS_)}, s{sA} offen {pfc.replace('_', ' ').replace('none', '')}")
            vm.add("wo")
        if pfo == 17:
            e(f"""
            s_cmp_lg_u32 s{sW}, {pfw}
            s_cbranch_scc1 L_pfo
            buffer_load_dwordx4 {vr(vH+8,4)}, v{vLin}, {srd(WS_)}, s{sA} offen {pfc.replace("_", " ").replace("none", "")}
            L_pfo:
            """)
    if woat == 16 and wopos:
        for _ in range(wopos):
            process(vm, seq[ip])
            ip += 1
            flags(ip)
        issue_wo(vm, UWO, 0, 8 if not wo2 else 8 - wo2)
    while seq.index("K7") >= ip:
        process(vm, seq[ip])
        ip += 1
        flags(ip)
    rest = seq[ip:]
    if woat < 0:
        wo_slots[:] = [free[0], free[1]]
    fs = [s for s in range(NSLOT) if s not in wo_slots]

    def finish(vm, withwo=True):
        save = (dict(st["sreg"]), list(st["sfree"]), list(free))
        for t in rest:
            if wo2 and t == rest[-1] and withwo and not wo3:
                issue_wo(vm, None, 8 - wo2, 8)
            process(vm, t)
        e(f"ds_write_b128 v{vRed}, {vr(vD,4)} offset:{LDS_RED}")
        st["sreg"], st["sfree"] = save[0], save[1]
        free[:] = save[2]

    Z = vH + 8

    X = vH + 8
    first_poll = f"""
    buffer_load_dwordx2 {vr(X,2)}, v{vPa}, {srd(WS_)}, s{sA} offen sc1
    buffer_load_dwordx2 {vr(X+2,2)}, v{vPa}, {srd(WS_)}, s{sA} offen offset:512 sc1
    buffer_load_dwordx2 {vr(X+4,2)}, v{vPb}, {srd(WS_)}, s{sMl} offen sc1
    buffer_load_dwordx2 {vr(X+6,2)}, v{vPb}, {srd(WS_)}, s{sMl} offen offset:512 sc1
    """
    if early:
        assert t3 and lay and woat >= 0 and asplit
    if nb1:
        assert asplit and woat >= 0 and not early and pw and fp
        e(f"""
        s_cmp_gt_u32 s{sWm if rs else sW}, 5
        s_cbranch_scc1 L_B67
        """)
        finish(vm.copy())
        e(f"""
        s_cmp_eq_u32 s{sW}, 0
        s_cbranch_scc1 L_c3
        """)
        stamp(5)
    elif asplit:
        e(f"""
        s_cmp_gt_u32 s{sW}, 3
        s_cbranch_scc1 L_B
        """)
        finish(vm.copy())
        if woat < 0:
            e(wo_addr)
            e(t3_addr)
        e(f"""
        s_cmp_eq_u32 s{sW}, 0
        s_waitcnt lgkmcnt(0)
        s_barrier
        s_cbranch_scc1 L_c3
        """)
        stamp(5)
        if woat < 0:
            issue_wo(vm.copy())
        if early:
            e(first_poll)
        e("s_branch L_bf3")
        padspot("B")
        e(f"""
        L_B:
        s_cmp_gt_u32 s{sW}, 5
        s_cbranch_scc1 L_B67
        """)
    else:
        e(f"""
        s_cmp_eq_u32 s{sW}, 0
        s_cbranch_scc1 L_c3a
        s_cmp_gt_u32 s{sW}, 5
        s_cbranch_scc1 L_B67
        """)
    if woat < 0:
        e(wo_addr)
    if not nb1:
        e(f"""
        s_waitcnt lgkmcnt(0)
        s_barrier
        """)
        stamp(5)
    vb = vm.copy()
    if woat < 0:
        issue_wo(vb)
        e(t3_addr)
    if early:
        e(first_poll)
        for _ in range(4):
            vb.add("poll")
    if not nb1:
        finish(vb)
    X = vH + 8
    F0, F1 = vH + 16, vH + 17
    D0, D1, E = vS, vS + 4, vD
    PB = vQ
    o_loads = f"""
    buffer_load_dwordx2 {vr(X,2)}, v{vPa}, {srd(WS_)}, s{sA} offen sc1
    buffer_load_dwordx2 {vr(X+2,2)}, v{vPa}, {srd(WS_)}, s{sA} offen offset:512 sc1
    """
    o_check = f"""
    v_max3_u32 v{vT0}, v{X}, v{X+1}, v{X+2}
    v_max_u32 v{vT0}, v{vT0}, v{X+3}
    v_cmp_eq_u32 vcc, -1, v{vT0}
    """
    e("L_bf3:")
    if wo3 == 1:
        assert nb1 and wo2
        issue_wo(vm.copy(), None, 8 - wo2, 8)
    e(f"""
    s_waitcnt lgkmcnt(0)
    s_barrier
    """)
    if wo3 == 2:
        assert nb1 and wo2
        issue_wo(vm.copy(), None, 8 - wo2, 8)
    stamp(7)
    if wqnotail:
        e('s_cmp_eq_u32 s2, s2\ns_cbranch_scc1 L_fin')
    M0, M1 = sP0 + 2, sP0 + 4
    if pw:
        assert sel and t3 and lay in (1, 2) and not early and t4bar and asplit and xl
        if vc3:
            e(f"""
            v_and_b32 v{vT0}, 0x30, v{vL}
            v_and_b32 v{vT1}, 3, v{vL}
            v_lshl_or_b32 v{vT0}, v{vT1}, 2, v{vT0}
            v_and_b32 v{vT1}, 4, v{vL}
            v_lshl_or_b32 v{vT0}, v{vT1}, 4, v{vT0}
            v_and_b32 v{vT1}, 8, v{vL}
            v_lshl_or_b32 v{vT0}, v{vT1}, 6, v{vT0}
            v_add_u32 v{vT0}, {LDS_O}, v{vT0}
            v_lshlrev_b32 v{vT1}, 1, v{vT1}
            s_waitcnt vmcnt(0)
            """)
            stamp(8)
            e(f"""
            s_barrier
            ds_read2_b32 {vr(X,2)}, v{vT0} offset0:0 offset1:32
            ds_read_b128 {vr(X+4,4)}, v{vT1} offset:{LDS_F}
            ds_read2_b32 {vr(X+2,2)}, v{vT0} offset0:64 offset1:96
            s_waitcnt lgkmcnt(1)
            v_pk_mul_f32 {vr(X,2)}, {vr(X,2)}, {vr(X+4,2)}
            s_waitcnt lgkmcnt(0)
            """)
        else:
            e(f"""
            v_lshrrev_b32 v{vT0}, 5, v{vPb}
            v_add_u32 v{vT0}, {LDS_F}, v{vT0}
            s_waitcnt vmcnt(0)
            """)
            stamp(8)
            e(f"""
            s_barrier
            ds_read_b64 {vr(X,2)}, v{vPa} offset:{LDS_O}
            ds_read_b64 {vr(X+2,2)}, v{vPa} offset:{LDS_O+512}
            ds_read2_b32 {vr(F0,2)}, v{vT0} offset0:0 offset1:4
            s_waitcnt lgkmcnt(0)
            """)
    elif b2:
        e("s_barrier")

    def o_repoll(k):
        e(f"""
        v_max_u32 v{vT0}, v{X}, v{X+1}
        v_max_u32 v{vT1}, v{X+2}, v{X+3}
        v_cmp_eq_u32 {sp(M0)}, -1, v{vT0}
        v_cmp_eq_u32 {sp(M1)}, -1, v{vT1}
        s_or_b64 exec, {sp(M0)}, {sp(M1)}
        s_cbranch_scc0 L_or{k}c
        s_mov_b64 exec, {sp(M0)}
        s_cbranch_execz L_or{k}a
        buffer_load_dwordx2 {vr(X,2)}, v{vPa}, {srd(WS_)}, s{sA} offen sc1
        L_or{k}a:
        s_mov_b64 exec, {sp(M1)}
        s_cbranch_execz L_or{k}b
        buffer_load_dwordx2 {vr(X+2,2)}, v{vPa}, {srd(WS_)}, s{sA} offen offset:512 sc1
        L_or{k}b:
        s_mov_b64 exec, -1
        """)

    if pw:
        pass
    elif t3:
        M2, M3 = sP0 + 6, sF
        if not early:
            e(first_poll)
        if prof and pmode == 1:
            e("s_waitcnt vmcnt(4)")
            stamp(13)
            e("s_waitcnt vmcnt(0)")
            stamp(12)
        e(f"""
        L_ml:
        s_waitcnt vmcnt(0)
        v_max_u32 v{vT0}, v{X+4}, v{X+5}
        v_max_u32 v{vT1}, v{X+6}, v{X+7}
        v_cmp_eq_u32 {sp(M2)}, -1, v{vT0}
        v_cmp_eq_u32 {sp(M3)}, -1, v{vT1}
        """)
        o_repoll(0)
        e(f"""
        L_or0c:
        s_or_b64 exec, {sp(M2)}, {sp(M3)}
        s_cbranch_scc0 L_ml_ok
        s_mov_b64 exec, {sp(M2)}
        s_cbranch_execz L_mla
        buffer_load_dwordx2 {vr(X+4,2)}, v{vPb}, {srd(WS_)}, s{sMl} offen sc1
        L_mla:
        s_mov_b64 exec, {sp(M3)}
        s_cbranch_execz L_mlb
        buffer_load_dwordx2 {vr(X+6,2)}, v{vPb}, {srd(WS_)}, s{sMl} offen offset:512 sc1
        L_mlb:
        s_mov_b64 exec, -1
        {SPIN("L_ml")}
        s_waitcnt vmcnt(0)
        L_ml_ok:
        s_mov_b64 exec, -1
        v_min_f32 v{vMx}, v{X+4}, v{X+6}
        """)
        allreduce(vMx, vT0, "v_min_f32")
        e(f"""
        v_sub_f32 v{F0}, v{vMx}, v{X+4}
        v_sub_f32 v{F1}, v{vMx}, v{X+6}
        v_exp_f32 v{F0}, v{F0}
        v_exp_f32 v{F1}, v{F1}
        v_mul_f32 v{vMx}, v{F0}, v{X+5}
        v_fmac_f32 v{vMx}, v{F1}, v{X+7}
        """)
        allreduce(vMx, vT0, "v_add_f32")
        e(f"""
        v_rcp_f32 v{vMx}, v{vMx}
        v_mul_f32 v{F0}, v{F0}, v{vMx}
        v_mul_f32 v{F1}, v{F1}, v{vMx}
        """)
    else:
        if sel:
            e(f"""
            L_t3b:
            s_cbranch_execz L_t3c
            {o_loads}
            L_ml:
            buffer_load_dwordx2 {vr(X+4,2)}, v{vPb}, {srd(WS_)}, s{sMl if lay else sA} offen offset:{0 if lay else 1024} sc1
            buffer_load_dwordx2 {vr(X+6,2)}, v{vPb}, {srd(WS_)}, s{sMl if lay else sA} offen offset:{512 if lay else 1056} sc1
            s_waitcnt vmcnt(0)
            """)
            o_repoll(0)
            e(f"""
            s_branch L_t3c
            L_or0c:
            s_mov_b64 exec, -1
            L_t3c:
            v_min_f32 v{vMx}, v{X+4}, v{X+6}
            """)
        else:
            e(f"""
            L_t3b:
            s_cbranch_execz L_t3c
            L_ml:
            buffer_load_dwordx2 {vr(X+4,2)}, v{vPb}, {srd(WS_)}, s{sA} offen offset:1024 sc1
            buffer_load_dwordx2 {vr(X+6,2)}, v{vPb}, {srd(WS_)}, s{sA} offen offset:1056 sc1
            {o_loads}
            s_waitcnt vmcnt(0)
            {o_check}
            s_mov_b64 {sp(sP0+2)}, vcc
            s_cbranch_vccz L_t3c
            {o_loads}
            L_t3c:
            v_min_f32 v{vMx}, v{X+4}, v{X+6}
            """)
        allreduce(vMx, vT0, "v_min_f32")
        e(f"""
        v_sub_f32 v{F0}, v{vMx}, v{X+4}
        v_sub_f32 v{F1}, v{vMx}, v{X+6}
        v_exp_f32 v{F0}, v{F0}
        v_exp_f32 v{F1}, v{F1}
        v_mul_f32 v{vMx}, v{F0}, v{X+5}
        v_fmac_f32 v{vMx}, v{F1}, v{X+7}
        """)
        allreduce(vMx, vT0, "v_add_f32")
        e(f"""
        v_cmp_u_f32 vcc, v{vMx}, v{vMx}
        s_cbranch_vccz L_ml_ok
        {"" if sel else "s_waitcnt vmcnt(0)"}
        {SPIN("L_ml")}
        L_ml_ok:
        v_rcp_f32 v{vMx}, v{vMx}
        v_mul_f32 v{F0}, v{F0}, v{vMx}
        v_mul_f32 v{F1}, v{F1}, v{vMx}
        """)
    if not pw:
        stamp(8)
    if pw:
        pass
    elif sel:
        e(f"""
        s_cbranch_execz L_t3e
        s_or_b64 {sp(M0)}, {sp(M0)}, {sp(M1)}
        s_cbranch_scc0 L_t3e
        L_h1:
        s_waitcnt vmcnt(0)
        """)
        o_repoll(1)
        e(f"""
        {SPIN("L_h1")}
        s_waitcnt vmcnt(0)
        L_or1c:
        s_mov_b64 exec, -1
        L_t3e:
        """)
    else:
        e(f"""
        s_cbranch_execz L_t3e
        s_cmp_eq_u64 {sp(sP0+2)}, 0
        s_cbranch_scc1 L_t3e
        L_h1:
        s_waitcnt vmcnt(0)
        {o_check}
        s_cbranch_vccz L_t3e
        {o_loads}
        {SPIN("L_h1")}
        s_waitcnt vmcnt(0)
        L_t3e:
        """)
    stamp(9)
    if vc3:
        assert pw
        e(f"""
        v_pk_fma_f32 {vr(X,2)}, {vr(X+2,2)}, {vr(X+6,2)}, {vr(X,2)}
        v_add_f32 v{X}, v{X}, v{X+1}
        v_add_f32_dpp v{X}, v{X}, v{X} row_ror:8 row_mask:0xf bank_mask:0xf
        v_cvt_pk_bf16_f32 v{PB}, v{X}, v{X}
        """)
        stamp(12)
        AB = [vA, vA + 4, vS, vS + 4] if vc3 == 2 else [vA, vA + 4]
        def bands(i):
            for d in range(4):
                e(f"v_and_b32_dpp v{AB[i % len(AB)]+d}, v{PB}, v{vM+d} row_newbcast:{i} row_mask:0xf bank_mask:0xf")
        bands(0)
        for i in range(8):
            if i < 7:
                bands(i + 1)
            b = RING + 16 * wo_slots[i >> 2] + 4 * (i & 3)
            e(f"v_mfma_f32_16x16x32_bf16 {vr(E,4)}, {vr(AB[i % len(AB)],4)}, {vr(b,4)}, {'0' if i == 0 else vr(E,4)}")
    else:
        e(f"""
        v_mfma_f32_16x16x4_f32 {vr(D0,4)}, v{X}, v{F0}, 0
        v_mfma_f32_16x16x4_f32 {vr(D1,4)}, v{X+1}, v{F0}, 0
        v_mfma_f32_16x16x4_f32 {vr(D0,4)}, v{X+2}, v{F1}, {vr(D0,4)}
        v_mfma_f32_16x16x4_f32 {vr(D1,4)}, v{X+3}, v{F1}, {vr(D1,4)}
        """)
        for r in range(4):
            e(f"v_cvt_pk_bf16_f32 v{PB+2*r}, v{D0+r}, v{D0+r}")
        for r in range(4):
            e(f"v_cvt_pk_bf16_f32 v{PB+2*r+1}, v{D1+r}, v{D1+r}")
        if pw:
            stamp(12)
        diag_mfma(E, [PB + r for r in range(8)], [RING + 16 * wo_slots[r >> 2] + 4 * (r & 3) for r in range(8)], True)
    e(f"""
    s_cbranch_execz L_t4b
    s_mov_b64 exec, {sp(sP0)}
    buffer_store_dwordx4 {vr(E,4)}, v{vPc}, {srd(WS_)}, s{sB} offen sc1
    """)
    if pw:
        stamp(13)
    if t4m in (1, 2):
        e("s_waitcnt vmcnt(0)")
    if t4bar:
        e("s_barrier")
    stamp(11)
    e(FIN)
    if not asplit:
        e(f"""
        L_c3a:
        v_mov_b32 v{vPd}, 0
        s_waitcnt lgkmcnt(0)
        s_barrier
        """)
    padspot("c3")
    e("L_c3:")
    stamp(5)
    e(f"""
    v_lshrrev_b32 v{vT0}, 5, v{vL}
    v_lshlrev_b32 v{vPb}, 6, v{vT0}
    """)
    if xl:
        e(f"""
        s_mov_b64 exec, 0xff
        v_cmp_ne_u32 {sp(sP0)}, s{sXc}, v{vH+28}
        s_mov_b64 exec, -1
        """)

    def hstore(txt, k):
        if not xl or str(k) in str(hs1):
            e(txt + " sc1")
            return
        e(f"""
        s_cmp_eq_u64 {sp(sP0)}, 0
        s_cbranch_scc1 L_hs{k}a
        {txt} sc1
        s_branch L_hs{k}b
        L_hs{k}a:
        {txt}
        L_hs{k}b:
        """)
    for i in range(4):
        e(f"ds_read_b128 {vr(Z+4*i,4)}, v{vPb} offset:{LDS_ML+16*i}")
    e(f"""
    v_bfe_u32 v{vT1}, v{vL}, 2, 2
    v_lshl_or_b32 v{vT1}, v{vT0}, 2, v{vT1}
    v_lshlrev_b32 v{vPc}, 11, v{vT1}
    {f"v_cmp_eq_u32 {sp(sP0+2)}, s{sS}, v{vT1}" if pw else ""}
    v_and_b32 v{vT1}, 3, v{vL}
    v_lshl_or_b32 v{vPa}, v{vT1}, {4 if lay else 5}, v{vPc}
    {f"v_lshlrev_b32 v{vPc}, 4, v{vT1}" if lay else ""}
    {f"v_lshl_or_b32 v{vPc}, v{vT0}, 6, v{vPc}" if lay else ""}
    v_and_b32 v{vT1}, 16, v{vL}
    {f"v_lshl_or_b32 v{vPa}, v{vT1}, 2, v{vPa}" if lay else f"v_or_b32 v{vPa}, v{vPa}, v{vT1}"}
    {f"s_lshl_b32 s{sMl}, s{sLid}, 7" if lay else ""}
    {f"s_add_u32 s{sMl}, s{sMl}, {WS_ML}" if lay else ""}
    s_and_b32 s{sA}, s{sLid}, 0xf8
    s_lshl_b32 s{sA}, s{sA}, 11
    s_add_u32 s{sA}, s{sA}, {WS_H1}
    s_lshl_b32 s{sT0}, s{sS}, 3
    s_add_u32 s{sB}, s{sA}, s{sT0}
    s_lshl_b32 s{sT0}, s{sS}, 7
    s_add_u32 s{sA}, s{sA}, s{sT0}
    L_c3w:
    s_waitcnt lgkmcnt(0)
    """)
    if nb1:
        e(f"""
        v_max3_u32 v{vT0}, v{Z+1}, v{Z+3}, v{Z+5}
        v_max3_u32 v{vT2}, v{Z+7}, v{Z+9}, v{Z+11}
        v_max3_u32 v{vT0}, v{vT0}, v{Z+13}, v{Z+15}
        v_max_u32 v{vT0}, v{vT0}, v{vT2}
        v_cmp_eq_u32 vcc, -1, v{vT0}
        s_cbranch_vccz L_c3ok
        {"s_setprio 0" if nb1 == 2 else ""}
        """)
        for i in range(4):
            e(f"ds_read_b128 {vr(Z+4*i,4)}, v{vPb} offset:{LDS_ML+16*i}")
        e(f"""
        {SPIN("L_c3w")}
        s_waitcnt lgkmcnt(0)
        L_c3ok:
        {"s_setprio 3" if nb1 == 2 else ""}
        """)
    e(f"""
    v_min3_f32 v{vT2}, v{Z}, v{Z+2}, v{Z+4}
    v_min3_f32 v{vT0}, v{Z+6}, v{Z+8}, v{Z+10}
    v_min3_f32 v{vT2}, v{vT2}, v{Z+12}, v{Z+14}
    v_min_f32 v{vT2}, v{vT2}, v{vT0}
    """)
    for w in range(8):
        e(f"v_sub_f32 v{Z+2*w}, v{vT2}, v{Z+2*w}")
    for w in range(8):
        e(f"v_exp_f32 v{Z+2*w}, v{Z+2*w}")
    e(f"v_mul_f32 v{vT2+1}, v{Z}, v{Z+1}")
    for w in range(1, 8):
        e(f"v_fmac_f32 v{vT2+1}, v{Z+2*w}, v{Z+2*w+1}")
    if lay:
        e(f"""
        v_mov_b32 v{vS}, v{vT2}
        v_mov_b32 v{vS+1}, v{vT2+1}
        v_mov_b32 v{vS+2}, v{vT2}
        v_mov_b32 v{vS+3}, v{vT2+1}
        s_mov_b32 exec_lo, 15
        s_mov_b32 exec_hi, 15
        """)
        hstore(f"buffer_store_dwordx4 {vr(vS,4)}, v{vPc}, {srd(WS_)}, s{sMl} offen", 0)
        if pw and pwo:
            e(f"ds_write_b128 v{vPc}, {vr(vS,4)} offset:{LDS_OML}")
        e("s_mov_b64 exec, -1")
        if pw:
            e(f"""
            s_lshl_b32 s{sT0}, s{sS}, 7
            v_and_b32 v{vH+26}, 0x7f, v{vPa}
            v_or_b32 v{vH+26}, s{sT0}, v{vH+26}
            """)
    else:
        e(f"""
        s_mov_b32 exec_lo, 0x1111
        s_mov_b32 exec_hi, 0x1111
        buffer_store_dwordx2 {vr(vT2,2)}, v{vPc}, {srd(WS_)}, s{sB} offen offset:1024 sc1
        s_mov_b64 exec, -1
        """)
    if not asplit:
        finish(vm.copy())
    Y = [RING + 16 * fs[-1 - (w >> 2)] + 4 * (w & 3) for w in range(8)]
    e(f"""
    s_waitcnt lgkmcnt(0)
    s_barrier
    """)
    stamp(7)
    if wqnotail:
        e('s_cmp_eq_u32 s2, s2\ns_cbranch_scc1 L_fin')
    e("L_t2b:")
    for w in range(8):
        e(f"ds_read_b128 {vr(Y[w],4)}, v{vLin} offset:{LDS_RED+1024*w}")
    for w in range(8):
        if w in (0, 2, 4, 6):
            e(f"s_waitcnt lgkmcnt({6-w})")
        for h in (0, 2):
            if w == 0:
                e(f"v_pk_mul_f32 {vr(vD+h,2)}, {vr(Y[0]+h,2)}, {vr(Z,2)} op_sel_hi:[1,0]")
            else:
                e(f"v_pk_fma_f32 {vr(vD+h,2)}, {vr(Y[w]+h,2)}, {vr(Z+2*w,2)}, {vr(vD+h,2)} op_sel_hi:[1,0,1]")
    if not t3:
        e("s_cbranch_execz L_t3b")
    hstore(f"buffer_store_dwordx4 {vr(vD,4)}, v{vPa}, {srd(WS_)}, s{sA} offen", 1)
    if pw:
        stamp(11)
        e(f"""
        s_mov_b64 exec, {sp(sP0+2)}
        ds_write_b128 v{vH+26}, {vr(vD,4)} offset:{LDS_O}
        s_waitcnt lgkmcnt(0)
        s_barrier
        {"s_barrier" if prof else ""}
        """)
    elif b2:
        e("s_barrier")
    if not pw:
        stamp(11)
    e(FIN)
    R = RING + 16 * fs[-1]
    padspot("B67")
    e(f"""
    L_B67:
    {"" if nb1 else "s_waitcnt lgkmcnt(0)"}
    {"" if nb1 else "s_barrier"}
    """)
    stamp(5)
    e(f"""
    v_lshrrev_b32 v{vT0}, 4, v{vL}
    v_and_b32 v{vT1}, 1, v{vL}
    v_lshlrev_b32 v{vT0}, 1, v{vT0}
    v_lshl_or_b32 v{vPd}, v{vT1}, 3, v{vT0}
    s_lshl_b32 s{sP0+2}, s{sLid}, 12
    s_add_u32 s{sP0+2}, s{sP0+2}, {WS_I2}
    s_lshr_b32 s{sP0+3}, s{sLid}, 7
    s_mul_i32 s{sP0+3}, s{sP0+3}, 1152
    s_lshl_b32 s{sT0}, s{sIdx}, 4
    s_add_u32 s{sP0+3}, s{sP0+3}, s{sT0}
    v_add_u32 v{vPd}, s{sP0+3}, v{vPd}
    s_and_b32 s{sEp}, s{sLid}, 0x80
    s_add_u32 s{sEp}, s{sEp}, {WS_EP}
    s_load_dword s{sTag}, {sp(WS_)}, s{sEp}
    v_mov_b32 v{vPc}, s{sEp}
    """)
    if lay:
        e(f"""
        v_lshrrev_b32 v{vT0}, 1, v{vL}
        v_mul_u32_u24 v{vPa}, 2304, v{vT0}
        v_lshl_or_b32 v{vPa}, v{vT1}, 6, v{vPa}
        s_and_b32 s{sT0}, s{sLid}, 0x80
        s_mul_i32 s{sT0}, s{sT0}, 2304
        s_add_u32 s{sT0}, s{sT0}, {WS_I2}
        s_and_b32 s{sT1}, s{sIdx}, 3
        s_lshl_b32 s{sT1}, s{sT1}, 4
        s_add_u32 s{sT0}, s{sT0}, s{sT1}
        s_lshr_b32 s{sT1}, s{sIdx}, 2
        s_lshl_b32 s{sT1}, s{sT1}, 7
        s_add_u32 s{sP0+2}, s{sT0}, s{sT1}
        s_add_u32 s{sP0+3}, s{sP0+2}, {73728}
        s_add_u32 s{sP0+4}, s{sP0+2}, {2*73728}
        s_add_u32 s{sP0+5}, s{sP0+2}, {3*73728}
        """)
    if lay == 2:
        e(f"""
        v_mul_u32_u24 v{vPa}, 2304, v{vT0}
        v_lshl_or_b32 v{vPa}, v{vT1}, 4, v{vPa}
        s_and_b32 s{sT0}, s{sLid}, 0x80
        s_mul_i32 s{sT0}, s{sT0}, 2304
        s_add_u32 s{sT0}, s{sT0}, {WS_I2}
        s_lshl_b32 s{sT1}, s{sIdx}, 5
        s_add_u32 s{sP0+2}, s{sT0}, s{sT1}
        s_add_u32 s{sP0+3}, s{sP0+2}, {73728}
        s_add_u32 s{sP0+4}, s{sP0+2}, {2*73728}
        s_add_u32 s{sP0+5}, s{sP0+2}, {3*73728}
        v_lshrrev_b32 v{vT0}, 4, v{vL}
        v_lshlrev_b32 v{vT0}, 1, v{vT0}
        v_lshl_or_b32 v{vPd}, v{vT1}, 4, v{vT0}
        s_lshr_b32 s{sT0}, s{sLid}, 7
        s_mul_i32 s{sT0}, s{sT0}, 1152
        s_and_b32 s{sT1}, s{sIdx}, 0x78
        s_lshl_b32 s{sT1}, s{sT1}, 4
        s_add_u32 s{sT0}, s{sT0}, s{sT1}
        s_and_b32 s{sT1}, s{sIdx}, 3
        s_lshl_b32 s{sT1}, s{sT1}, 5
        s_add_u32 s{sT0}, s{sT0}, s{sT1}
        s_and_b32 s{sT1}, s{sIdx}, 4
        s_lshl_b32 s{sT1}, s{sT1}, 1
        s_add_u32 s{sT0}, s{sT0}, s{sT1}
        v_add_u32 v{vPd}, s{sT0}, v{vPd}
        """)

    def t4_load(i):
        if lay:
            return f"buffer_load_dwordx4 {vr(R+4*i,4)}, v{vPa}, {srd(WS_)}, s{sP0+2+i} offen sc1"
        return f"buffer_load_dwordx4 {vr(R+4*i,4)}, v{vLin}, {srd(WS_)}, s{sP0+2} offen offset:{1024*i} sc1"
    if pw:
        PM = sF
        e(f"""
        s_lshl_b32 s{sT0}, s{sS}, 3
        s_lshl_b64 {sp(PM)}, 0xff, s{sT0}
        s_not_b64 {sp(PM)}, {sp(PM)}
        v_and_b32 v{vT0}, 7, v{vL}
        v_lshlrev_b32 v{vPb}, 7, v{vT0}
        v_lshlrev_b32 v{vH+26}, 2, v{vT0}
        s_and_b32 s{sT0}, s{sLid}, 4
        s_lshl_b32 s{sT0}, s{sT0}, 4
        v_mov_b32 v{vH+27}, s{sT0}
        v_cmp_ne_u32 {sp(sF+2)}, s{sS}, v{vT0}
        """)
    v67 = vm.copy()
    if pw and pwe:
        assert pwo
        early67 = (f"""
        s_cmp_eq_u32 s{sWm if rs else sW}, 6
        s_cbranch_scc1 L_e6
        s_mov_b64 exec, {sp(PM)}
        buffer_load_dwordx4 {vr(vH+12,4)}, v{vLin}, {srd(WS_)}, s{sA} offen sc1
        s_branch L_e7
        L_e6:
        s_mov_b64 exec, {sp(sF+2)}
        buffer_load_dwordx2 {vr(vH+8,2)}, v{vPb}, {srd(WS_)}, s{sMl} offen sc1
        L_e7:
        s_mov_b64 exec, -1
        """)
    if pw and pwe == 1:
        e(early67)
        v67.add("poll")
    finish(v67, False)
    if pw and pwe == 2:
        e(early67)
    e(f"""
    s_waitcnt lgkmcnt(0)
    s_barrier
    """)
    stamp(7)
    if wqnotail:
        e('s_cmp_eq_u32 s2, s2\ns_cbranch_scc1 L_fin')
    if pw:
        PR = [(vH + 12 if (pwe and k == 0) else R + 4 * k) for k in range(pw)]
        pl = lambda k: f"buffer_load_dwordx4 {vr(PR[k],4)}, v{vLin}, {srd(WS_)}, s{sA} offen sc1"
        e(f"""
        s_cmp_eq_u32 s{sWm if rs else sW}, 6
        s_cbranch_scc1 L_w6
        s_mov_b64 exec, {sp(PM)}
        """)
        for k in range(1 if pwe else 0, pw):
            e(pl(k))
        e("L_pw:")
        for k in range(pw):
            e(f"""
            s_waitcnt vmcnt({pw-1})
            v_max3_u32 v{vT0}, v{PR[k]}, v{PR[k]+1}, v{PR[k]+2}
            v_max_u32 v{vT0}, v{vT0}, v{PR[k]+3}
            v_cmp_ne_u32 vcc, -1, v{vT0}
            s_cbranch_vccz L_pw{k}
            s_mov_b64 exec, vcc
            ds_write_b128 v{vLin}, {vr(PR[k],4)} offset:{LDS_O}
            s_andn2_b64 {sp(PM)}, {sp(PM)}, vcc
            s_cbranch_scc0 L_pwd
            s_mov_b64 exec, {sp(PM)}
            L_pw{k}:
            {pl(k)}
            """)
        e(f"""
        {SPIN("L_pw")}
        L_pwd:
        s_waitcnt lgkmcnt(0)
        """)
        stamp(9)
        e(f"""
        s_barrier
        {"s_barrier" if prof else ""}
        s_waitcnt vmcnt(0)
        {FIN}
        """)
        padspot("w6")
        e("L_w6:")
        XM = vH + 8
        if pwo:
            e(f"""
            s_not_b64 exec, {sp(sF+2)}
            ds_read_b64 {vr(XM,2)}, v{vH+27} offset:{LDS_OML}
            s_mov_b64 exec, {sp(sF+2)}
            {"s_branch L_ml6w" if pwe else ""}
            L_ml6:
            """)
        else:
            e("L_ml6:")
        e(f"""
        buffer_load_dwordx2 {vr(XM,2)}, v{vPb}, {srd(WS_)}, s{sMl} offen sc1
        L_ml6w:
        s_waitcnt vmcnt(0)
        v_max_u32 v{vT0}, v{XM}, v{XM+1}
        v_cmp_eq_u32 vcc, -1, v{vT0}
        s_cbranch_vccz L_ml6ok
        {SPIN("L_ml6")}
        L_ml6ok:
        s_mov_b64 exec, -1
        {"s_waitcnt lgkmcnt(0)" if pwo else ""}
        v_min_f32_dpp v{vT0}, v{XM}, v{XM} row_ror:4 row_mask:0xf bank_mask:0xf
        v_min_f32_dpp v{vT0}, v{vT0}, v{vT0} row_ror:2 row_mask:0xf bank_mask:0xf
        v_min_f32_dpp v{vT0}, v{vT0}, v{vT0} row_ror:1 row_mask:0xf bank_mask:0xf
        v_sub_f32 v{vT0}, v{vT0}, v{XM}
        v_exp_f32 v{XM}, v{vT0}
        v_mul_f32 v{XM+1}, v{XM}, v{XM+1}
        v_add_f32_dpp v{vT0}, v{XM+1}, v{XM+1} row_ror:4 row_mask:0xf bank_mask:0xf
        v_add_f32_dpp v{vT0}, v{vT0}, v{vT0} row_ror:2 row_mask:0xf bank_mask:0xf
        v_add_f32_dpp v{vT0}, v{vT0}, v{vT0} row_ror:1 row_mask:0xf bank_mask:0xf
        v_rcp_f32 v{vT0}, v{vT0}
        s_mov_b64 exec, 0xff
        v_mul_f32 v{XM}, v{XM}, v{vT0}
        ds_write_b32 v{vH+26}, v{XM} offset:{LDS_F}
        s_waitcnt lgkmcnt(0)
        s_mov_b64 exec, -1
        """)
        stamp(8)
        e("s_barrier")
    e(f"""
    {"s_barrier" if b2 and not pw else ""}
    {"s_barrier" if pw and prof and t4m < 2 else ""}
    {"" if t4d else f"s_cmp_lg_u32 s{sWm if rs else sW}, 6"}
    {"" if t4d else "s_cbranch_scc1 L_fin"}
    s_cmp_ge_u32 s{sIdx}, 72
    s_cbranch_scc1 L_fin
    {f"s_and_b32 s{sT0}, s{sIdx}, {wqt4}" if wqt4 else ""}
    {"s_cbranch_scc1 L_fin" if wqt4 else ""}
    {"s_barrier" if t4bar and not (pw and prof) and t4m < 2 else ""}
    L_t4b:
    s_cbranch_execz L_t4c
    {"" if sel else "L_h2:"}
    """)
    for i in range(4):
        e(t4_load(i))
    if t4m >= 2:
        assert pw
        e("s_barrier")
    if sel:
        MM = [sF + 2 * i for i in range(4)]
        if p4:
            e("s_waitcnt vmcnt(0)")
        e("L_h2:")
        if not p4:
            e("s_waitcnt vmcnt(0)")
        for i in range(4):
            e(f"v_max3_u32 v{vA+i}, v{R+4*i}, v{R+4*i+1}, v{R+4*i+2}")
        for i in range(4):
            e(f"v_max_u32 v{vA+i}, v{vA+i}, v{R+4*i+3}")
        for i in range(4):
            e(f"v_cmp_eq_u32 {sp(MM[i])}, -1, v{vA+i}")
        e(f"""
        s_or_b64 vcc, {sp(MM[0])}, {sp(MM[1])}
        s_or_b64 exec, {sp(MM[2])}, {sp(MM[3])}
        s_or_b64 exec, exec, vcc
        s_cbranch_scc0 L_h2_got
        """)
        for i in range(4):
            e(f"""
            s_mov_b64 exec, {sp(MM[i])}
            s_cbranch_execz L_h2_{i}
            {t4_load(i)}
            L_h2_{i}:
            """)
        e(f"""
        s_mov_b64 exec, -1
        {f"s_waitcnt vmcnt({p4})" if p4 else ""}
        {SPIN("L_h2")}
        s_waitcnt vmcnt(0)
        L_h2_got:
        s_mov_b64 exec, -1
        """)
    else:
        e("s_waitcnt vmcnt(0)")
    e("L_t4c:")
    if p4:
        R0, R = R, vS
        for h in (0, 2):
            e(f"v_pk_add_f32 {vr(R+h,2)}, {vr(R0+h,2)}, {vr(R0+4+h,2)}")
        for h in (0, 2):
            e(f"v_pk_add_f32 {vr(R+4+h,2)}, {vr(R0+8+h,2)}, {vr(R0+12+h,2)}")
        for h in (0, 2):
            e(f"v_pk_add_f32 {vr(R+h,2)}, {vr(R+h,2)}, {vr(R+4+h,2)}")
    else:
        pk_sum(R, 4)
    e(f"""
    v_permlane32_swap_b32 v{R}, v{R+2}
    v_permlane32_swap_b32 v{R+1}, v{R+3}
    v_add_f32 v{R}, v{R}, v{R+2}
    v_add_f32 v{R+1}, v{R+1}, v{R+3}
    v_permlane16_swap_b32 v{R}, v{R+1}
    v_add_f32 v{R}, v{R}, v{R+1}
    v_add_f32_dpp v{R}, v{R}, v{R} row_ror:2 row_mask:0xf bank_mask:0xf
    v_add_f32_dpp v{R}, v{R}, v{R} row_ror:4 row_mask:0xf bank_mask:0xf
    v_add_f32_dpp v{R}, v{R}, v{R} row_ror:8 row_mask:0xf bank_mask:0xf
    """)
    if not sel:
        e(f"""
        v_cmp_u_f32 vcc, v{R}, v{R}
        s_cbranch_vccz L_h2_ok
        {SPIN("L_h2")}
        L_h2_ok:
        """)
    e(f"""
    v_cvt_pk_bf16_f32 v{R}, v{R}, v{R}
    """)
    stamp(9)
    if dry:
        e("s_cbranch_execz L_dry_ret")
    e(f"""
    s_mov_b32 exec_lo, 0x30003
    s_mov_b32 exec_hi, 0x30003
    global_store_short v{vPd}, v{R}, {sp(OUT_)}{" " + osc.replace("_", " ") if osc else ""}
    {"s_waitcnt vmcnt(1)" if p4 else ""}
    s_cmp_lg_u32 s{sIdx}, 0
    s_cbranch_scc1 L_fin
    s_add_u32 s{sTag}, s{sTag}, {EPC}
    v_mov_b32 v{R+1}, s{sTag}
    s_mov_b64 exec, 1
    global_store_dword v{vPc}, v{R+1}, {sp(WS_)}{" " + osc.replace("_", " ") if osc else ""}
    L_fin:
    """)
    if prof:
        e("s_waitcnt vmcnt(0)")
        stamp(10)
        e(f"""
        s_waitcnt lgkmcnt(0)
        s_mov_b64 exec, 1
        s_lshl_b32 s{sT0}, s{sLid}, 3
        s_add_u32 s{sT0}, s{sT0}, s{sW}
        s_lshl_b32 s{sT0}, s{sT0}, 6
        s_add_u32 s{sT0}, s{sT0}, {WS_PROF}
        v_mov_b32 v0, 0
        """)
        if pmode == 5:
            stamp(16, 5)
            e(f"s_lshl_b32 s{sT0}, s{sLid}, 3")
            e(f"s_add_u32 s{sT0}, s{sT0}, s{sW}")
            e(f"s_lshl_b32 s{sT0}, s{sT0}, 7")
            e(f"s_add_u32 s{sT0}, s{sT0}, {WS_PROF}")
            for k in range(16):
                e(f"v_mov_b32 v{8+k}, s{sProf+k}")
            for k in range(6):
                e(f"v_mov_b32 v{24+k}, s{sProf+16+2*k}")
            e(f"s_getreg_b32 s{sT1}, hwreg(HW_REG_XCC_ID)")
            e(f"v_mov_b32 v30, s{sT1}")
            e(f"s_getreg_b32 s{sT1}, hwreg(HW_REG_HW_ID)")
            e(f"v_mov_b32 v31, s{sT1}")
            for k in range(6):
                e(f"buffer_store_dwordx4 v[{8+4*k}:{11+4*k}], v0, {srd(WS_)}, s{sT0} offen offset:{16*k}")
        else:
          for k in range(14):
            e(f"v_mov_b32 v{8+k}, s{sProf+2*k}")
          e(f"s_getreg_b32 s{sT1}, hwreg(HW_REG_XCC_ID)")
          e(f"v_mov_b32 v22, s{sT1}")
          e(f"v_mov_b32 v23, s{sSpin}")
          for k in range(4):
            e(f"buffer_store_dwordx4 v[{8+4*k}:{11+4*k}], v0, {srd(WS_)}, s{sT0} offen offset:{16*k}")
    if pad:
        e(f"""
        s_waitcnt vmcnt(0) lgkmcnt(0)
        L_pad:
        s_memrealtime {sp(sProf+2)}
        s_waitcnt lgkmcnt(0)
        s_sub_u32 s{sT0}, s{sProf+2}, s{sProf}
        s_cmp_lt_u32 s{sT0}, {pad}
        s_cbranch_scc1 L_pad
        """)
    e("L_end:")
    e("s_endpgm")
    nsg = (sProf + 32 if pmode == 5 else sProf + 28) if (prof or pad) else sProf
    e.raw(f""".section .rodata,"a"
.p2align 6
.amdhsa_kernel {KNAME}
  .amdhsa_next_free_vgpr 256
  .amdhsa_next_free_sgpr {nsg}
  .amdhsa_accum_offset 256
  .amdhsa_group_segment_fixed_size 0
  .amdhsa_kernarg_size 104
  .amdhsa_user_sgpr_count 2
  .amdhsa_user_sgpr_kernarg_segment_ptr 1
  .amdhsa_system_sgpr_workgroup_id_x 1
.end_amdhsa_kernel""")
    return e.text()


if __name__ == "__main__":
    kw = {}
    for a in sys.argv[2:]:
        k, v = a.split("=")
        try:
            v = int(v, 0)
        except ValueError:
            pass
        kw[k] = v
    open(sys.argv[1], "w").write(gen(**kw))
```

```python
import sys
from emit import Emitter

KNAME = "concat_heads__gqa_block_cached__gqa_block_cached__decode_kernel"
HEADER = open("header.txt").read()

WS_QP, WS_EP, WS_FL, WS_H1, WS_I2, WS_PROF = 0x0, 0x10000, 0x20000, 0x40000, 0x100000, 0x200000
WS_ML = 0x30000
WS_QP2 = 0x1A0000
EPC = 0x9e3779b9
LDS_Q, LDS_PART, LDS_ML, LDS_CNT, LDS_RED, LDS_SIZE = 0, 512, 1280, 1408, 2048, 10240
LDS_F, LDS_OML, LDS_O = 1472, 1536, 10240

vL, vLin, vK, vX = 0, 1, 2, 3
vZ = 54
vM = 4
vQ = 8
vS = 24
vA = 40
vD = 48
vMx, vAl, vAD, vT0 = 52, 53, 54, 55
vLs = 56
vN0, vT1 = 58, 59
vN1, vLt = 60, 61
vT2 = 62
RING = 64
NSLOT = 10
vH = 224
sKa, sKvh, sS, sIdx, sLid, sW, sT0, sT1 = 3, 5, 6, 7, 8, 9, 10, 11
K_, V_, WQ_, WO_, WS_ = 12, 16, 20, 24, 28
OUT_, DBG_, sX = 32, 34, 36
sF = 60
sTag, sEp, sFo = 38, 58, 59
sC, sStep, sK, sV, sWq, sWo, sWo2, sSpin = 40, 41, 42, 43, 44, 45, 46, 47
sA, sB, sWm = 48, 4, 49
sP0 = 50
sMl = 69
sXc = 62
sProf = 70


def srd(b):
    return f"s[{b}:{b+3}]"


def sp(b):
    return f"s[{b}:{b+1}]"


def vr(b, n):
    return f"v[{b}:{b+n-1}]"


class VM:
    def __init__(self, e):
        self.e = e
        self.ops = []
        self.done = 0

    def add(self, tag):
        self.ops.append(tag)

    def wait_n(self, n):
        n = max(n, 0)
        if len(self.ops) - self.done > n:
            assert n <= 63
            self.e(f"s_waitcnt vmcnt({n})")
            self.done = len(self.ops) - n

    def wait_tag(self, tag):
        last = max(i for i, t in enumerate(self.ops) if t == tag)
        self.wait_n(len(self.ops) - 1 - last)

    def copy(self):
        v = VM(self.e)
        v.ops = list(self.ops)
        v.done = self.done
        return v


def gen(npre=7, upre=14, umain=12, uctl=9, la=5, ratio=3, jctl=1, jpoll=7, pr="10,14,16", woat=16, wosplit=0, wqnoqw=0, wqnocomp=0, wqnotail=0, wqnoclr=0, wqcol=0, ntw="nt", wp=2, xq=1, qf="nt", wqg=8, wqs=0, uwo=12, wopos=2, prend=1, pre7=0, kq=0, cup=0, wqk=0, fp=1, b2=0, hop="c3,B67,w6", hop2="", hope=0, hop2at=1, rep=0, wqt4=0, nb1=1, fine="7", rs=1, wo2=8, wo3=0, hopat=0, early_s="WS", qs="", clr=1, t4bar=1, lay=1, xl=1, idmap=0, t3=1, early=0, p4=0, p3=0, t4x=0, t4d=0, t4m=1, vc3=1, pw=3, pwe=0, pwo=1, hs1="", pfo=0, pfq=0, pfk=0, pfc="sc1", pfw=7, pfm=0, osc="", t3c=0, uq=0, pf1=9, pf2=11, nt="nt", ntq="nt", lead=1, prof=False,
        spin=1 << 16, prio=True, pad=0, dry=False, pmode=1, asplit=True, qprio=0, cprio2=-1, rot=0, noflag=0, sx=0, wqp=-1, sel=1, cx=0, wqoff=0, wqsrc=24, wqstr=13, seg=64):
    e = Emitter()
    NT = (" " + nt) if nt else ""
    NTQ = (" " + ntq) if ntq else ""
    NTW = (" " + ntw) if ntw else ""
    if lead == 1:
        seq = ["K0", "K1"] + [x for n in range(6) for x in (f"V{n}", f"K{n+2}")] + ["V6", "V7"]
    elif lead == 2:
        seq = ["K0", "K1", "K2"] + [x for n in range(5) for x in (f"V{n}", f"K{n+3}")] + ["V5", "V6", "V7"]
    elif lead == 3:
        seq = ["K0", "K1", "V0", "K2", "V1", "K3", "V2", "K4", "V3", "K5", "V4", "K6", "K7", "V5", "V6", "V7"]
    elif lead == 4:
        seq = "K0 K1 V0 V1 K2 K3 V2 V3 K4 K5 V4 V5 K6 K7 V6 V7".split()
    elif lead == 5:
        seq = "K0 K1 V0 K2 K3 V1 V2 K4 K5 V3 V4 K6 K7 V5 V6 V7".split()
    elif lead == 6:
        seq = "K0 K1 V0 K2 V1 K3 V2 K4 V3 K5 V4 V5 K6 K7 V6 V7".split()
    elif lead == 7:
        seq = "K0 K1 V0 V1 K2 K3 V2 K4 V3 K5 V4 K6 V5 K7 V6 V7".split()
    for n in range(8):
        assert seq.index(f"V{n}") > seq.index(f"K{n|1}")
    assert len(seq) == 16 and len(set(seq)) == 16
    free = list(range(NSLOT - 2 if woat >= 0 else NSLOT))
    slot = {}
    steps = [int(x) for x in str(pr).split(",") if x != ""]
    p0 = len(steps)
    assert p0 <= 3

    P5 = {0: 0, 1: 1, 3: 2, 5: 3, 7: 4, 10: 5}

    def stamp(k, kind=1):
        if prof and pmode == 5:
            if kind == 1 and k in P5:
                e(f"s_memrealtime {sp(sProf+16+2*P5[k])}")
            if kind == 5:
                if k > 0:
                    e("s_waitcnt lgkmcnt(0)")
                    e(f"s_mov_b32 s{sProf+k-1}, s{sProf+28+2*((k-1)&1)}")
                if k < 16:
                    e(f"s_memrealtime {sp(sProf+28+2*(k&1))}")
        elif prof and ((k == 0 and kind == 1) or (kind == pmode and kind != 5)):
            e(f"s_memrealtime {sp(sProf+2*k)}")

    FIN = "s_branch L_fin" if (prof or pad) else "s_endpgm"

    def issue_load(t, i):
        r = RING + 16 * slot[t] + 4 * i
        if t[0] == "K":
            e(f"buffer_load_dwordx4 {vr(r,4)}, v{vK}, {srd(K_)}, s{sK} offen offset:{64*i}{NT}")
        else:
            e(f"buffer_load_dwordx4 {vr(r,4)}, v{vLin}, {srd(V_)}, s{sV} offen offset:{1024*i}{NT}")

    def issue_end(t):
        if t[1] != "7":
            s = sK if t[0] == "K" else sV
            e(f"s_add_u32 s{s}, s{s}, s{sStep}")
        if seq.index(t) >= 3:
            stamp(seq.index(t) - 2, 2)
        if seq.index(t) <= 12:
            stamp(seq.index(t) + 1, 3)
        stamp(seq.index(t), 5)

    def issue(vm, t, u=None, ctl=False):
        if t not in slot:
            slot[t] = free.pop(0)
        if seq.index(t) in steps and not ctl:
            e(f"s_setprio {p0 - 1 - steps.index(seq.index(t))}")
        for i in range(4):
            if u is not None:
                vm.wait_n(u - 1)
            issue_load(t, i)
            vm.add(t)
        issue_end(t)

    def SPIN(lbl):
        return f"s_addk_i32 s{sSpin}, -1\ns_cmpk_gt_i32 s{sSpin}, 0\ns_cbranch_scc1 {lbl}"

    def pk_sum(base, n):
        step = 1
        while step < n:
            for i in range(0, n - step, 2 * step):
                for h in (0, 2):
                    a, b = base + 4 * i + h, base + 4 * (i + step) + h
                    e(f"v_pk_add_f32 {vr(a,2)}, {vr(a,2)}, {vr(b,2)}")
            step *= 2

    def allreduce(v, tmp, op):
        e(f"v_mov_b32 v{tmp}, v{v}")
        e(f"v_permlane16_swap_b32 v{v}, v{tmp}")
        e(f"{op} v{v}, v{v}, v{tmp}")
        e(f"v_mov_b32 v{tmp}, v{v}")
        e(f"v_permlane32_swap_b32 v{v}, v{tmp}")
        e(f"{op} v{v}, v{v}, v{tmp}")

    vRed, vMLw, vWo, vPa, vPb, vPc, vPd = vH, vH + 1, vH + 2, vH + 3, vH + 4, vH + 5, vH + 6
    vXr = vH + 24
    vPoll = vH + 24
    vXs = vS
    vAcc = vA

    wo_addr = f"""
    s_movk_i32 s{sT1}, 0x2400
    v_lshrrev_b32 v{vT1}, 4, v{vL}
    v_and_b32 v{vWo}, 0xff, v{vLin}
    v_mad_u32_u24 v{vWo}, v{vT1}, s{sT1}, v{vWo}
    s_lshl_b32 s{sT0}, s{sWm}, 4
    v_and_b32 v{vT1}, 15, v{vL}
    v_add_u32 v{vT1}, s{sT0}, v{vT1}
    v_cmp_gt_u32 vcc, 72, v{vT1}
    v_mov_b32 v{vT1}, 0x40000000
    s_mul_i32 s{sWo}, s{sIdx}, 0x9000
    s_lshl_b32 s{sT0}, s{sWm}, 8
    s_add_u32 s{sWo}, s{sWo}, s{sT0}
    v_cndmask_b32 v{vWo}, v{vT1}, v{vWo}, vcc
    s_add_u32 s{sWo2}, s{sWo}, 4608
    """
    if wqcol:
        wo_addr = f"""
        s_movk_i32 s{sT1}, 0x2400
        v_lshrrev_b32 v{vT1}, 4, v{vL}
        v_and_b32 v{vWo}, 0xff, v{vLin}
        v_mad_u32_u24 v{vWo}, v{vT1}, s{sT1}, v{vWo}
        v_and_b32 v{vT1}, 15, v{vL}
        v_cmp_gt_u32 vcc, 9, v{vT1}
        v_mov_b32 v{vT1}, 0x40000000
        s_mul_i32 s{sWo}, s{sKvh}, 0x48000
        s_mul_i32 s{sT0}, s{sW}, 0x9000
        s_add_u32 s{sWo}, s{sWo}, s{sT0}
        s_mul_i32 s{sT0}, s{sS}, 144
        s_add_u32 s{sWo}, s{sWo}, s{sT0}
        v_cndmask_b32 v{vWo}, v{vT1}, v{vWo}, vcc
        s_add_u32 s{sWo2}, s{sWo}, 4608
        """
    t3_addr1 = f"""
    v_lshrrev_b32 v{vT0}, 4, v{vL}
    v_lshlrev_b32 v{vPb}, 7, v{vT0}
    v_bfe_u32 v{vT1}, v{vL}, 2, 2
    v_lshlrev_b32 v{vPc}, 7, v{vT1}
    v_lshl_or_b32 v{vPc}, v{vT0}, 6, v{vPc}
    v_lshl_or_b32 v{vPa}, v{vT1}, 4, v{vPb}
    v_and_b32 v{vT1}, 3, v{vL}
    v_lshl_or_b32 v{vPc}, v{vT1}, 4, v{vPc}
    v_and_b32 v{vT1}, 1, v{vL}
    v_lshl_or_b32 v{vPa}, v{vT1}, 3, v{vPa}
    v_and_b32 v{vT1}, 2, v{vL}
    v_lshl_or_b32 v{vPa}, v{vT1}, 5, v{vPa}
    v_mov_b32 v{vPd}, 0
    s_lshl_b32 s{sA}, s{sLid}, 11
    s_add_u32 s{sA}, s{sA}, {WS_H1}
    s_mul_i32 s{sB}, s{sLid}, 2304
    s_lshl_b32 s{sT0}, s{sWm}, 9
    s_add_u32 s{sB}, s{sB}, s{sT0}
    s_add_u32 s{sB}, s{sB}, {WS_I2}
    s_and_b32 s{sMl}, s{sLid}, 0xf8
    s_lshl_b32 s{sMl}, s{sMl}, 7
    s_and_b32 s{sT0}, s{sLid}, 4
    s_lshl_b32 s{sT0}, s{sT0}, 4
    s_add_u32 s{sMl}, s{sMl}, s{sT0}
    s_add_u32 s{sMl}, s{sMl}, {WS_ML}
    s_cmp_eq_u32 s{sWm}, 4
    s_cselect_b32 s{sP0}, 0x00ff00ff, -1
    s_mov_b32 s{sP0+1}, 0
    """
    t3_addr = f"""
    v_and_b32 v{vPa}, 15, v{vL}
    v_lshrrev_b32 v{vT0}, 4, v{vL}
    v_lshlrev_b32 v{vPb}, 3, v{vT0}
    v_lshlrev_b32 v{vPc}, 12, v{vPa}
    v_lshl_or_b32 v{vPc}, v{vT0}, 4, v{vPc}
    v_lshlrev_b32 v{vPa}, 3, v{vPa}
    v_lshl_or_b32 v{vPa}, v{vT0}, 7, v{vPa}
    v_mov_b32 v{vPd}, 0
    s_lshl_b32 s{sA}, s{sLid}, 11
    s_add_u32 s{sA}, s{sA}, {WS_H1}
    s_and_b32 s{sB}, s{sLid}, 0x80
    s_lshl_b32 s{sB}, s{sB}, 12
    s_lshl_b32 s{sT0}, s{sWm}, 16
    s_add_u32 s{sB}, s{sB}, s{sT0}
    s_lshl_b32 s{sT0}, s{sIdx}, 5
    s_add_u32 s{sB}, s{sB}, s{sT0}
    s_add_u32 s{sB}, s{sB}, {WS_I2}
    s_cmp_eq_u32 s{sWm}, 4
    s_cselect_b32 s{sP0}, 0x00ff00ff, -1
    s_mov_b32 s{sP0+1}, 0
    """

    if lay:
        t3_addr = t3_addr1
    if lay == 2:
        t3_addr += f"""
        v_lshrrev_b32 v{vT0}, 4, v{vL}
        v_and_b32 v{vT1}, 7, v{vL}
        v_lshlrev_b32 v{vPc}, 4, v{vT1}
        v_lshl_or_b32 v{vPc}, v{vT0}, 7, v{vPc}
        v_and_b32 v{vT1}, 8, v{vL}
        v_lshl_or_b32 v{vPc}, v{vT1}, 5, v{vPc}
        """

    def issue_wo(vm, u=None, r0=0, r1=8):
        if 16 in steps and r0 == 0:
            assert woat == 16 and not wosplit
            e(f"s_setprio {p0 - 1 - steps.index(16)}")
        for r in range(r0, r1):
            reg = RING + 16 * wo_slots[r >> 2] + 4 * (r & 3)
            if u is not None:
                vm.wait_n(u - 1)
            e(f"buffer_load_dwordx4 {vr(reg,4)}, v{vWo}, {srd(WO_)}, s{sWo if r < 4 else sWo2} offen offset:{1152*(r&3)}{NTW}")
            vm.add("wo")
        if (r1 == 8 or wo2) and prend >= 0:
            e(f"s_setprio {prend}")
    wo_slots = [NSLOT - 2, NSLOT - 1]

    def consts():
        e(f"""
        s_and_b32 s{sS}, s{sLid}, 7
        s_lshr_b32 s{sKvh}, s{sIdx}, 3
        s_mov_b32 s{K_+2}, 0x2000000
        s_mov_b32 s{K_+3}, 0x20000
        s_mov_b32 s{V_+2}, 0x2000000
        s_mov_b32 s{V_+3}, 0x20000
        s_mov_b32 s{sStep}, 0x8000
        v_and_b32 v{vT1}, 3, v{vT1}
        v_and_b32 v{vK}, 48, v{vL}
        v_lshl_or_b32 v{vK}, v{vT0}, 10, v{vK}
        v_lshl_or_b32 v{vK}, v{vT1}, 8, v{vK}
        """)
        if rot == 0:
            e(f"s_mov_b32 s{sT0}, s{sW}")
        elif rot == 1:
            e(f"s_add_u32 s{sT0}, s{sW}, s{sIdx}")
            e(f"s_and_b32 s{sT0}, s{sT0}, 7")
        elif rot == 2:
            e(f"s_lshr_b32 s{sT0}, s{sIdx}, 3")
            e(f"s_add_u32 s{sT0}, s{sT0}, s{sW}")
            e(f"s_and_b32 s{sT0}, s{sT0}, 7")
        elif rot == 3:
            e(f"s_lshl_b32 s{sT0}, s{sIdx}, 2")
            e(f"s_xor_b32 s{sT0}, s{sT0}, s{sW}")
            e(f"s_and_b32 s{sT0}, s{sT0}, 7")
        e(f"""
        s_lshl_b32 s{sK}, s{sIdx}, 6
        s_add_u32 s{sK}, s{sK}, s{sT0}
        s_lshl_b32 s{sK}, s{sK}, 12
        s_mov_b32 s{sV}, s{sK}
        v_and_b32 v{vT0}, 1, v{vL}
        v_lshlrev_b32 v{vT0}, 4, v{vT0}
        v_mov_b32 v{vT1}, 0xffff
        v_lshlrev_b32 v{vT0}, v{vT0}, v{vT1}
        v_bfe_u32 v{vT1}, v{vL}, 1, 2
        v_lshlrev_b32_e64 v{vT1}, v{vT1}, 1
        """)
        for d in range(4):
            e(f"v_bfe_i32 v{vM+d}, v{vT1}, {d}, 1")
        for d in range(4):
            e(f"v_and_b32 v{vM+d}, v{vM+d}, v{vT0}")
        e(f"""
        s_mov_b32 s{sC}, 0x3e0293ee
        s_mov_b32 s{sSpin}, {spin}
        s_mov_b32 s{WO_+2}, 0x480000
        s_mov_b32 s{WO_+3}, 0x20000
        v_mov_b32 v{vZ}, 0
        """)
    e.raw(HEADER.rstrip())
    e.raw(f"; @launch grid=(256,1,1) block=(512,1,1) lds={LDS_SIZE + (1024 if pw else 0)}")
    e.raw('.amdgcn_target "amdgcn-amd-amdhsa--gfx950"')
    e.raw(".text")
    e.raw(f".globl {KNAME}")
    e.raw(".p2align 8")
    e.raw(f".type {KNAME},@function")
    e.raw(f"{KNAME}:")
    chains = [x.split("+") for x in str(hop).split(",") if x]
    hops = [c[0] for c in chains]
    nxt = {c[i]: (f"P_{c[i+1]}" if i + 1 < len(c) else "L_hopret") for c in chains for i in range(len(c))}
    hops2 = [x for x in str(hop2).split(",") if x]
    assert not set(hops) & set(hops2)

    def padspot(name, live=False):
        if name not in nxt and name not in hops2:
            return
        if live:
            e(f"s_branch P_{name}_skip")
        e(f"P_{name}:\ns_branch {nxt.get(name, 'L_qspin')}")
        if live:
            e(f"P_{name}_skip:")

    if fp:
        assert wp == 2 and not (pre7 or kq or cup or pad or sx or wqp >= 0) and clr == 1
        stamp(0)
        late = {"WS": f"s_load_dwordx2 {sp(WS_)}, s[0:1], 96",
                "K": f"s_load_dwordx2 {sp(K_)}, s[0:1], s{sKa} offset:8",
                "V": f"s_load_dwordx2 {sp(V_)}, s[0:1], s{sKa} offset:16",
                "WO": f"s_load_dwordx2 {sp(WO_)}, s[0:1], s{sKa} offset:32",
                "OUT": f"s_load_dwordx2 {sp(OUT_)}, s[0:1], 80"}
        e(f"""
        s_lshr_b32 s{sT0}, s2, 8
        s_cbranch_scc1 L_end
        s_bitcmp1_b32 s2, {7 if idmap else 2}
        s_cselect_b32 s{sKa}, 40, 0
        s_load_dwordx2 {sp(WQ_)}, s[0:1], s{sKa} offset:24
        s_load_dwordx2 {sp(sX)}, s[0:1], s{sKa} offset:0
        """)
        for k in [x for x in str(early_s).split(",") if x]:
            e(late.pop(k))
        e(f"""
        v_lshrrev_b32 v{vLin}, 6, v0
        v_and_b32 v{vL}, 63, v0
        v_readfirstlane_b32 s{sW}, v{vLin}
        s_lshr_b32 s{sLid}, s2, {0 if idmap else 3}
        v_lshrrev_b32 v{vA}, 4, v{vL}
        s_sub_u32 s{sWm}, s{sW}, 1
        s_cmp_ge_u32 s{sWm}, 6
        s_cbranch_scc1 L_rest
        s_and_b32 s{sT0}, s{sLid}, 3
        s_mul_i32 s{sT0}, s{sT0}, 6
        s_add_u32 s{sT0}, s{sT0}, s{sWm}
        s_mul_i32 s{sT0}, s{sT0}, 48
        """)
        if idmap:
            e(f"s_bfe_u32 s{sT1}, s2, 0x50002")
        else:
            e(f"""
            s_and_b32 s{sT1}, s2, 3
            s_lshr_b32 s{sWq}, s2, 5
            s_lshl3_add_u32 s{sT1}, s{sT1}, s{sWq}
            """)
        e(f"""
        s_lshl_b32 s{sT1}, s{sT1}, 8
        s_lshl_b32 s{sWq}, s{sT0}, 12
        s_add_u32 s{sWq}, s{sWq}, s{sT1}
        v_and_b32 v{vX}, 15, v{vL}
        v_mul_u32_u24 v{vA}, 3, v{vA}
        v_lshlrev_b32 v{vX}, 4, v{vX}
        v_lshl_add_u32 v{vT2}, v{vA}, 2, s{sT0}
        v_lshl_or_b32 v{vX}, v{vA}, 14, v{vX}
        s_mov_b32 s{WQ_+2}, 0x480000
        s_mov_b32 s{WQ_+3}, 0x20000
        s_setprio {max(qprio, p0)}
        s_waitcnt lgkmcnt(0)
        """)
        stamp(2, 4)
        e(f"global_load_dwordx3 {vr(vXr,3)}, v{vT2}, {sp(sX)}")
        for i in range(6):
            e(f"buffer_load_dwordx4 {vr(vH+4*i,4)}, v{vX}, {srd(WQ_)}, s{sWq} offen{NTQ}")
            if i < 5:
                e(f"s_addk_i32 s{sWq}, 0x2000")
        vq = VM(e)
        vq.add("x")
        for i in range(6):
            vq.add(f"w{i}")
        slot["K0"] = free.pop(0)
        e("L_rest:")
        for k in late:
            e(late[k])
        stamp(3, 4)
        if prof and pmode not in (4, 5, 6):
            for k in range(1, 14):
                e(f"s_mov_b32 s{sProf+2*k}, 0")
        if not idmap:
            e(f"""
            s_and_b32 s{sT0}, s2, 7
            s_lshl_b32 s{sT0}, s{sT0}, 5
            s_or_b32 s{sLid}, s{sLid}, s{sT0}
            """)
        e(f"""
        s_and_b32 s{sIdx}, s{sLid}, 0x7f
        s_mov_b32 s{WS_+2}, 0x400000
        s_mov_b32 s{WS_+3}, 0x20000
        v_lshlrev_b32 v{vLin}, 4, v{vL}
        v_and_b32 v{vT0}, 3, v{vL}
        v_lshrrev_b32 v{vT1}, 2, v{vL}
        s_cmp_lg_u32 s{sW}, 0
        s_cbranch_scc1 L_t0
        """)
    else:
        stamp(0)
        if prof and pmode not in (5, 6):
            for k in range(1, 14):
                e(f"s_mov_b32 s{sProf+2*k}, 0")
        if pad:
            e(f"s_memrealtime {sp(sProf)}")
        e(f"""
        s_lshr_b32 s{sT0}, s2, 8
        s_cbranch_scc1 L_end
        s_bitcmp1_b32 s2, {7 if idmap else 2}
        s_cselect_b32 s{sKa}, 40, 0
        """)
        stamp(1, 6)
        if wqk:
            e(f"s_load_dwordx2 {sp(WQ_)}, s[0:1], s{sKa} offset:{wqsrc}")
            e("s_waitcnt lgkmcnt(0)")
            stamp(7, 6)
        e(f"""
        s_load_dwordx2 {sp(WQ_)}, s[0:1], s{sKa} offset:{wqsrc}
        s_load_dwordx2 {sp(sX)}, s[0:1], s{sKa} offset:0
        s_load_dwordx2 {sp(WS_)}, s[0:1], 96
        s_load_dwordx2 {sp(K_)}, s[0:1], s{sKa} offset:8
        s_load_dwordx2 {sp(V_)}, s[0:1], s{sKa} offset:16
        s_load_dwordx2 {sp(WO_)}, s[0:1], s{sKa} offset:32
        s_load_dwordx2 {sp(OUT_)}, s[0:1], 80
        """)
        stamp(2, 6)
        e(f"""
        v_lshrrev_b32 v{vLin}, 6, v0
        v_and_b32 v{vL}, 63, v0
        v_readfirstlane_b32 s{sW}, v{vLin}
        s_and_b32 s{sT0}, s2, 7
        s_lshl_b32 s{sT0}, s{sT0}, 5
        s_lshr_b32 s{sLid}, s2, 3
        s_or_b32 s{sLid}, s{sLid}, s{sT0}
        {f"s_mov_b32 s{sLid}, s2" if idmap else (f"s_xor_b32 s{sLid}, s{sLid}, {sx}" if sx else "")}
        s_and_b32 s{sIdx}, s{sLid}, 0x7f
        """)
        stamp(3, 6)
        e(f"""
        s_mov_b32 s{WQ_+2}, 0x480000
        s_mov_b32 s{WQ_+3}, 0x20000
        s_mov_b32 s{WS_+2}, 0x400000
        s_mov_b32 s{WS_+3}, 0x20000
        v_lshlrev_b32 v{vLin}, 4, v{vL}
        v_and_b32 v{vT0}, 3, v{vL}
        v_lshrrev_b32 v{vT1}, 2, v{vL}
        v_mov_b32 v{vX}, 0
        """)
        if pre7 or kq or cup:
            assert wp
            consts()
        e(f"""
        s_sub_u32 s{sWm}, s{sW}, 1
        s_cbranch_scc1 L_clear
        s_cmp_eq_u32 s{sW}, 7
        s_cbranch_scc1 L_wait0
        """)
        stamp(4, 6)
        if wp:
            assert cx == 0 and seg == 64
            e(f"""
            s_and_b32 s{sT1}, s{sIdx}, 3
            s_mul_i32 s{sT0}, s{sWm}, 48
            s_mul_i32 s{sT1}, s{sT1}, 288
            v_lshrrev_b32 v{vA}, 4, v{vL}
            v_and_b32 v{vX}, 0xf0, v{vLin}
            s_add_u32 s{sT0}, s{sT0}, s{sT1}
            v_mul_u32_u24 v{vT2}, 0xc000, v{vA}
            v_mad_u32_u24 v{vA}, v{vA}, 12, s{sT0}
            s_lshl_b32 s{sWq}, s{sT0}, 12
            s_lshr_b32 s{sT1}, s{sIdx}, 2
            s_lshl_b32 s{sT1}, s{sT1}, 8
            v_add_u32 v{vX}, v{vX}, v{vT2}
            v_mov_b32 v{vT2}, v{vA}
            s_add_u32 s{sWq}, s{sWq}, s{sT1}
            """)
        else:
            e(f"""
            s_mul_i32 s{sT0}, s{sWm}, 0xc0
            v_mul_u32_u24 v{vX}, 0xc000, v{vT1}
            v_mul_u32_u24 v{vT2}, 12, v{vT1}
            v_lshl_or_b32 v{vX}, v{vT0}, 4, v{vX}
            v_add_u32 v{vT2}, s{sT0}, v{vT2}
            s_lshl_b32 s{sWq}, s{sT0}, 12
            s_xor_b32 s{sT1}, s{sIdx}, {cx}
            s_lshl_b32 s{sT1}, s{sT1}, 6
            s_add_u32 s{sWq}, s{sWq}, s{sT1}
            """)
        e(f"s_setprio {max(qprio, p0)}")
        wstep = 0x2000
        if seg == 32:
            e(f"""
            v_mul_u32_u24 v{vX}, 0xc000, v{vT1}
            v_and_b32 v{vA}, 1, v{vL}
            v_lshl_or_b32 v{vX}, v{vA}, 4, v{vX}
            v_and_b32 v{vA}, 2, v{vL}
            v_lshl_or_b32 v{vX}, v{vA}, 7, v{vX}
            s_lshl_b32 s{sWq}, s{sT0}, 12
            s_and_b32 s{sT1}, s{sIdx}, 0x78
            s_lshl_b32 s{sT1}, s{sT1}, 6
            s_add_u32 s{sWq}, s{sWq}, s{sT1}
            s_and_b32 s{sT1}, s{sIdx}, 7
            s_lshl_b32 s{sT1}, s{sT1}, 5
            s_add_u32 s{sWq}, s{sWq}, s{sT1}
            """)
        if seg == 16:
            e(f"""
            v_mul_u32_u24 v{vX}, 0xc000, v{vT1}
            v_lshl_or_b32 v{vX}, v{vT0}, 7, v{vX}
            s_lshl_b32 s{sWq}, s{sT0}, 12
            s_and_b32 s{sT1}, s{sIdx}, 0x78
            s_lshl_b32 s{sT1}, s{sT1}, 6
            s_add_u32 s{sWq}, s{sWq}, s{sT1}
            s_and_b32 s{sT1}, s{sIdx}, 7
            s_lshl_b32 s{sT1}, s{sT1}, 4
            s_add_u32 s{sWq}, s{sWq}, s{sT1}
            """)
        if wqoff:
            e(f"s_add_u32 s{sWq}, s{sWq}, {wqoff}")
        if wqstr != 13:
            wstep = wqstr
            e(f"""
            v_mul_u32_u24 v{vX}, {6*wqstr}, v{vT1}
            v_lshl_or_b32 v{vX}, v{vT0}, 4, v{vX}
            s_mul_i32 s{sWq}, s{sWm}, {96*wqstr}
            s_lshl_b32 s{sT1}, s{sIdx}, 6
            s_add_u32 s{sWq}, s{sWq}, s{sT1}
            """)
        if wqp >= 0:
            S = 64 << wqp
            rpl = 1024 // S
            wstep = rpl * 8192
            e(f"""
            v_lshrrev_b32 v{vX}, {2+wqp}, v{vL}
            v_lshlrev_b32 v{vX}, 13, v{vX}
            v_and_b32 v{vA}, {(4<<wqp)-1}, v{vL}
            v_lshl_or_b32 v{vX}, v{vA}, 4, v{vX}
            s_and_b32 s{sT0}, s{sIdx}, {(1<<wqp)-1}
            s_mul_i32 s{sT0}, s{sT0}, 6
            s_add_u32 s{sT0}, s{sT0}, s{sWm}
            s_mul_i32 s{sWq}, s{sT0}, {6*wstep}
            s_lshr_b32 s{sT0}, s{sIdx}, {wqp}
            s_mul_i32 s{sT0}, s{sT0}, {S}
            s_add_u32 s{sWq}, s{sWq}, s{sT0}
            """)
        stamp(1, 4)
        stamp(5, 6)
        e("s_waitcnt lgkmcnt(0)")
        stamp(2, 4)
        stamp(6, 6)
        e(f"global_load_dwordx3 {vr(vXr,3)}, v{vT2}, {sp(sX)}")
        for i in range(6):
            e(f"buffer_load_dwordx4 {vr(vH+4*i,4)}, v{vX}, {srd(WQ_)}, s{sWq} offen{NTQ}")
            if i < 5:
                e(f"s_add_u32 s{sWq}, s{sWq}, {wstep}" if wstep != 0x2000 else f"s_addk_i32 s{sWq}, 0x2000")
        vq = VM(e)
        vq.add("x")
        for i in range(6):
            vq.add(f"w{i}")
        slot["K0"] = free.pop(0)
        for t in seq[:kq]:
            issue(vq, t)
        stamp(3, 4)
        e("s_branch L_t0")
    e("L_clear:")
    if prio:
        e("s_setprio 3")
    def clears(lbl):
        if lay:
            e(f"""
            s_lshl_b32 s{sT1}, s{sLid}, 7
            s_add_u32 s{sT1}, s{sT1}, {WS_ML}
            buffer_store_dwordx4 {vr(vA,4)}, v{vLin}, {srd(WS_)}, s{sA} offen sc1
            buffer_store_dwordx4 {vr(vA,4)}, v{vLin}, {srd(WS_)}, s{sB} offen sc1
            buffer_store_dwordx4 {vr(vA,4)}, v{vLin}, {srd(WS_)}, s{sB} offen offset:1024 sc1
            s_mov_b64 exec, 0xffff
            buffer_store_dwordx4 {vr(vA,4)}, v{vLin}, {srd(WS_)}, s{sB} offen offset:2048 sc1
            s_mov_b64 exec, 0xff
            buffer_store_dwordx4 {vr(vA+4 if xl else vA,4)}, v{vLin}, {srd(WS_)}, s{sT1} offen sc1
            s_mov_b64 exec, -1
            """)
            return
        e(f"""
        s_mov_b64 exec, 15
        buffer_store_dwordx4 {vr(vA,4)}, v{vLin}, {srd(WS_)}, s{sA} offen offset:1024 sc1
        s_mov_b64 exec, -1
        s_cmp_ge_u32 s{sIdx}, 72
        buffer_store_dwordx4 {vr(vA,4)}, v{vLin}, {srd(WS_)}, s{sA} offen sc1
        s_cbranch_scc1 {lbl}
        buffer_store_dwordx4 {vr(vA,4)}, v{vLin}, {srd(WS_)}, s{sB} offen sc1
        buffer_store_dwordx4 {vr(vA,4)}, v{vLin}, {srd(WS_)}, s{sB} offen offset:1024 sc1
        buffer_store_dwordx4 {vr(vA,4)}, v{vLin}, {srd(WS_)}, s{sB} offen offset:2048 sc1
        buffer_store_dwordx4 {vr(vA,4)}, v{vLin}, {srd(WS_)}, s{sB} offen offset:3072 sc1
        """)
    e(f"""
    v_mov_b32 v{vA}, -1
    v_mov_b32 v{vA+1}, -1
    v_mov_b32 v{vA+2}, -1
    v_mov_b32 v{vA+3}, -1
    v_mov_b32 v{vA+4}, 0
    v_mov_b32 v{vA+5}, 0
    ds_write_b64 v{vA+4}, {vr(vA+4,2)} offset:{LDS_CNT}
    {"s_mov_b64 exec, 0xff" if nb1 else ""}
    {f"ds_write_b128 v{vLin}, {vr(vA,4)} offset:{LDS_ML}" if nb1 else ""}
    {"s_mov_b64 exec, -1" if nb1 else ""}
    s_and_b32 s{sEp}, s{sLid}, 0x80
    s_add_u32 s{sEp}, s{sEp}, {WS_EP}
    s_lshl_b32 s{sA}, s{sLid}, 11
    s_add_u32 s{sA}, s{sA}, {WS_H1}
    {f"s_mul_i32 s{sB}, s{sLid}, 2304" if lay else f"s_lshl_b32 s{sB}, s{sLid}, 12"}
    s_add_u32 s{sB}, s{sB}, {WS_I2}
    s_waitcnt lgkmcnt(0)
    s_load_dword s{sTag}, {sp(WS_)}, s{sEp}
    """)
    if xl:
        assert lay
        e(f"""
        s_getreg_b32 s{sXc}, hwreg(HW_REG_XCC_ID, 0, 4)
        v_mov_b32 v{vA+4}, -1
        v_mov_b32 v{vA+5}, -1
        v_mov_b32 v{vA+6}, -1
        v_mov_b32 v{vA+7}, s{sXc}
        """)
    if clr == 0:
        if not wqnoclr:
            clears("L_t0")
            if lay:
                e("s_branch L_t0")
        else:
            e("s_cmp_eq_u32 s2, s2\ns_cbranch_scc1 L_t0")
    elif not fp:
        e("s_branch L_t0")
    if not fp:
        e(f"""
        L_wait0:
        s_waitcnt lgkmcnt(0)
        """)
    for t in seq[:pre7]:
        issue(VM(e), t)
    def hop_dispatch():
        if hops:
            for k, name in enumerate(hops):
                e(f"s_cmp_eq_u32 s{sWm}, {k + hopat}\ns_cbranch_scc1 P_{name}")
            e("L_hopret:")
    e("L_t0:")
    if hope == 2:
        hop_dispatch()
    e("s_barrier")
    if hope == 1:
        hop_dispatch()
    stamp(1)
    stamp(4, 4)
    if not (pre7 or kq or cup):
        consts()
    e(f"""
    s_cmp_ge_u32 s{sWm}, 6
    s_cbranch_scc1 L_noq
    """)
    e(f"""
    v_and_b32 v{vT0}, {15 if wp == 2 else 3}, v{vL}
    v_lshrrev_b32 v{vT1}, 4, v{vL}
    v_lshlrev_b32 v{vT1}, 3, v{vT1}
    v_lshl_or_b32 v{vT0}, v{vT0}, 5, v{vT1}
    s_lshl_b32 s{sT0}, s{sWm}, {9 if wp == 2 else 7}
    v_add_u32 v{vX}, s{sT0}, v{vT0}
    """)
    stamp(5, 4)
    if hope == 0:
        hop_dispatch()
    if fp:
        e("s_waitcnt lgkmcnt(0)")
    vq.wait_tag("x")
    stamp(6, 4)
    for t in range(3):
        e(f"v_and_b32 v{vXs+4*t}, 0xffff, v{vXr+t}")
        e(f"v_lshlrev_b32 v{vXs+4*t+1}, 16, v{vXr+t}")
        e(f"v_lshrrev_b32 v{vXs+4*t+2}, 16, v{vXr+t}")
        e(f"v_and_b32 v{vXs+4*t+3}, 0xffff0000, v{vXr+t}")
    k0 = 0
    for i in range(6):
        vq.wait_tag(f"w{i}")
        if i == 5:
            stamp(2)
            stamp(7, 4)
        for c in range(8):
            w = vH + 4 * i + (c >> 1)
            x = vXs + 2 * i + (c & 1)
            acc = "0" if i == 0 else f"v{vAcc+c}"
            e(f"v_dot2_f32_bf16 v{vAcc+c}, v{w}, v{x}, {acc}")
        while k0 < 4 and (5 - i) + k0 < uq and not kq:
            issue_load("K0", k0)
            vq.add("K0")
            k0 += 1
    for c in range(4):
        e(f"v_permlane32_swap_b32 v{vAcc+c}, v{vAcc+c+4}")
    for c in range(4):
        e(f"v_add_f32 v{vAcc+c}, v{vAcc+c}, v{vAcc+c+4}")
    for c in range(2):
        e(f"v_permlane16_swap_b32 v{vAcc+c}, v{vAcc+c+2}")
    for c in range(2):
        e(f"v_add_f32 v{vAcc+c}, v{vAcc+c}, v{vAcc+c+2}")
    if wp == 0:
        for rot in (8, 4):
            for c in range(2):
                e(f"v_add_f32_dpp v{vAcc+c}, v{vAcc+c}, v{vAcc+c} row_ror:{rot} row_mask:0xf bank_mask:0xf")
        e(f"""
        s_mov_b32 exec_lo, 0x000f000f
        s_mov_b32 exec_hi, 0x000f000f
        """)
    e(f"""
    ds_write_b64 v{vX}, {vr(vAcc,2)} offset:{LDS_RED if wp == 2 else LDS_PART}
    v_mov_b32 v{vT0}, 1
    """)
    stamp(8, 4)
    e(f"""
    s_mov_b64 exec, 1
    ds_add_u32 v{vZ}, v{vT0} offset:{LDS_CNT}
    s_mov_b64 exec, -1
    """)
    if max(qprio, p0) != p0:
        e(f"s_setprio {p0}")
    if not kq:
        for i in range(k0, 4):
            issue_load("K0", i)
            vq.add("K0")
        issue_end("K0")
    e(f"""
    s_branch L_pre{max(kq, 1)}
    L_noq:
    s_cmp_eq_u32 s{sW}, 0
    s_cbranch_scc1 L_ctl
    """)
    assert not dry
    if dry:
        for r in range(vH + 3, vH + 7):
            e(f"v_mov_b32 v{r}, 0")
        e("""
        s_mov_b64 exec, 0
        s_branch L_t2b
        """)
    else:
        e(f"s_setprio {p0}")
        if fp:
            e("s_waitcnt lgkmcnt(0)")
        e(f"s_branch L_pre{pre7}" if pre7 else "s_branch L_dry_ret")
    padspot("ctl")
    e("L_ctl:")
    vc = VM(e)
    if clr == 1 and not wqnoclr:
        clears("L_clr1")
        if not lay:
            e("L_clr1:")
    if pfk == 1:
        assert clr == 1 and wp == 2
        e(f"""
        s_lshl_b32 s{sT0}, s{sLid}, 11
        s_add_u32 s{sT0}, s{sT0}, {WS_H1}
        buffer_load_dwordx4 {vr(vH+8,4)}, v{vLin}, {srd(WS_)}, s{sT0} offen {pfc.replace("_", " ").replace("none", "")}
        """)
    if clr == 2:
        for t in seq[:jctl]:
            issue(vc, t, None, True)
        clears("L_clr1")
        if not lay:
            e("L_clr1:")
    e(f"""
    v_lshlrev_b32 v{vX}, 3, v{vL}
    s_xor_b32 s{sB}, s{sLid}, {cx}
    s_lshl_b32 s{sB}, s{sB}, 7
    s_and_b32 s{sA}, s{sB}, 0x7c00
    s_lshr_b32 s{sFo}, s{sA}, 3
    s_add_u32 s{sFo}, s{sFo}, {WS_FL}
    """)
    if xq:
        assert wp == 2 and xl and clr == 1
        e(f"""
        s_mov_b32 s{sWo}, s{sA}
        s_mov_b32 s{sWo2}, 0
        """)
    if wp == 2:
        e(f"""
        s_lshl_b32 s{sB}, s{sB}, 3
        s_lshl_b32 s{sA}, s{sA}, 3
        s_add_u32 s{sB}, s{sB}, {WS_QP2}
        s_add_u32 s{sA}, s{sA}, {WS_QP2}
        s_add_u32 s{sMl}, s{sA}, 4096
        """)
    if clr == 0:
        e("s_waitcnt vmcnt(0)")
    stamp(2)
    stamp(7, 4)
    vc.add("x")
    if clr != 2:
        for t in seq[:jctl]:
            issue(vc, t, None, True)
    if xq:
        e(f"""
        s_lshl_b32 s{sT0}, s{sLid}, 7
        v_mov_b32 v{vT2}, s{sXc}
        s_waitcnt lgkmcnt(0)
        s_add_u32 s{sTag}, s{sTag}, {EPC}
        v_mov_b32 v{vT2+1}, s{sTag}
        s_mov_b64 exec, 1
        buffer_store_dwordx2 {vr(vT2,2)}, v{vZ}, {srd(WS_)}, s{sT0} offen sc1
        s_mov_b64 exec, -1
        """)
    e(f"""
    L_cnt:
    ds_read_b32 v{vT0}, v{vZ} offset:{LDS_CNT}
    s_waitcnt lgkmcnt(0)
    v_cmp_ne_u32 vcc, 6, v{vT0}
    s_cbranch_vccz L_cnt_ok
    {SPIN("L_cnt")}
    L_cnt_ok:
    {"" if wp == 2 else "s_mov_b64 exec, 0xffff"}
    """)
    stamp(8, 4)
    for i in range(6):
        e(f"ds_read_b64 {vr(vS+2*i,2)}, v{vX} offset:{LDS_RED+512*i if wp == 2 else LDS_PART+128*i}")
    e(f"""
    {"" if xq else f"s_add_u32 s{sTag}, s{sTag}, {EPC}"}
    s_waitcnt lgkmcnt(0)
    v_pk_add_f32 {vr(vS,2)}, {vr(vS,2)}, {vr(vS+2,2)}
    v_pk_add_f32 {vr(vS+4,2)}, {vr(vS+4,2)}, {vr(vS+6,2)}
    v_pk_add_f32 {vr(vS+8,2)}, {vr(vS+8,2)}, {vr(vS+10,2)}
    v_pk_add_f32 {vr(vS,2)}, {vr(vS,2)}, {vr(vS+4,2)}
    v_pk_add_f32 {vr(vS,2)}, {vr(vS,2)}, {vr(vS+8,2)}
    """)
    if wp == 2:
        e(f"""
        v_mov_b32 v{vS+3}, s{sTag}
        v_mov_b32 v{vS+2}, v{vS+1}
        v_mov_b32 v{vS+1}, s{sTag}
        s_mov_b32 s{sTag+1}, s{sTag}
        {f"v_lshlrev_b32 v{vX}, 7, v{vL}" if xq else ""}
        {"" if clr == 0 else f"s_waitcnt vmcnt({4*jctl+xq+(1 if pfk == 1 else 0) if clr == 1 else 0})"}
        {f"s_mov_b64 exec, {hex((1 << (8*wqs)) - 1)}" if wqs else ""}
        buffer_store_dwordx4 {vr(vS,4)}, v{vLin}, {srd(WS_)}, s{sB} offen{(" " + qs if qs else "") if xq else " sc1"}
        {"s_mov_b64 exec, -1" if wqs else ""}
        """)
    else:
        e(f"""
        v_cvt_pk_bf16_f32 v{vS}, v{vS}, v{vS+1}
        v_mov_b32 v{vS+1}, s{sTag}
        s_mov_b32 s{sTag+1}, s{sTag}
        {"" if clr == 0 else f"s_waitcnt vmcnt({4*jctl if clr == 1 else 0})"}
        buffer_store_dwordx2 {vr(vS,2)}, v{vX}, {srd(WS_)}, s{sB} offen sc1
        s_mov_b64 exec, -1
        """)
    stamp(12)
    stamp(9, 4)
    if pfk == 2:
        e(f"""
        s_lshl_b32 s{sT0}, s{sLid}, 11
        s_add_u32 s{sT0}, s{sT0}, {WS_H1}
        buffer_load_dwordx4 {vr(vH+8,4)}, v{vLin}, {srd(WS_)}, s{sT0} offen {pfc.replace("_", " ").replace("none", "")}
        """)
    if pfk:
        vc.add("pf")
    if wp == 2:
        pass
    elif seg == 64:
        e(f"v_mov_b32 v{vS+2}, v{vX}")
    elif seg == 32:
        e(f"""
        v_lshrrev_b32 v{vS+2}, 3, v{vL}
        v_lshlrev_b32 v{vS+2}, 5, v{vS+2}
        v_and_b32 v{vS+3}, 4, v{vL}
        v_lshl_or_b32 v{vS+2}, v{vS+3}, 6, v{vS+2}
        v_and_b32 v{vS+3}, 3, v{vL}
        v_lshl_or_b32 v{vS+2}, v{vS+3}, 3, v{vS+2}
        """)
    else:
        e(f"""
        v_lshrrev_b32 v{vS+2}, 3, v{vL}
        v_lshlrev_b32 v{vS+2}, 4, v{vS+2}
        v_and_b32 v{vS+3}, 6, v{vL}
        v_lshl_or_b32 v{vS+2}, v{vS+3}, 6, v{vS+2}
        v_and_b32 v{vS+3}, 1, v{vL}
        v_lshl_or_b32 v{vS+2}, v{vS+3}, 3, v{vS+2}
        """)
    for t in seq[jctl:jpoll]:
        issue(vc, t, uctl, True)
    if wp == 2:
        Q = RING + 16 * (NSLOT - 2)
        def gl(fl):
            if xq:
                e(f"""
                s_mov_b64 exec, 0xff
                buffer_load_dwordx2 {vr(vH+28,2)}, v{vX}, {srd(WS_)}, s{sWo} offen sc1
                s_mov_b64 exec, -1
                """)
            for j in range(wqg):
                e(f"buffer_load_dwordx4 {vr(Q+4*j,4)}, v{vLin}, {srd(WS_)}, s{sA if j < 4 else sMl} offen offset:{1024*(j&3)}{fl}")
        if qf != "sc1":
            gl(" " + qf.replace("_", " ") if qf else "")
            e("s_branch L_gather2")
        e("L_gather1:")
        gl(" sc1")
        e("L_gather2:")
        if xq:
            e(f"""
            s_waitcnt vmcnt({wqg})
            s_mov_b64 exec, 0xff
            v_cmp_ne_u32 vcc, s{sTag}, v{vH+29}
            v_cmp_ne_u32 {sp(sP0)}, s{sXc}, v{vH+28}
            s_mov_b64 exec, -1
            s_cbranch_vccnz L_again
            {"" if rep == 1 else f"s_cmp_eq_u64 {sp(sP0)}, 0"}
            {"" if rep == 1 else "s_cbranch_scc1 L_chk"}
            s_cmp_lg_u32 s{sWo2}, 0
            s_cbranch_scc1 L_chk
            buffer_store_dwordx4 {vr(vS,4)}, v{vLin}, {srd(WS_)}, s{sB} offen sc1
            s_mov_b32 s{sWo2}, 1
            L_chk:
            """)
        e("s_waitcnt vmcnt(0)")
        if wqs:
            e("s_mov_b64 exec, 0xff")
        for j in range(wqg):
            if j == 0:
                e(f"v_max_u32 v{vT0}, v{Q+1}, v{Q+3}")
                e(f"v_min_u32 v{vT1}, v{Q+1}, v{Q+3}")
            else:
                e(f"v_max3_u32 v{vT0}, v{vT0}, v{Q+4*j+1}, v{Q+4*j+3}")
                e(f"v_min3_u32 v{vT1}, v{vT1}, v{Q+4*j+1}, v{Q+4*j+3}")
        e(f"""
        v_cmp_ne_u32 vcc, s{sTag}, v{vT0}
        v_cmp_ne_u32 {sp(sP0)}, s{sTag}, v{vT1}
        s_mov_b64 exec, -1
        s_or_b64 vcc, vcc, {sp(sP0)}
        s_cbranch_vccz L_gotq
        L_again:
        s_waitcnt vmcnt(0)
        {SPIN("L_gather1") if wqnoqw != 1 else ""}
        L_gotq:
        """)
        if rep == 2:
            e(f"buffer_store_dwordx4 {vr(vS,4)}, v{vLin}, {srd(WS_)}, s{sB} offen sc1")
        for h in range(2):
            for c in (0, 2):
                b = Q + 16 * h + c
                e(f"v_add_f32 v{b}, v{b}, v{b+4}")
                e(f"v_add_f32 v{b+8}, v{b+8}, v{b+12}")
        for h in range(2):
            for c in (0, 2):
                b = Q + 16 * h + c
                e(f"v_add_f32 v{b}, v{b}, v{b+8}")
        e(f"""
        v_lshlrev_b32 v{vS+2}, 2, v{vL}
        v_cvt_pk_bf16_f32 v{vPoll}, v{Q}, v{Q+2}
        v_cvt_pk_bf16_f32 v{vPoll+2}, v{Q+16}, v{Q+18}
        """)
    else:
        e(f"""
        L_gather1:
        buffer_load_dwordx4 {vr(vPoll,4)}, v{vLin}, {srd(WS_)}, s{sA} offen sc1
        s_waitcnt vmcnt(0)
        v_cmp_ne_u32 vcc, s{sTag}, v{vPoll+1}
        v_cmp_ne_u32 {sp(sP0)}, s{sTag}, v{vPoll+3}
        s_or_b64 vcc, vcc, {sp(sP0)}
        s_cbranch_vccz L_gotq
        {SPIN("L_gather1") if wqnoqw != 1 else ""}
        L_gotq:
        """)
    e(f"""
    v_mov_b32 v{vT0}, 1
    v_mov_b32 v{vT1}, s{sTag}
    ds_write2_b32 v{vS+2}, v{vPoll}, v{vPoll+2} offset0:0 offset1:{64 if wp == 2 else 1}
    s_and_b32 s{sT0}, s{sLid}, 0x7f
    s_and_b32 s{sT1}, s{sLid}, 7
    {"" if lay else f"s_cselect_b32 s{sT0}, 0x7f, s{sT0}"}
    {"" if lay else f"s_cmp_ge_u32 s{sT0}, 72"}
    s_waitcnt lgkmcnt(0)
    ds_write_b32 v{vZ}, v{vT0} offset:{LDS_CNT+4}
    s_cbranch_scc1 L_noep
    s_and_b32 s{sT1}, s{sLid}, 0x80
    s_lshl_b32 s{sT1}, s{sT1}, 4
    s_lshr_b32 s{sT0}, s{sT0}, 1
    s_add_u32 s{sT0}, s{sT0}, s{sT1}
    s_add_u32 s{sT0}, s{sT0}, {WS_FL}
    v_lshlrev_b32 v{vT2}, 7, v{vL}
    s_mov_b64 exec, {"0x1ff" if lay else "0xffff"}
    buffer_store_dword v{vT1}, v{vT2}, {srd(WS_)}, s{sT0} offen sc1
    s_mov_b64 exec, -1
    L_noep:
    """)
    if xl and not xq:
        e(f"""
        s_and_b32 s{sT0}, s{sLid}, 0xf8
        s_lshl_b32 s{sT0}, s{sT0}, 7
        s_add_u32 s{sT0}, s{sT0}, {WS_ML + 12}
        v_lshlrev_b32 v{vH+29}, 7, v{vL}
        s_mov_b64 exec, 0xff
        buffer_load_dword v{vH+28}, v{vH+29}, {srd(WS_)}, s{sT0} offen sc1
        s_mov_b64 exec, -1
        """)
    cp2 = p0 - sum(1 for x in steps if x < jpoll) if cprio2 < 0 else cprio2
    if prio and cp2 != 3:
        e(f"s_setprio {cp2}")
    vc.done = len(vc.ops)
    stamp(3)
    vc.add("fl")
    for t in seq[jpoll:npre]:
        issue(vc, t, uctl)
    e("s_branch L_readq")
    padspot("pre")
    e("L_dry_ret:")
    e("s_mov_b64 exec, -1")
    if not pre7:
        for i in range(4):
            issue_load("K0", i)
        issue_end("K0")
    vm = VM(e)
    vm.ops = ["K0"] * 4
    assert 4 * max(pre7, kq) <= upre
    for k in range(1, npre):
        e(f"L_pre{k}:")
        if k < min(max(kq, 1), pre7) :
            vm.ops += [seq[k]] * 4
            continue
        issue(vm, seq[k], upre)
    stamp(3)
    if pfq:
        e(f"""
        s_cmp_lg_u32 s{sW}, {pfw}
        s_cbranch_scc1 L_qspin
        s_lshl_b32 s{sT0}, s{sLid}, 11
        s_add_u32 s{sT0}, s{sT0}, {WS_H1}
        buffer_load_dwordx4 {vr(vH+8,4)}, v{vLin}, {srd(WS_)}, s{sT0} offen {pfc.replace("_", " ").replace("none", "")}
        """)
    for k, name in enumerate(hops2):
        e(f"s_cmp_eq_u32 s{sWm}, {k + hop2at}\ns_cbranch_scc1 P_{name}")
    e(f"""
    L_qspin:
    ds_read_b32 v{vT0}, v{vZ} offset:{LDS_CNT+4}
    s_waitcnt lgkmcnt(0)
    v_cmp_eq_u32 vcc, 0, v{vT0}
    s_cbranch_vccz L_readq
    {SPIN("L_qspin") if not wqnoqw else ""}
    L_readq:
    v_bfe_u32 v{vT0}, v{vL}, 3, 1
    v_and_b32 v{vT1}, 48, v{vL}
    v_lshl_or_b32 v{vT0}, v{vT0}, 8, v{vT1}
    """)
    for i in range(4):
        e(f"ds_read_b128 {vr(vQ+4*i,4)}, v{vT0} offset:{LDS_Q+64*i}")
    vm.done = len(vm.ops) - max(len(vm.ops) - vm.done, min(len(vm.ops), len(vc.ops) - vc.done))
    stamp(4)
    e(f"""
    s_lshl_b32 s{sT0}, s{sW}, 10
    v_add_u32 v{vRed}, s{sT0}, v{vLin}
    s_lshl_b32 s{sT0}, s{sW}, 3
    v_lshrrev_b32 v{vMLw}, 2, v{vT0}
    v_and_b32 v{vMLw}, 64, v{vMLw}
    v_add_u32 v{vMLw}, s{sT0}, v{vMLw}
    """)
    if lay:
        e(f"v_lshlrev_b32 v{vH+25}, 2, v{vL}")
    if rs:
        assert nb1 and woat >= 0
        e(f"""
        s_add_u32 s{sWm}, s{sW}, 5
        s_and_b32 s{sWm}, s{sWm}, 7
        """)
    if woat >= 0:
        e(wo_addr)
        e(t3_addr)
    if t4x:
        assert woat >= 0 and not wqcol
        e(f"""
        s_and_b32 s{sT0}, s{sIdx}, 31
        s_lshr_b32 s{sIdx}, s{sIdx}, 5
        s_lshl2_add_u32 s{sIdx}, s{sT0}, s{sIdx}
        s_and_b32 s{sT0}, s{sLid}, 0x80
        s_or_b32 s{sT0}, s{sT0}, s{sIdx}
        s_and_b32 s{sT0}, s{sT0}, 0xf8
        s_lshl_b32 s{sFo}, s{sT0}, 4
        s_add_u32 s{sFo}, s{sFo}, {WS_FL}
        """)
    if pfo == 18:
        e(f"""
        s_cmp_eq_u32 s{sW}, {pfw}
        s_cselect_b32 s{sT0}, 8, 0
        v_cmp_gt_u32 vcc, s{sT0}, v{vL}
        v_lshlrev_b32 v{vH+7}, 7, v{vL}
        v_mov_b32 v{vT1}, 0x40000000
        v_cndmask_b32 v{vH+7}, v{vT1}, v{vH+7}, vcc
        """)
    e(f"""
    s_mov_b32 vcc_lo, 0x00ff00ff
    s_mov_b32 vcc_hi, 0xff00ff00
    s_waitcnt lgkmcnt(0)
    """)
    if wqnoqw:
        for r in range(vQ, vQ + 16):
            e(f"v_mov_b32 v{r}, 0")
    if wqnocomp:
        for r in list(range(vS, vS + 16)) + list(range(vD, vD + 4)) + [vMx, vAl, vLs, vLs + 1, vN0, vN1]:
            e(f"v_mov_b32 v{r}, 0")

    st = {"sreg": {}, "sfree": [0, 1, 2, 3]}

    def softmax(c):
        sreg = st["sreg"]
        s0 = vS + 4 * sreg[2 * c]
        s1 = vS + 4 * sreg[2 * c + 1]
        nn, no = (vN0, vN1) if c % 2 == 0 else (vN1, vN0)
        if c == 0:
            e(f"v_max3_f32 v{vT0}, v{s0}, v{s0+1}, v{s0+2}")
            e(f"v_max3_f32 v{vT0}, v{vT0}, v{s0+3}, v{s1}")
            e(f"v_max3_f32 v{vT0}, v{vT0}, v{s1+1}, v{s1+2}")
            e(f"v_max_f32 v{vMx}, v{vT0}, v{s1+3}")
        else:
            e(f"v_max3_f32 v{vT0}, v{s0}, v{s0+1}, v{s0+2}")
            e(f"v_max3_f32 v{vMx}, v{vMx}, v{s0+3}, v{vT0}")
            e(f"v_max3_f32 v{vT0}, v{s1}, v{s1+1}, v{s1+2}")
            e(f"v_max3_f32 v{vMx}, v{vMx}, v{s1+3}, v{vT0}")
        allreduce(vMx, vT0, "v_max_f32")
        e(f"v_mul_f32 v{nn}, 0xbe0293ee, v{vMx}")
        for b in (s0, s1):
            for r in range(4):
                e(f"v_fma_f32 v{b+r}, v{b+r}, s{sC}, v{nn}")
        if c > 0:
            e(f"v_sub_f32 v{vAl}, v{nn}, v{no}")
            e(f"v_exp_f32 v{vAl}, v{vAl}")
        for b in (s0, s1):
            for r in range(4):
                e(f"v_exp_f32 v{b+r}, v{b+r}")
        if c > 0:
            e(f"v_cndmask_b32_dpp v{vAD}, v{vAl}, v{vAl}, vcc row_ror:8 row_mask:0xf bank_mask:0xf")
        e(f"v_pk_add_f32 {vr(vA,2)}, {vr(s0,2)}, {vr(s0+2,2)}")
        e(f"v_pk_add_f32 {vr(vT2,2)}, {vr(s1,2)}, {vr(s1+2,2)}")
        if c == 0:
            e(f"v_pk_add_f32 {vr(vLs,2)}, {vr(vA,2)}, {vr(vT2,2)}")
        else:
            e(f"v_pk_add_f32 {vr(vT2,2)}, {vr(vA,2)}, {vr(vT2,2)}")
            e(f"v_fma_f32 v{vLs}, v{vLs}, v{vAl}, v{vT2}")
            e(f"v_fma_f32 v{vLs+1}, v{vLs+1}, v{vAl}, v{vT2+1}")
        for b in (s0, s1):
            for r in range(4):
                e(f"v_cvt_pk_bf16_f32 v{b+r}, v{b+r}, v{b+r}")
        if c == 3:
            e(f"v_add_f32 v{vLt}, v{vLs}, v{vLs+1}")
            allreduce(vLt, vT0, "v_add_f32")
            e(f"ds_write_b64 v{vMLw}, {vr(vN1,2)} offset:{LDS_ML}")

    def diag_mfma(dst, pregs, bregs, zero_first):
        n = len(pregs)

        def ands(i):
            for d in range(4):
                e(f"v_and_b32 v{vA+4*(i&1)+d}, v{pregs[i]}, v{vM+d}")
        ands(0)
        for i in range(n):
            if i + 1 < n:
                ands(i + 1)
            c = "0" if (zero_first and i == 0) else vr(dst, 4)
            e(f"v_mfma_f32_16x16x32_bf16 {vr(dst,4)}, {vr(vA+4*(i&1),4)}, {vr(bregs[i],4)}, {c}")

    def process(vm, t):
        sreg, sfree = st["sreg"], st["sfree"]
        n = int(t[1])
        base = RING + 16 * slot[t]
        if t[0] == "K":
            sreg[n] = sfree.pop(0)
            s = vS + 4 * sreg[n]
            vm.wait_tag(t)
            for i in range(4 if not wqnocomp else 0):
                c = "0" if i == 0 else vr(s, 4)
                e(f"v_mfma_f32_16x16x32_bf16 {vr(s,4)}, {vr(base+4*i,4)}, {vr(vQ+4*i,4)}, {c}")
            if n & 1 and (not wqnocomp or n == 7):
                softmax(n >> 1)
        else:
            s = vS + 4 * sreg[n]
            if n > 0 and n % 2 == 0:
                for r in range(4):
                    e(f"v_mul_f32 v{vD+r}, v{vAD}, v{vD+r}")
            if str(n) in str(fine) and not wqnocomp:
                last = max(i for i, x in enumerate(vm.ops) if x == t)
                def ands(i):
                    for d in range(4):
                        e(f"v_and_b32 v{vA+4*(i&1)+d}, v{s+i}, v{vM+d}")
                ands(0)
                ands(1)
                for i in range(4):
                    vm.wait_n(len(vm.ops) - 1 - (last - 3 + i))
                    if i == 3 and n == 7:
                        stamp(6)
                    e(f"v_mfma_f32_16x16x32_bf16 {vr(vD,4)}, {vr(vA+4*(i&1),4)}, {vr(base+4*i,4)}, {vr(vD,4)}")
                    if i < 2:
                        ands(i + 2)
            else:
                vm.wait_tag(t)
                if n == 7:
                    stamp(6)
                if not wqnocomp:
                    diag_mfma(vD, [s + r for r in range(4)], [base + 4 * r for r in range(4)], n == 0)
            sfree.append(sreg[n])
        free.append(slot[t])

    def flags(ip):
        if noflag:
            return
        if lay:
            vF, vFo = vH + 24, vH + 25
            if ip == pf1:
                e(f"""
                s_cmp_lg_u32 s{sW}, 0
                s_cbranch_scc1 L_pf1
                s_cmp_ge_u32 s{sIdx}, 72
                s_cbranch_scc1 L_pf1
                s_mov_b64 exec, 0xffff
                buffer_load_dword v{vF}, v{vFo}, {srd(WS_)}, s{sFo} offen sc1
                s_mov_b64 exec, -1
                L_pf1:
                """)
                st["pf"] = len(vm.ops)
            if ip == pf2:
                e(f"""
                s_cmp_lg_u32 s{sW}, 0
                s_cbranch_scc1 L_pf3
                s_cmp_ge_u32 s{sIdx}, 72
                s_cbranch_scc1 L_pf3
                s_mov_b64 exec, 0xffff
                s_waitcnt vmcnt({len(vm.ops) - st["pf"]})
                L_pf2:
                v_cmp_ne_u32 {sp(sF)}, s{sTag}, v{vF}
                s_cmp_eq_u64 {sp(sF)}, 0
                s_cbranch_scc1 L_pf4
                buffer_load_dword v{vF}, v{vFo}, {srd(WS_)}, s{sFo} offen sc1
                s_waitcnt vmcnt(0)
                {SPIN("L_pf2")}
                L_pf4:
                s_mov_b64 exec, -1
                L_pf3:
                """)
            return
        if ip == pf1:
            e(f"""
            s_cmp_lg_u32 s{sW}, 0
            s_cbranch_scc1 L_pf1
            s_load_dwordx8 s[{sF}:{sF+7}], {sp(WS_)}, s{sFo} glc
            s_load_dword s{sF+8}, {sp(WS_)}, s{sFo} offset:32 glc
            L_pf1:
            """)
        if ip == pf2:
            e(f"""
            s_cmp_lg_u32 s{sW}, 0
            s_cbranch_scc1 L_pf3
            L_pf2:
            s_waitcnt lgkmcnt(0)
            s_xor_b64 {sp(sF)}, {sp(sF)}, {sp(sTag)}
            s_xor_b64 {sp(sF+2)}, {sp(sF+2)}, {sp(sTag)}
            s_xor_b64 {sp(sF+4)}, {sp(sF+4)}, {sp(sTag)}
            s_xor_b64 {sp(sF+6)}, {sp(sF+6)}, {sp(sTag)}
            s_xor_b32 s{sF+8}, s{sF+8}, s{sTag}
            s_or_b64 {sp(sF)}, {sp(sF)}, {sp(sF+2)}
            s_or_b64 {sp(sF+4)}, {sp(sF+4)}, {sp(sF+6)}
            s_or_b32 s{sF}, s{sF}, s{sF+8}
            s_or_b64 {sp(sF)}, {sp(sF)}, {sp(sF+4)}
            s_cbranch_scc0 L_pf3
            s_load_dwordx8 s[{sF}:{sF+7}], {sp(WS_)}, s{sFo} glc
            s_load_dword s{sF+8}, {sp(WS_)}, s{sFo} offset:32 glc
            {SPIN("L_pf2")}
            s_waitcnt lgkmcnt(0)
            L_pf3:
            """)

    assert 0 < pf1 < pf2 <= seq.index("K7") + 1
    ip, ii = 0, npre
    UWO = umain if uwo < 0 else (uwo if uwo else None)
    while ii < 16:
        k = ratio if (ii - ip) > la else 1
        for _ in range(k):
            process(vm, seq[ip])
            ip += 1
            flags(ip)
        padspot(f"m{ii}", True)
        if pfo and ii == pfo:
            e(f"""
            s_cmp_lg_u32 s{sW}, {pfw}
            s_cbranch_scc1 L_pfo
            buffer_load_dwordx4 {vr(vH+8,4)}, v{vLin}, {srd(WS_)}, s{sA} offen sc1
            {f"buffer_load_dwordx2 {vr(vH+12,2)}, v{vPb}, {srd(WS_)}, s{sMl} offen sc1" if pfm else ""}
            {f"buffer_load_dwordx2 {vr(vH+14,2)}, v{vPb}, {srd(WS_)}, s{sMl} offen offset:512 sc1" if pfm else ""}
            L_pfo:
            """)
        if woat >= 0 and ii == woat:
            issue_wo(vm, UWO, 0, 8 if not wosplit else 4)
        if woat >= 0 and wosplit and ii == woat + wosplit:
            issue_wo(vm, UWO, 4, 8)
        issue(vm, seq[ii], umain)
        ii += 1
    if woat == 16 - wosplit and wopos == 0:
        issue_wo(vm, UWO, 4 if wosplit else 0, 8)
        if pfo == 18:
            e(f"buffer_load_dword v{vH+26}, v{vH+7}, {srd(WS_)}, s{sA} offen {pfc.replace('_', ' ').replace('none', '')}")
            vm.add("wo")
        if pfo == 17:
            e(f"""
            s_cmp_lg_u32 s{sW}, {pfw}
            s_cbranch_scc1 L_pfo
            buffer_load_dwordx4 {vr(vH+8,4)}, v{vLin}, {srd(WS_)}, s{sA} offen {pfc.replace("_", " ").replace("none", "")}
            L_pfo:
            """)
    if woat == 16 and wopos:
        for _ in range(wopos):
            process(vm, seq[ip])
            ip += 1
            flags(ip)
        issue_wo(vm, UWO, 0, 8 if not wo2 else 8 - wo2)
    while seq.index("K7") >= ip:
        process(vm, seq[ip])
        ip += 1
        flags(ip)
    rest = seq[ip:]
    if woat < 0:
        wo_slots[:] = [free[0], free[1]]
    fs = [s for s in range(NSLOT) if s not in wo_slots]

    def finish(vm, withwo=True):
        save = (dict(st["sreg"]), list(st["sfree"]), list(free))
        for t in rest:
            if wo2 and t == rest[-1] and withwo and not wo3:
                issue_wo(vm, None, 8 - wo2, 8)
            process(vm, t)
        e(f"ds_write_b128 v{vRed}, {vr(vD,4)} offset:{LDS_RED}")
        st["sreg"], st["sfree"] = save[0], save[1]
        free[:] = save[2]

    Z = vH + 8

    X = vH + 8
    first_poll = f"""
    buffer_load_dwordx2 {vr(X,2)}, v{vPa}, {srd(WS_)}, s{sA} offen sc1
    buffer_load_dwordx2 {vr(X+2,2)}, v{vPa}, {srd(WS_)}, s{sA} offen offset:512 sc1
    buffer_load_dwordx2 {vr(X+4,2)}, v{vPb}, {srd(WS_)}, s{sMl} offen sc1
    buffer_load_dwordx2 {vr(X+6,2)}, v{vPb}, {srd(WS_)}, s{sMl} offen offset:512 sc1
    """
    if early:
        assert t3 and lay and woat >= 0 and asplit
    if nb1:
        assert asplit and woat >= 0 and not early and pw and fp
        e(f"""
        s_cmp_gt_u32 s{sWm if rs else sW}, 5
        s_cbranch_scc1 L_B67
        """)
        finish(vm.copy())
        e(f"""
        s_cmp_eq_u32 s{sW}, 0
        s_cbranch_scc1 L_c3
        """)
        stamp(5)
    elif asplit:
        e(f"""
        s_cmp_gt_u32 s{sW}, 3
        s_cbranch_scc1 L_B
        """)
        finish(vm.copy())
        if woat < 0:
            e(wo_addr)
            e(t3_addr)
        e(f"""
        s_cmp_eq_u32 s{sW}, 0
        s_waitcnt lgkmcnt(0)
        s_barrier
        s_cbranch_scc1 L_c3
        """)
        stamp(5)
        if woat < 0:
            issue_wo(vm.copy())
        if early:
            e(first_poll)
        e("s_branch L_bf3")
        padspot("B")
        e(f"""
        L_B:
        s_cmp_gt_u32 s{sW}, 5
        s_cbranch_scc1 L_B67
        """)
    else:
        e(f"""
        s_cmp_eq_u32 s{sW}, 0
        s_cbranch_scc1 L_c3a
        s_cmp_gt_u32 s{sW}, 5
        s_cbranch_scc1 L_B67
        """)
    if woat < 0:
        e(wo_addr)
    if not nb1:
        e(f"""
        s_waitcnt lgkmcnt(0)
        s_barrier
        """)
        stamp(5)
    vb = vm.copy()
    if woat < 0:
        issue_wo(vb)
        e(t3_addr)
    if early:
        e(first_poll)
        for _ in range(4):
            vb.add("poll")
    if not nb1:
        finish(vb)
    X = vH + 8
    F0, F1 = vH + 16, vH + 17
    D0, D1, E = vS, vS + 4, vD
    PB = vQ
    o_loads = f"""
    buffer_load_dwordx2 {vr(X,2)}, v{vPa}, {srd(WS_)}, s{sA} offen sc1
    buffer_load_dwordx2 {vr(X+2,2)}, v{vPa}, {srd(WS_)}, s{sA} offen offset:512 sc1
    """
    o_check = f"""
    v_max3_u32 v{vT0}, v{X}, v{X+1}, v{X+2}
    v_max_u32 v{vT0}, v{vT0}, v{X+3}
    v_cmp_eq_u32 vcc, -1, v{vT0}
    """
    e("L_bf3:")
    if wo3 == 1:
        assert nb1 and wo2
        issue_wo(vm.copy(), None, 8 - wo2, 8)
    e(f"""
    s_waitcnt lgkmcnt(0)
    s_barrier
    """)
    if wo3 == 2:
        assert nb1 and wo2
        issue_wo(vm.copy(), None, 8 - wo2, 8)
    stamp(7)
    if wqnotail:
        e('s_cmp_eq_u32 s2, s2\ns_cbranch_scc1 L_fin')
    M0, M1 = sP0 + 2, sP0 + 4
    if pw:
        assert sel and t3 and lay in (1, 2) and not early and t4bar and asplit and xl
        if vc3:
            e(f"""
            v_and_b32 v{vT0}, 0x30, v{vL}
            v_and_b32 v{vT1}, 3, v{vL}
            v_lshl_or_b32 v{vT0}, v{vT1}, 2, v{vT0}
            v_and_b32 v{vT1}, 4, v{vL}
            v_lshl_or_b32 v{vT0}, v{vT1}, 4, v{vT0}
            v_and_b32 v{vT1}, 8, v{vL}
            v_lshl_or_b32 v{vT0}, v{vT1}, 6, v{vT0}
            v_add_u32 v{vT0}, {LDS_O}, v{vT0}
            v_lshlrev_b32 v{vT1}, 1, v{vT1}
            s_waitcnt vmcnt(0)
            """)
            stamp(8)
            e(f"""
            s_barrier
            ds_read2_b32 {vr(X,2)}, v{vT0} offset0:0 offset1:32
            ds_read_b128 {vr(X+4,4)}, v{vT1} offset:{LDS_F}
            ds_read2_b32 {vr(X+2,2)}, v{vT0} offset0:64 offset1:96
            s_waitcnt lgkmcnt(1)
            v_pk_mul_f32 {vr(X,2)}, {vr(X,2)}, {vr(X+4,2)}
            s_waitcnt lgkmcnt(0)
            """)
        else:
            e(f"""
            v_lshrrev_b32 v{vT0}, 5, v{vPb}
            v_add_u32 v{vT0}, {LDS_F}, v{vT0}
            s_waitcnt vmcnt(0)
            """)
            stamp(8)
            e(f"""
            s_barrier
            ds_read_b64 {vr(X,2)}, v{vPa} offset:{LDS_O}
            ds_read_b64 {vr(X+2,2)}, v{vPa} offset:{LDS_O+512}
            ds_read2_b32 {vr(F0,2)}, v{vT0} offset0:0 offset1:4
            s_waitcnt lgkmcnt(0)
            """)
    elif b2:
        e("s_barrier")

    def o_repoll(k):
        e(f"""
        v_max_u32 v{vT0}, v{X}, v{X+1}
        v_max_u32 v{vT1}, v{X+2}, v{X+3}
        v_cmp_eq_u32 {sp(M0)}, -1, v{vT0}
        v_cmp_eq_u32 {sp(M1)}, -1, v{vT1}
        s_or_b64 exec, {sp(M0)}, {sp(M1)}
        s_cbranch_scc0 L_or{k}c
        s_mov_b64 exec, {sp(M0)}
        s_cbranch_execz L_or{k}a
        buffer_load_dwordx2 {vr(X,2)}, v{vPa}, {srd(WS_)}, s{sA} offen sc1
        L_or{k}a:
        s_mov_b64 exec, {sp(M1)}
        s_cbranch_execz L_or{k}b
        buffer_load_dwordx2 {vr(X+2,2)}, v{vPa}, {srd(WS_)}, s{sA} offen offset:512 sc1
        L_or{k}b:
        s_mov_b64 exec, -1
        """)

    if pw:
        pass
    elif t3:
        M2, M3 = sP0 + 6, sF
        if not early:
            e(first_poll)
        if prof and pmode == 1:
            e("s_waitcnt vmcnt(4)")
            stamp(13)
            e("s_waitcnt vmcnt(0)")
            stamp(12)
        e(f"""
        L_ml:
        s_waitcnt vmcnt(0)
        v_max_u32 v{vT0}, v{X+4}, v{X+5}
        v_max_u32 v{vT1}, v{X+6}, v{X+7}
        v_cmp_eq_u32 {sp(M2)}, -1, v{vT0}
        v_cmp_eq_u32 {sp(M3)}, -1, v{vT1}
        """)
        o_repoll(0)
        e(f"""
        L_or0c:
        s_or_b64 exec, {sp(M2)}, {sp(M3)}
        s_cbranch_scc0 L_ml_ok
        s_mov_b64 exec, {sp(M2)}
        s_cbranch_execz L_mla
        buffer_load_dwordx2 {vr(X+4,2)}, v{vPb}, {srd(WS_)}, s{sMl} offen sc1
        L_mla:
        s_mov_b64 exec, {sp(M3)}
        s_cbranch_execz L_mlb
        buffer_load_dwordx2 {vr(X+6,2)}, v{vPb}, {srd(WS_)}, s{sMl} offen offset:512 sc1
        L_mlb:
        s_mov_b64 exec, -1
        {SPIN("L_ml")}
        s_waitcnt vmcnt(0)
        L_ml_ok:
        s_mov_b64 exec, -1
        v_min_f32 v{vMx}, v{X+4}, v{X+6}
        """)
        allreduce(vMx, vT0, "v_min_f32")
        e(f"""
        v_sub_f32 v{F0}, v{vMx}, v{X+4}
        v_sub_f32 v{F1}, v{vMx}, v{X+6}
        v_exp_f32 v{F0}, v{F0}
        v_exp_f32 v{F1}, v{F1}
        v_mul_f32 v{vMx}, v{F0}, v{X+5}
        v_fmac_f32 v{vMx}, v{F1}, v{X+7}
        """)
        allreduce(vMx, vT0, "v_add_f32")
        e(f"""
        v_rcp_f32 v{vMx}, v{vMx}
        v_mul_f32 v{F0}, v{F0}, v{vMx}
        v_mul_f32 v{F1}, v{F1}, v{vMx}
        """)
    else:
        if sel:
            e(f"""
            L_t3b:
            s_cbranch_execz L_t3c
            {o_loads}
            L_ml:
            buffer_load_dwordx2 {vr(X+4,2)}, v{vPb}, {srd(WS_)}, s{sMl if lay else sA} offen offset:{0 if lay else 1024} sc1
            buffer_load_dwordx2 {vr(X+6,2)}, v{vPb}, {srd(WS_)}, s{sMl if lay else sA} offen offset:{512 if lay else 1056} sc1
            s_waitcnt vmcnt(0)
            """)
            o_repoll(0)
            e(f"""
            s_branch L_t3c
            L_or0c:
            s_mov_b64 exec, -1
            L_t3c:
            v_min_f32 v{vMx}, v{X+4}, v{X+6}
            """)
        else:
            e(f"""
            L_t3b:
            s_cbranch_execz L_t3c
            L_ml:
            buffer_load_dwordx2 {vr(X+4,2)}, v{vPb}, {srd(WS_)}, s{sA} offen offset:1024 sc1
            buffer_load_dwordx2 {vr(X+6,2)}, v{vPb}, {srd(WS_)}, s{sA} offen offset:1056 sc1
            {o_loads}
            s_waitcnt vmcnt(0)
            {o_check}
            s_mov_b64 {sp(sP0+2)}, vcc
            s_cbranch_vccz L_t3c
            {o_loads}
            L_t3c:
            v_min_f32 v{vMx}, v{X+4}, v{X+6}
            """)
        allreduce(vMx, vT0, "v_min_f32")
        e(f"""
        v_sub_f32 v{F0}, v{vMx}, v{X+4}
        v_sub_f32 v{F1}, v{vMx}, v{X+6}
        v_exp_f32 v{F0}, v{F0}
        v_exp_f32 v{F1}, v{F1}
        v_mul_f32 v{vMx}, v{F0}, v{X+5}
        v_fmac_f32 v{vMx}, v{F1}, v{X+7}
        """)
        allreduce(vMx, vT0, "v_add_f32")
        e(f"""
        v_cmp_u_f32 vcc, v{vMx}, v{vMx}
        s_cbranch_vccz L_ml_ok
        {"" if sel else "s_waitcnt vmcnt(0)"}
        {SPIN("L_ml")}
        L_ml_ok:
        v_rcp_f32 v{vMx}, v{vMx}
        v_mul_f32 v{F0}, v{F0}, v{vMx}
        v_mul_f32 v{F1}, v{F1}, v{vMx}
        """)
    if not pw:
        stamp(8)
    if pw:
        pass
    elif sel:
        e(f"""
        s_cbranch_execz L_t3e
        s_or_b64 {sp(M0)}, {sp(M0)}, {sp(M1)}
        s_cbranch_scc0 L_t3e
        L_h1:
        s_waitcnt vmcnt(0)
        """)
        o_repoll(1)
        e(f"""
        {SPIN("L_h1")}
        s_waitcnt vmcnt(0)
        L_or1c:
        s_mov_b64 exec, -1
        L_t3e:
        """)
    else:
        e(f"""
        s_cbranch_execz L_t3e
        s_cmp_eq_u64 {sp(sP0+2)}, 0
        s_cbranch_scc1 L_t3e
        L_h1:
        s_waitcnt vmcnt(0)
        {o_check}
        s_cbranch_vccz L_t3e
        {o_loads}
        {SPIN("L_h1")}
        s_waitcnt vmcnt(0)
        L_t3e:
        """)
    stamp(9)
    if vc3:
        assert pw
        e(f"""
        v_pk_fma_f32 {vr(X,2)}, {vr(X+2,2)}, {vr(X+6,2)}, {vr(X,2)}
        v_add_f32 v{X}, v{X}, v{X+1}
        v_add_f32_dpp v{X}, v{X}, v{X} row_ror:8 row_mask:0xf bank_mask:0xf
        v_cvt_pk_bf16_f32 v{PB}, v{X}, v{X}
        """)
        stamp(12)
        AB = [vA, vA + 4, vS, vS + 4] if vc3 == 2 else [vA, vA + 4]
        def bands(i):
            for d in range(4):
                e(f"v_and_b32_dpp v{AB[i % len(AB)]+d}, v{PB}, v{vM+d} row_newbcast:{i} row_mask:0xf bank_mask:0xf")
        bands(0)
        for i in range(8):
            if i < 7:
                bands(i + 1)
            b = RING + 16 * wo_slots[i >> 2] + 4 * (i & 3)
            e(f"v_mfma_f32_16x16x32_bf16 {vr(E,4)}, {vr(AB[i % len(AB)],4)}, {vr(b,4)}, {'0' if i == 0 else vr(E,4)}")
    else:
        e(f"""
        v_mfma_f32_16x16x4_f32 {vr(D0,4)}, v{X}, v{F0}, 0
        v_mfma_f32_16x16x4_f32 {vr(D1,4)}, v{X+1}, v{F0}, 0
        v_mfma_f32_16x16x4_f32 {vr(D0,4)}, v{X+2}, v{F1}, {vr(D0,4)}
        v_mfma_f32_16x16x4_f32 {vr(D1,4)}, v{X+3}, v{F1}, {vr(D1,4)}
        """)
        for r in range(4):
            e(f"v_cvt_pk_bf16_f32 v{PB+2*r}, v{D0+r}, v{D0+r}")
        for r in range(4):
            e(f"v_cvt_pk_bf16_f32 v{PB+2*r+1}, v{D1+r}, v{D1+r}")
        if pw:
            stamp(12)
        diag_mfma(E, [PB + r for r in range(8)], [RING + 16 * wo_slots[r >> 2] + 4 * (r & 3) for r in range(8)], True)
    e(f"""
    s_cbranch_execz L_t4b
    s_mov_b64 exec, {sp(sP0)}
    buffer_store_dwordx4 {vr(E,4)}, v{vPc}, {srd(WS_)}, s{sB} offen sc1
    """)
    if pw:
        stamp(13)
    if t4m in (1, 2):
        e("s_waitcnt vmcnt(0)")
    if t4bar:
        e("s_barrier")
    stamp(11)
    e(FIN)
    if not asplit:
        e(f"""
        L_c3a:
        v_mov_b32 v{vPd}, 0
        s_waitcnt lgkmcnt(0)
        s_barrier
        """)
    padspot("c3")
    e("L_c3:")
    stamp(5)
    e(f"""
    v_lshrrev_b32 v{vT0}, 5, v{vL}
    v_lshlrev_b32 v{vPb}, 6, v{vT0}
    """)
    if xl:
        e(f"""
        s_mov_b64 exec, 0xff
        v_cmp_ne_u32 {sp(sP0)}, s{sXc}, v{vH+28}
        s_mov_b64 exec, -1
        """)

    def hstore(txt, k):
        if not xl or str(k) in str(hs1):
            e(txt + " sc1")
            return
        e(f"""
        s_cmp_eq_u64 {sp(sP0)}, 0
        s_cbranch_scc1 L_hs{k}a
        {txt} sc1
        s_branch L_hs{k}b
        L_hs{k}a:
        {txt}
        L_hs{k}b:
        """)
    for i in range(4):
        e(f"ds_read_b128 {vr(Z+4*i,4)}, v{vPb} offset:{LDS_ML+16*i}")
    e(f"""
    v_bfe_u32 v{vT1}, v{vL}, 2, 2
    v_lshl_or_b32 v{vT1}, v{vT0}, 2, v{vT1}
    v_lshlrev_b32 v{vPc}, 11, v{vT1}
    {f"v_cmp_eq_u32 {sp(sP0+2)}, s{sS}, v{vT1}" if pw else ""}
    v_and_b32 v{vT1}, 3, v{vL}
    v_lshl_or_b32 v{vPa}, v{vT1}, {4 if lay else 5}, v{vPc}
    {f"v_lshlrev_b32 v{vPc}, 4, v{vT1}" if lay else ""}
    {f"v_lshl_or_b32 v{vPc}, v{vT0}, 6, v{vPc}" if lay else ""}
    v_and_b32 v{vT1}, 16, v{vL}
    {f"v_lshl_or_b32 v{vPa}, v{vT1}, 2, v{vPa}" if lay else f"v_or_b32 v{vPa}, v{vPa}, v{vT1}"}
    {f"s_lshl_b32 s{sMl}, s{sLid}, 7" if lay else ""}
    {f"s_add_u32 s{sMl}, s{sMl}, {WS_ML}" if lay else ""}
    s_and_b32 s{sA}, s{sLid}, 0xf8
    s_lshl_b32 s{sA}, s{sA}, 11
    s_add_u32 s{sA}, s{sA}, {WS_H1}
    s_lshl_b32 s{sT0}, s{sS}, 3
    s_add_u32 s{sB}, s{sA}, s{sT0}
    s_lshl_b32 s{sT0}, s{sS}, 7
    s_add_u32 s{sA}, s{sA}, s{sT0}
    L_c3w:
    s_waitcnt lgkmcnt(0)
    """)
    if nb1:
        e(f"""
        v_max3_u32 v{vT0}, v{Z+1}, v{Z+3}, v{Z+5}
        v_max3_u32 v{vT2}, v{Z+7}, v{Z+9}, v{Z+11}
        v_max3_u32 v{vT0}, v{vT0}, v{Z+13}, v{Z+15}
        v_max_u32 v{vT0}, v{vT0}, v{vT2}
        v_cmp_eq_u32 vcc, -1, v{vT0}
        s_cbranch_vccz L_c3ok
        {"s_setprio 0" if nb1 == 2 else ""}
        """)
        for i in range(4):
            e(f"ds_read_b128 {vr(Z+4*i,4)}, v{vPb} offset:{LDS_ML+16*i}")
        e(f"""
        {SPIN("L_c3w")}
        s_waitcnt lgkmcnt(0)
        L_c3ok:
        {"s_setprio 3" if nb1 == 2 else ""}
        """)
    e(f"""
    v_min3_f32 v{vT2}, v{Z}, v{Z+2}, v{Z+4}
    v_min3_f32 v{vT0}, v{Z+6}, v{Z+8}, v{Z+10}
    v_min3_f32 v{vT2}, v{vT2}, v{Z+12}, v{Z+14}
    v_min_f32 v{vT2}, v{vT2}, v{vT0}
    """)
    for w in range(8):
        e(f"v_sub_f32 v{Z+2*w}, v{vT2}, v{Z+2*w}")
    for w in range(8):
        e(f"v_exp_f32 v{Z+2*w}, v{Z+2*w}")
    e(f"v_mul_f32 v{vT2+1}, v{Z}, v{Z+1}")
    for w in range(1, 8):
        e(f"v_fmac_f32 v{vT2+1}, v{Z+2*w}, v{Z+2*w+1}")
    if lay:
        e(f"""
        v_mov_b32 v{vS}, v{vT2}
        v_mov_b32 v{vS+1}, v{vT2+1}
        v_mov_b32 v{vS+2}, v{vT2}
        v_mov_b32 v{vS+3}, v{vT2+1}
        s_mov_b32 exec_lo, 15
        s_mov_b32 exec_hi, 15
        """)
        hstore(f"buffer_store_dwordx4 {vr(vS,4)}, v{vPc}, {srd(WS_)}, s{sMl} offen", 0)
        if pw and pwo:
            e(f"ds_write_b128 v{vPc}, {vr(vS,4)} offset:{LDS_OML}")
        e("s_mov_b64 exec, -1")
        if pw:
            e(f"""
            s_lshl_b32 s{sT0}, s{sS}, 7
            v_and_b32 v{vH+26}, 0x7f, v{vPa}
            v_or_b32 v{vH+26}, s{sT0}, v{vH+26}
            """)
    else:
        e(f"""
        s_mov_b32 exec_lo, 0x1111
        s_mov_b32 exec_hi, 0x1111
        buffer_store_dwordx2 {vr(vT2,2)}, v{vPc}, {srd(WS_)}, s{sB} offen offset:1024 sc1
        s_mov_b64 exec, -1
        """)
    if not asplit:
        finish(vm.copy())
    Y = [RING + 16 * fs[-1 - (w >> 2)] + 4 * (w & 3) for w in range(8)]
    e(f"""
    s_waitcnt lgkmcnt(0)
    s_barrier
    """)
    stamp(7)
    if wqnotail:
        e('s_cmp_eq_u32 s2, s2\ns_cbranch_scc1 L_fin')
    e("L_t2b:")
    for w in range(8):
        e(f"ds_read_b128 {vr(Y[w],4)}, v{vLin} offset:{LDS_RED+1024*w}")
    for w in range(8):
        if w in (0, 2, 4, 6):
            e(f"s_waitcnt lgkmcnt({6-w})")
        for h in (0, 2):
            if w == 0:
                e(f"v_pk_mul_f32 {vr(vD+h,2)}, {vr(Y[0]+h,2)}, {vr(Z,2)} op_sel_hi:[1,0]")
            else:
                e(f"v_pk_fma_f32 {vr(vD+h,2)}, {vr(Y[w]+h,2)}, {vr(Z+2*w,2)}, {vr(vD+h,2)} op_sel_hi:[1,0,1]")
    if not t3:
        e("s_cbranch_execz L_t3b")
    hstore(f"buffer_store_dwordx4 {vr(vD,4)}, v{vPa}, {srd(WS_)}, s{sA} offen", 1)
    if pw:
        stamp(11)
        e(f"""
        s_mov_b64 exec, {sp(sP0+2)}
        ds_write_b128 v{vH+26}, {vr(vD,4)} offset:{LDS_O}
        s_waitcnt lgkmcnt(0)
        s_barrier
        {"s_barrier" if prof else ""}
        """)
    elif b2:
        e("s_barrier")
    if not pw:
        stamp(11)
    e(FIN)
    R = RING + 16 * fs[-1]
    padspot("B67")
    e(f"""
    L_B67:
    {"" if nb1 else "s_waitcnt lgkmcnt(0)"}
    {"" if nb1 else "s_barrier"}
    """)
    stamp(5)
    e(f"""
    v_lshrrev_b32 v{vT0}, 4, v{vL}
    v_and_b32 v{vT1}, 1, v{vL}
    v_lshlrev_b32 v{vT0}, 1, v{vT0}
    v_lshl_or_b32 v{vPd}, v{vT1}, 3, v{vT0}
    s_lshl_b32 s{sP0+2}, s{sLid}, 12
    s_add_u32 s{sP0+2}, s{sP0+2}, {WS_I2}
    s_lshr_b32 s{sP0+3}, s{sLid}, 7
    s_mul_i32 s{sP0+3}, s{sP0+3}, 1152
    s_lshl_b32 s{sT0}, s{sIdx}, 4
    s_add_u32 s{sP0+3}, s{sP0+3}, s{sT0}
    v_add_u32 v{vPd}, s{sP0+3}, v{vPd}
    s_and_b32 s{sEp}, s{sLid}, 0x80
    s_add_u32 s{sEp}, s{sEp}, {WS_EP}
    s_load_dword s{sTag}, {sp(WS_)}, s{sEp}
    v_mov_b32 v{vPc}, s{sEp}
    """)
    if lay:
        e(f"""
        v_lshrrev_b32 v{vT0}, 1, v{vL}
        v_mul_u32_u24 v{vPa}, 2304, v{vT0}
        v_lshl_or_b32 v{vPa}, v{vT1}, 6, v{vPa}
        s_and_b32 s{sT0}, s{sLid}, 0x80
        s_mul_i32 s{sT0}, s{sT0}, 2304
        s_add_u32 s{sT0}, s{sT0}, {WS_I2}
        s_and_b32 s{sT1}, s{sIdx}, 3
        s_lshl_b32 s{sT1}, s{sT1}, 4
        s_add_u32 s{sT0}, s{sT0}, s{sT1}
        s_lshr_b32 s{sT1}, s{sIdx}, 2
        s_lshl_b32 s{sT1}, s{sT1}, 7
        s_add_u32 s{sP0+2}, s{sT0}, s{sT1}
        s_add_u32 s{sP0+3}, s{sP0+2}, {73728}
        s_add_u32 s{sP0+4}, s{sP0+2}, {2*73728}
        s_add_u32 s{sP0+5}, s{sP0+2}, {3*73728}
        """)
    if lay == 2:
        e(f"""
        v_mul_u32_u24 v{vPa}, 2304, v{vT0}
        v_lshl_or_b32 v{vPa}, v{vT1}, 4, v{vPa}
        s_and_b32 s{sT0}, s{sLid}, 0x80
        s_mul_i32 s{sT0}, s{sT0}, 2304
        s_add_u32 s{sT0}, s{sT0}, {WS_I2}
        s_lshl_b32 s{sT1}, s{sIdx}, 5
        s_add_u32 s{sP0+2}, s{sT0}, s{sT1}
        s_add_u32 s{sP0+3}, s{sP0+2}, {73728}
        s_add_u32 s{sP0+4}, s{sP0+2}, {2*73728}
        s_add_u32 s{sP0+5}, s{sP0+2}, {3*73728}
        v_lshrrev_b32 v{vT0}, 4, v{vL}
        v_lshlrev_b32 v{vT0}, 1, v{vT0}
        v_lshl_or_b32 v{vPd}, v{vT1}, 4, v{vT0}
        s_lshr_b32 s{sT0}, s{sLid}, 7
        s_mul_i32 s{sT0}, s{sT0}, 1152
        s_and_b32 s{sT1}, s{sIdx}, 0x78
        s_lshl_b32 s{sT1}, s{sT1}, 4
        s_add_u32 s{sT0}, s{sT0}, s{sT1}
        s_and_b32 s{sT1}, s{sIdx}, 3
        s_lshl_b32 s{sT1}, s{sT1}, 5
        s_add_u32 s{sT0}, s{sT0}, s{sT1}
        s_and_b32 s{sT1}, s{sIdx}, 4
        s_lshl_b32 s{sT1}, s{sT1}, 1
        s_add_u32 s{sT0}, s{sT0}, s{sT1}
        v_add_u32 v{vPd}, s{sT0}, v{vPd}
        """)

    def t4_load(i):
        if lay:
            return f"buffer_load_dwordx4 {vr(R+4*i,4)}, v{vPa}, {srd(WS_)}, s{sP0+2+i} offen sc1"
        return f"buffer_load_dwordx4 {vr(R+4*i,4)}, v{vLin}, {srd(WS_)}, s{sP0+2} offen offset:{1024*i} sc1"
    if pw:
        PM = sF
        e(f"""
        s_lshl_b32 s{sT0}, s{sS}, 3
        s_lshl_b64 {sp(PM)}, 0xff, s{sT0}
        s_not_b64 {sp(PM)}, {sp(PM)}
        v_and_b32 v{vT0}, 7, v{vL}
        v_lshlrev_b32 v{vPb}, 7, v{vT0}
        v_lshlrev_b32 v{vH+26}, 2, v{vT0}
        s_and_b32 s{sT0}, s{sLid}, 4
        s_lshl_b32 s{sT0}, s{sT0}, 4
        v_mov_b32 v{vH+27}, s{sT0}
        v_cmp_ne_u32 {sp(sF+2)}, s{sS}, v{vT0}
        """)
    v67 = vm.copy()
    if pw and pwe:
        assert pwo
        early67 = (f"""
        s_cmp_eq_u32 s{sWm if rs else sW}, 6
        s_cbranch_scc1 L_e6
        s_mov_b64 exec, {sp(PM)}
        buffer_load_dwordx4 {vr(vH+12,4)}, v{vLin}, {srd(WS_)}, s{sA} offen sc1
        s_branch L_e7
        L_e6:
        s_mov_b64 exec, {sp(sF+2)}
        buffer_load_dwordx2 {vr(vH+8,2)}, v{vPb}, {srd(WS_)}, s{sMl} offen sc1
        L_e7:
        s_mov_b64 exec, -1
        """)
    if pw and pwe == 1:
        e(early67)
        v67.add("poll")
    finish(v67, False)
    if pw and pwe == 2:
        e(early67)
    e(f"""
    s_waitcnt lgkmcnt(0)
    s_barrier
    """)
    stamp(7)
    if wqnotail:
        e('s_cmp_eq_u32 s2, s2\ns_cbranch_scc1 L_fin')
    if pw:
        PR = [(vH + 12 if (pwe and k == 0) else R + 4 * k) for k in range(pw)]
        pl = lambda k: f"buffer_load_dwordx4 {vr(PR[k],4)}, v{vLin}, {srd(WS_)}, s{sA} offen sc1"
        e(f"""
        s_cmp_eq_u32 s{sWm if rs else sW}, 6
        s_cbranch_scc1 L_w6
        s_mov_b64 exec, {sp(PM)}
        """)
        for k in range(1 if pwe else 0, pw):
            e(pl(k))
        e("L_pw:")
        for k in range(pw):
            e(f"""
            s_waitcnt vmcnt({pw-1})
            v_max3_u32 v{vT0}, v{PR[k]}, v{PR[k]+1}, v{PR[k]+2}
            v_max_u32 v{vT0}, v{vT0}, v{PR[k]+3}
            v_cmp_ne_u32 vcc, -1, v{vT0}
            s_cbranch_vccz L_pw{k}
            s_mov_b64 exec, vcc
            ds_write_b128 v{vLin}, {vr(PR[k],4)} offset:{LDS_O}
            s_andn2_b64 {sp(PM)}, {sp(PM)}, vcc
            s_cbranch_scc0 L_pwd
            s_mov_b64 exec, {sp(PM)}
            L_pw{k}:
            {pl(k)}
            """)
        e(f"""
        {SPIN("L_pw")}
        L_pwd:
        s_waitcnt lgkmcnt(0)
        """)
        stamp(9)
        e(f"""
        s_barrier
        {"s_barrier" if prof else ""}
        s_waitcnt vmcnt(0)
        {FIN}
        """)
        padspot("w6")
        e("L_w6:")
        XM = vH + 8
        if pwo:
            e(f"""
            s_not_b64 exec, {sp(sF+2)}
            ds_read_b64 {vr(XM,2)}, v{vH+27} offset:{LDS_OML}
            s_mov_b64 exec, {sp(sF+2)}
            {"s_branch L_ml6w" if pwe else ""}
            L_ml6:
            """)
        else:
            e("L_ml6:")
        e(f"""
        buffer_load_dwordx2 {vr(XM,2)}, v{vPb}, {srd(WS_)}, s{sMl} offen sc1
        L_ml6w:
        s_waitcnt vmcnt(0)
        v_max_u32 v{vT0}, v{XM}, v{XM+1}
        v_cmp_eq_u32 vcc, -1, v{vT0}
        s_cbranch_vccz L_ml6ok
        {SPIN("L_ml6")}
        L_ml6ok:
        s_mov_b64 exec, -1
        {"s_waitcnt lgkmcnt(0)" if pwo else ""}
        v_min_f32_dpp v{vT0}, v{XM}, v{XM} row_ror:4 row_mask:0xf bank_mask:0xf
        v_min_f32_dpp v{vT0}, v{vT0}, v{vT0} row_ror:2 row_mask:0xf bank_mask:0xf
        v_min_f32_dpp v{vT0}, v{vT0}, v{vT0} row_ror:1 row_mask:0xf bank_mask:0xf
        v_sub_f32 v{vT0}, v{vT0}, v{XM}
        v_exp_f32 v{XM}, v{vT0}
        v_mul_f32 v{XM+1}, v{XM}, v{XM+1}
        v_add_f32_dpp v{vT0}, v{XM+1}, v{XM+1} row_ror:4 row_mask:0xf bank_mask:0xf
        v_add_f32_dpp v{vT0}, v{vT0}, v{vT0} row_ror:2 row_mask:0xf bank_mask:0xf
        v_add_f32_dpp v{vT0}, v{vT0}, v{vT0} row_ror:1 row_mask:0xf bank_mask:0xf
        v_rcp_f32 v{vT0}, v{vT0}
        s_mov_b64 exec, 0xff
        v_mul_f32 v{XM}, v{XM}, v{vT0}
        ds_write_b32 v{vH+26}, v{XM} offset:{LDS_F}
        s_waitcnt lgkmcnt(0)
        s_mov_b64 exec, -1
        """)
        stamp(8)
        e("s_barrier")
    e(f"""
    {"s_barrier" if b2 and not pw else ""}
    {"s_barrier" if pw and prof and t4m < 2 else ""}
    {"" if t4d else f"s_cmp_lg_u32 s{sWm if rs else sW}, 6"}
    {"" if t4d else "s_cbranch_scc1 L_fin"}
    s_cmp_ge_u32 s{sIdx}, 72
    s_cbranch_scc1 L_fin
    {f"s_and_b32 s{sT0}, s{sIdx}, {wqt4}" if wqt4 else ""}
    {"s_cbranch_scc1 L_fin" if wqt4 else ""}
    {"s_barrier" if t4bar and not (pw and prof) and t4m < 2 else ""}
    L_t4b:
    s_cbranch_execz L_t4c
    {"" if sel else "L_h2:"}
    """)
    for i in range(4):
        e(t4_load(i))
    if t4m >= 2:
        assert pw
        e("s_barrier")
    if sel:
        MM = [sF + 2 * i for i in range(4)]
        if p4:
            e("s_waitcnt vmcnt(0)")
        e("L_h2:")
        if not p4:
            e("s_waitcnt vmcnt(0)")
        for i in range(4):
            e(f"v_max3_u32 v{vA+i}, v{R+4*i}, v{R+4*i+1}, v{R+4*i+2}")
        for i in range(4):
            e(f"v_max_u32 v{vA+i}, v{vA+i}, v{R+4*i+3}")
        for i in range(4):
            e(f"v_cmp_eq_u32 {sp(MM[i])}, -1, v{vA+i}")
        e(f"""
        s_or_b64 vcc, {sp(MM[0])}, {sp(MM[1])}
        s_or_b64 exec, {sp(MM[2])}, {sp(MM[3])}
        s_or_b64 exec, exec, vcc
        s_cbranch_scc0 L_h2_got
        """)
        for i in range(4):
            e(f"""
            s_mov_b64 exec, {sp(MM[i])}
            s_cbranch_execz L_h2_{i}
            {t4_load(i)}
            L_h2_{i}:
            """)
        e(f"""
        s_mov_b64 exec, -1
        {f"s_waitcnt vmcnt({p4})" if p4 else ""}
        {SPIN("L_h2")}
        s_waitcnt vmcnt(0)
        """)
        padspot("t4", True)
        e("""
        L_h2_got:
        s_mov_b64 exec, -1
        """)
    else:
        e("s_waitcnt vmcnt(0)")
    e("L_t4c:")
    if p4:
        R0, R = R, vS
        for h in (0, 2):
            e(f"v_pk_add_f32 {vr(R+h,2)}, {vr(R0+h,2)}, {vr(R0+4+h,2)}")
        for h in (0, 2):
            e(f"v_pk_add_f32 {vr(R+4+h,2)}, {vr(R0+8+h,2)}, {vr(R0+12+h,2)}")
        for h in (0, 2):
            e(f"v_pk_add_f32 {vr(R+h,2)}, {vr(R+h,2)}, {vr(R+4+h,2)}")
    else:
        pk_sum(R, 4)
    padspot("t4e", True)
    e(f"""
    v_permlane32_swap_b32 v{R}, v{R+2}
    v_permlane32_swap_b32 v{R+1}, v{R+3}
    v_add_f32 v{R}, v{R}, v{R+2}
    v_add_f32 v{R+1}, v{R+1}, v{R+3}
    v_permlane16_swap_b32 v{R}, v{R+1}
    v_add_f32 v{R}, v{R}, v{R+1}
    v_add_f32_dpp v{R}, v{R}, v{R} row_ror:2 row_mask:0xf bank_mask:0xf
    v_add_f32_dpp v{R}, v{R}, v{R} row_ror:4 row_mask:0xf bank_mask:0xf
    v_add_f32_dpp v{R}, v{R}, v{R} row_ror:8 row_mask:0xf bank_mask:0xf
    """)
    if not sel:
        e(f"""
        v_cmp_u_f32 vcc, v{R}, v{R}
        s_cbranch_vccz L_h2_ok
        {SPIN("L_h2")}
        L_h2_ok:
        """)
    e(f"""
    v_cvt_pk_bf16_f32 v{R}, v{R}, v{R}
    """)
    stamp(9)
    if dry:
        e("s_cbranch_execz L_dry_ret")
    e(f"""
    s_mov_b32 exec_lo, 0x30003
    s_mov_b32 exec_hi, 0x30003
    global_store_short v{vPd}, v{R}, {sp(OUT_)}{" " + osc.replace("_", " ") if osc else ""}
    {"s_waitcnt vmcnt(1)" if p4 else ""}
    s_cmp_lg_u32 s{sIdx}, 0
    s_cbranch_scc1 L_fin
    s_add_u32 s{sTag}, s{sTag}, {EPC}
    v_mov_b32 v{R+1}, s{sTag}
    s_mov_b64 exec, 1
    global_store_dword v{vPc}, v{R+1}, {sp(WS_)}{" " + osc.replace("_", " ") if osc else ""}
    L_fin:
    """)
    if prof:
        e("s_waitcnt vmcnt(0)")
        stamp(10)
        e(f"""
        s_waitcnt lgkmcnt(0)
        s_mov_b64 exec, 1
        s_lshl_b32 s{sT0}, s{sLid}, 3
        s_add_u32 s{sT0}, s{sT0}, s{sW}
        s_lshl_b32 s{sT0}, s{sT0}, 6
        s_add_u32 s{sT0}, s{sT0}, {WS_PROF}
        v_mov_b32 v0, 0
        """)
        if pmode == 5:
            stamp(16, 5)
            e(f"s_lshl_b32 s{sT0}, s{sLid}, 3")
            e(f"s_add_u32 s{sT0}, s{sT0}, s{sW}")
            e(f"s_lshl_b32 s{sT0}, s{sT0}, 7")
            e(f"s_add_u32 s{sT0}, s{sT0}, {WS_PROF}")
            for k in range(16):
                e(f"v_mov_b32 v{8+k}, s{sProf+k}")
            for k in range(6):
                e(f"v_mov_b32 v{24+k}, s{sProf+16+2*k}")
            e(f"s_getreg_b32 s{sT1}, hwreg(HW_REG_XCC_ID)")
            e(f"v_mov_b32 v30, s{sT1}")
            e(f"s_getreg_b32 s{sT1}, hwreg(HW_REG_HW_ID)")
            e(f"v_mov_b32 v31, s{sT1}")
            for k in range(6):
                e(f"buffer_store_dwordx4 v[{8+4*k}:{11+4*k}], v0, {srd(WS_)}, s{sT0} offen offset:{16*k}")
        else:
          for k in range(14):
            e(f"v_mov_b32 v{8+k}, s{sProf+2*k}")
          e(f"s_getreg_b32 s{sT1}, hwreg(HW_REG_XCC_ID)")
          e(f"v_mov_b32 v22, s{sT1}")
          e(f"v_mov_b32 v23, s{sSpin}")
          for k in range(4):
            e(f"buffer_store_dwordx4 v[{8+4*k}:{11+4*k}], v0, {srd(WS_)}, s{sT0} offen offset:{16*k}")
    if pad:
        e(f"""
        s_waitcnt vmcnt(0) lgkmcnt(0)
        L_pad:
        s_memrealtime {sp(sProf+2)}
        s_waitcnt lgkmcnt(0)
        s_sub_u32 s{sT0}, s{sProf+2}, s{sProf}
        s_cmp_lt_u32 s{sT0}, {pad}
        s_cbranch_scc1 L_pad
        """)
    e("L_end:")
    e("s_endpgm")
    padspot("fin")
    nsg = (sProf + 32 if pmode == 5 else sProf + 28) if (prof or pad) else sProf
    e.raw(f""".section .rodata,"a"
.p2align 6
.amdhsa_kernel {KNAME}
  .amdhsa_next_free_vgpr 256
  .amdhsa_next_free_sgpr {nsg}
  .amdhsa_accum_offset 256
  .amdhsa_group_segment_fixed_size 0
  .amdhsa_kernarg_size 104
  .amdhsa_user_sgpr_count 2
  .amdhsa_user_sgpr_kernarg_segment_ptr 1
  .amdhsa_system_sgpr_workgroup_id_x 1
.end_amdhsa_kernel""")
    return e.text()


if __name__ == "__main__":
    kw = {}
    for a in sys.argv[2:]:
        k, v = a.split("=")
        try:
            v = int(v, 0)
        except ValueError:
            pass
        kw[k] = v
    open(sys.argv[1], "w").write(gen(**kw))
```
